```python
import torch

def _softmax(x, axis=-1):
    return torch.softmax(x, dim=axis)
def _gelu(x):
    return torch.nn.functional.gelu(x, approximate="tanh")
def _silu(x):
    return torch.nn.functional.silu(x)
def _sigmoid(x):
    return torch.sigmoid(x)
def _layernorm(x, axis=-1, eps=1e-5):
    m = x.mean(dim=axis, keepdim=True)
    v = x.var(dim=axis, keepdim=True, unbiased=False)
    return (x - m) / torch.sqrt(v + eps)
def _scatter_add(tgt, idx, src, axis=0):
    return tgt.clone().index_add_(axis, idx, src)
def _segment_sum(src, seg, n):
    out = torch.zeros((n,) + src.shape[1:], dtype=src.dtype)
    return out.index_add_(0, seg, src)
def _pad(x, pw):
    flat = tuple(v for pair in reversed(pw) for v in pair)
    return torch.nn.functional.pad(x, flat)

kernel_name = 'parallel_sum__spectral_fnet__geglu_ffn__prompt'

def setup_inputs():

    _w = (lambda a: (lambda t: t.to(torch.bfloat16) if t.is_floating_point() else t)(torch.as_tensor(a)))
    def _A_setup():
        B, S, D = 1, 2048, 576
        ns = torch.arange(S)[:, None] * torch.arange(S)[None, :]
        nd = torch.arange(D)[:, None] * torch.arange(D)[None, :]
        Ws_re = torch.cos(-2.0 * torch.pi * ns / S).to(float)
        Ws_im = torch.sin(-2.0 * torch.pi * ns / S).to(float)
        Wd_re = torch.cos(-2.0 * torch.pi * nd / D).to(float)
        Wd_im = torch.sin(-2.0 * torch.pi * nd / D).to(float)
        return {
            "x": _w((lambda *s: torch.randn(*s, dtype=torch.bfloat16) * 0.05)(B, S, D)),
            "dft_seq_re": _w(Ws_re),
            "dft_seq_im": _w(Ws_im),
            "dft_hid_re": _w(Wd_re),
            "dft_hid_im": _w(Wd_im),
        }
    _A_in = _A_setup()

    def _B_setup():
        B, S, D, F = 1, 2048, 576, 4608
        return {
            "x": _w((lambda *s: torch.randn(*s, dtype=torch.bfloat16) * 0.05)(B, S, D)),
            "w_gate": _w((lambda *s: torch.randn(*s, dtype=torch.bfloat16) * 0.2)(D, F)),
            "w_up": _w((lambda *s: torch.randn(*s, dtype=torch.bfloat16) * 0.2)(D, F)),
            "w_down": _w((lambda *s: torch.randn(*s, dtype=torch.bfloat16) * 0.2)(F, D)),
        }
    _B_in = _B_setup()

    return {
        "A_x": _A_in["x"],
        "A_dft_seq_re": _A_in["dft_seq_re"],
        "A_dft_seq_im": _A_in["dft_seq_im"],
        "A_dft_hid_re": _A_in["dft_hid_re"],
        "A_dft_hid_im": _A_in["dft_hid_im"],
        "B_x": _B_in["x"],
        "B_w_gate": _B_in["w_gate"],
        "B_w_up": _B_in["w_up"],
        "B_w_down": _B_in["w_down"],
    }

def reference(A_x, A_dft_seq_re, A_dft_seq_im, A_dft_hid_re, A_dft_hid_im, B_x, B_w_gate, B_w_up, B_w_down):
    def _A_ref(x, dft_seq_re, dft_seq_im, dft_hid_re, dft_hid_im):
        a = torch.einsum("bsd,ed->bse", x, dft_hid_re)
        b = torch.einsum("bsd,ed->bse", x, dft_hid_im)
        y = torch.einsum("ts,bse->bte", dft_seq_re, a) - torch.einsum("ts,bse->bte", dft_seq_im, b)
        return y

    def _B_ref(x, w_gate, w_up, w_down):
        return (_gelu(x @ w_gate) * (x @ w_up)) @ w_down

    x = A_x
    xn = _layernorm(x, axis=-1)
    return x + _A_ref(xn, A_dft_seq_re, A_dft_seq_im, A_dft_hid_re, A_dft_hid_im) + _B_ref(xn, B_w_gate, B_w_up, B_w_down)
```

```python
class Asm:
    def __init__(self):
        self.lines = []
        self.lab = 0
    def __call__(self, s):
        self.lines.append("    " + s)
    def raw(self, s):
        self.lines.append(s)
    def label(self, name):
        self.lines.append(name + ":")
    def newlabel(self, p="L"):
        self.lab += 1
        return "%s_%d" % (p, self.lab)
    def c(self, s):
        self.lines.append("    ; " + s)
    def text(self):
        return "\n".join(self.lines) + "\n"

HEADER = """; Kernarg layout for this problem (96 bytes, ptrs only, base s[0:1]):
"""

def kernel_begin(a, name):
    a.raw(".text")
    a.raw(".globl %s" % name)
    a.raw(".p2align 8")
    a.raw(".type %s,@function" % name)
    a.label(name)

def kernel_desc(a, name, vgpr, sgpr, accum, wgy=False):
    a.raw('.section .rodata,"a"')
    a.raw(".p2align 6")
    a.raw(".amdhsa_kernel %s" % name)
    a.raw("  .amdhsa_next_free_vgpr %d" % vgpr)
    a.raw("  .amdhsa_next_free_sgpr %d" % sgpr)
    a.raw("  .amdhsa_accum_offset %d" % accum)
    a.raw("  .amdhsa_group_segment_fixed_size 0")
    a.raw("  .amdhsa_kernarg_size 96")
    a.raw("  .amdhsa_user_sgpr_count 2")
    a.raw("  .amdhsa_user_sgpr_kernarg_segment_ptr 1")
    a.raw("  .amdhsa_system_sgpr_workgroup_id_x 1")
    if wgy:
        a.raw("  .amdhsa_system_sgpr_workgroup_id_y 1")
    a.raw("  .amdhsa_float_denorm_mode_32 3")
    a.raw("  .amdhsa_float_denorm_mode_16_64 3")
    a.raw(".end_amdhsa_kernel")
```

```python
import sys
from asmgen import *

S, D, F = 2048, 576, 4608
WS_XN  = 0
WS_WGT = 4 << 20
WS_WUT = 10 << 20
WS_WDT = 16 << 20
WS_H   = 22 << 20
WS_AT  = 42 << 20
WS_NBT = 46 << 20
WS_END = 50 << 20

def srd(a, sd, sp, nbytes, off=0):
    if off:
        a("s_add_u32 s%d, s%d, %d" % (sd, sp, off))
        a("s_addc_u32 s%d, s%d, 0" % (sd + 1, sp + 1))
    else:
        a("s_mov_b32 s%d, s%d" % (sd, sp))
        a("s_mov_b32 s%d, s%d" % (sd + 1, sp + 1))
    a("s_mov_b32 s%d, %d" % (sd + 2, nbytes))
    a("s_mov_b32 s%d, 0x00020000" % (sd + 3))

def load_ptrs(a):
    a("s_load_dwordx8 s[4:11], s[0:1], 0")
    a("s_load_dwordx2 s[12:13], s[0:1], 32")
    a("s_load_dwordx8 s[16:23], s[0:1], 48")
    a("s_load_dwordx4 s[24:27], s[0:1], 80")
    a("s_waitcnt lgkmcnt(0)")

def k_ln(a):
    name = "ln_kernel"
    kernel_begin(a, name)
    a("s_cmp_ge_u32 s2, 512"); a("s_cbranch_scc1 L_ln_done")
    load_ptrs(a)
    srd(a, 32, 4, S * D * 2)
    srd(a, 36, 26, S * D * 2, WS_XN)
    a("v_lshrrev_b32 v1, 6, v0"); a("v_and_b32 v2, 63, v0")
    a("s_lshl_b32 s3, s2, 2")
    a("v_add_u32 v1, s3, v1")
    a("s_movk_i32 s28, 1152")
    a("v_mul_lo_u32 v3, v1, s28")
    a("v_lshlrev_b32 v4, 5, v2")
    a("v_add_u32 v3, v3, v4")
    a("v_cmp_gt_u32 vcc, 36, v2")
    a("v_mov_b32 v5, 0x7fffffff")
    a("s_nop 1")
    a("v_cndmask_b32 v3, v5, v3, vcc")
    a("buffer_load_dwordx4 v[8:11], v3, s[32:35], 0 offen")
    a("buffer_load_dwordx4 v[12:15], v3, s[32:35], 0 offen offset:16")
    a("s_waitcnt vmcnt(0)")
    for i in range(8):
        a("v_lshlrev_b32 v%d, 16, v%d" % (16 + 2 * i, 8 + i))
        a("v_and_b32 v%d, 0xffff0000, v%d" % (17 + 2 * i, 8 + i))
    a("v_mov_b32 v32, 0")
    for i in range(16):
        a("v_add_f32 v32, v32, v%d" % (16 + i))
    def wave_sum(reg, tmp):
        for sh in (1, 2, 4, 8, 16, 32):
            a("v_xor_b32 v40, %d, v2" % sh)
            a("v_lshlrev_b32 v40, 2, v40")
            a("ds_bpermute_b32 v%d, v40, v%d" % (tmp, reg))
            a("s_waitcnt lgkmcnt(0)")
            a("v_add_f32 v%d, v%d, v%d" % (reg, reg, tmp))
    wave_sum(32, 33)
    a("v_mul_f32 v32, 0x%08x, v32" % f2u(1.0 / 576))
    a("v_mov_b32 v34, 0")
    for i in range(16):
        a("v_sub_f32 v35, v%d, v32" % (16 + i))
        a("v_fmac_f32 v34, v35, v35")
    a("v_cndmask_b32 v34, 0, v34, vcc")
    wave_sum(34, 33)
    a("v_mul_f32 v34, 0x%08x, v34" % f2u(1.0 / 576))
    a("v_cvt_pk_bf16_f32 v36, v32, v34")
    a("v_lshlrev_b32 v32, 16, v36")
    a("v_and_b32 v34, 0xffff0000, v36")
    a("v_add_f32 v34, 0x%08x, v34" % f2u(1e-5))
    a("v_cvt_pk_bf16_f32 v36, v34, v34")
    a("v_lshlrev_b32 v34, 16, v36")
    a("v_sqrt_f32 v34, v34")
    a("s_nop 0")
    a("v_cvt_pk_bf16_f32 v36, v34, v34")
    a("v_lshlrev_b32 v34, 16, v36")
    a("v_rcp_f32 v34, v34")
    a("s_nop 0")
    for i in range(8):
        a("v_sub_f32 v%d, v%d, v32" % (16 + 2 * i, 16 + 2 * i))
        a("v_sub_f32 v%d, v%d, v32" % (17 + 2 * i, 17 + 2 * i))
        a("v_cvt_pk_bf16_f32 v36, v%d, v%d" % (16 + 2 * i, 17 + 2 * i))
        a("v_lshlrev_b32 v%d, 16, v36" % (16 + 2 * i))
        a("v_and_b32 v%d, 0xffff0000, v36" % (17 + 2 * i))
        a("v_mul_f32 v%d, v%d, v34" % (16 + 2 * i, 16 + 2 * i))
        a("v_mul_f32 v%d, v%d, v34" % (17 + 2 * i, 17 + 2 * i))
        a("v_cvt_pk_bf16_f32 v%d, v%d, v%d" % (8 + i, 16 + 2 * i, 17 + 2 * i))
    a("buffer_store_dwordx4 v[8:11], v3, s[36:39], 0 offen")
    a("buffer_store_dwordx4 v[12:15], v3, s[36:39], 0 offen offset:16")
    a.label("L_ln_done")
    a("s_endpgm")
    return name, 64

import struct
def f2u(x):
    return struct.unpack("<I", struct.pack("<f", x))[0]

def k_tr(a):
    name = "tr_kernel"
    kernel_begin(a, name)
    per = D * F // 8
    a("s_cmp_ge_u32 s2, %d" % (3 * per // 256)); a("s_cbranch_scc1 L_tr_done")
    load_ptrs(a)
    a("s_cmp_ge_u32 s2, 2592"); a("s_cbranch_scc1 L_tr_wd")
    a("s_cmp_ge_u32 s2, 1296"); a("s_cbranch_scc1 L_tr_wu")
    srd(a, 32, 16, D * F * 2); srd(a, 36, 26, D * F * 2, WS_WGT)
    a("s_mov_b32 s40, s2")
    a("s_branch L_tr_gu")
    a.label("L_tr_wu")
    srd(a, 32, 18, D * F * 2); srd(a, 36, 26, D * F * 2, WS_WUT)
    a("s_sub_u32 s40, s2, 1296")
    a.label("L_tr_gu")
    a("s_lshl_b32 s41, s40, 8")
    a("v_add_u32 v1, s41, v0")
    a("s_mov_b32 s42, %d" % (-(-(1 << 32) // 4608)))
    a("v_mul_hi_u32 v2, v1, s42")
    a("s_movk_i32 s43, 4608")
    a("v_mul_lo_u32 v3, v2, s43")
    a("v_sub_u32 v3, v1, v3")
    a("s_mov_b32 s44, %d" % (8 * 9216))
    a("v_mul_lo_u32 v4, v2, s44")
    a("v_lshl_add_u32 v4, v3, 1, v4")
    a("s_movk_i32 s45, 1152")
    a("v_mul_lo_u32 v5, v3, s45")
    a("v_lshl_add_u32 v5, v2, 4, v5")
    a("s_mov_b32 s46, 9216")
    a("s_branch L_tr_go")
    a.label("L_tr_wd")
    srd(a, 32, 20, D * F * 2); srd(a, 36, 26, D * F * 2, WS_WDT)
    a("s_sub_u32 s40, s2, 2592")
    a("s_lshl_b32 s41, s40, 8")
    a("v_add_u32 v1, s41, v0")
    a("s_mov_b32 s42, %d" % (-(-(1 << 32) // 576)))
    a("v_mul_hi_u32 v2, v1, s42")
    a("s_movk_i32 s43, 576")
    a("v_mul_lo_u32 v3, v2, s43")
    a("v_sub_u32 v3, v1, v3")
    a("s_mov_b32 s44, %d" % (8 * 1152))
    a("v_mul_lo_u32 v4, v2, s44")
    a("v_lshl_add_u32 v4, v3, 1, v4")
    a("s_movk_i32 s45, 9216")
    a("v_mul_lo_u32 v5, v3, s45")
    a("v_lshl_add_u32 v5, v2, 4, v5")
    a("s_mov_b32 s46, 1152")
    a.label("L_tr_go")
    a("s_mov_b32 s47, 0")
    for j in range(8):
        a("buffer_load_ushort v%d, v4, s[32:35], s47 offen" % (8 + j))
        a("s_add_u32 s47, s47, s46")
    a("s_waitcnt vmcnt(0)")
    for j in range(4):
        a("v_lshl_or_b32 v%d, v%d, 16, v%d" % (16 + j, 9 + 2 * j, 8 + 2 * j))
    a("buffer_store_dwordx4 v[16:19], v5, s[36:39], 0 offen")
    a.label("L_tr_done")
    a("s_endpgm")
    return name, 32

def gemm(a, name, nwg, gi, wi, wj, ti, tj, segs, npm, nqm, epi):
    kernel_begin(a, name)
    done = "L_%s_done" % name
    a("s_cmp_ge_u32 s2, %d" % nwg); a("s_cbranch_scc1 %s" % done)
    load_ptrs(a)
    a("s_mov_b32 s28, %d" % (-(-(1 << 32) // gi)))
    a("s_mul_hi_u32 s29, s2, s28")
    a("s_mul_i32 s30, s29, %d" % gi)
    a("s_sub_u32 s30, s2, s30")
    a("v_lshrrev_b32 v1, 6, v0")
    a("v_and_b32 v2, 31, v0")
    a("v_bfe_u32 v3, v0, 5, 1")
    import math
    lw = int(math.log2(wi))
    a("v_and_b32 v4, %d, v1" % (wi - 1))
    a("v_lshrrev_b32 v5, %d, v1" % lw)
    a("s_mul_i32 s31, s30, %d" % (wi * ti * 32))
    a("v_mul_u32_u24 v4, %d, v4" % (ti * 32))
    a("v_add_u32 v4, s31, v4")
    a("s_mul_i32 s31, s29, %d" % (wj * tj * 32))
    a("v_mul_u32_u24 v5, %d, v5" % (tj * 32))
    a("v_add_u32 v5, s31, v5")
    nm = max(npm, nqm)
    nacc = nm * ti * tj
    for r in range(nacc * 16):
        a("v_accvgpr_write_b32 a%d, 0" % r)
    PF = 16
    for si, (Ps, ldp, Qs, ldq, K, setup) in enumerate(segs):
        setup(a)
        a("v_add_u32 v6, v4, v2")
        a("s_mov_b32 s31, %d" % ldp)
        a("v_mul_lo_u32 v6, v6, s31")
        a("v_lshl_add_u32 v6, v3, 4, v6")
        a("v_add_u32 v7, v5, v2")
        a("s_mov_b32 s31, %d" % ldq)
        a("v_mul_lo_u32 v7, v7, s31")
        a("v_lshl_add_u32 v7, v3, 4, v7")
        for t in range(1, ti):
            a("v_add_u32 v%d, %d, v6" % (8 + t - 1, t * 32 * ldp))
        for t in range(1, tj):
            a("v_add_u32 v%d, %d, v7" % (12 + t - 1, t * 32 * ldq))
        a("s_mov_b32 s60, 0")
        lab = "L_%s_k%d" % (name, si)
        a.label(lab)
        r = PF
        pf = {}; qf = {}
        for m in range(len(Ps)):
            for t in range(ti):
                va = 6 if t == 0 else 8 + t - 1
                a("buffer_load_dwordx4 v[%d:%d], v%d, s[%d:%d], s60 offen" % (r, r + 3, va, Ps[m], Ps[m] + 3))
                pf[(m, t)] = r; r += 4
        for m in range(len(Qs)):
            for t in range(tj):
                va = 7 if t == 0 else 12 + t - 1
                a("buffer_load_dwordx4 v[%d:%d], v%d, s[%d:%d], s60 offen" % (r, r + 3, va, Qs[m], Qs[m] + 3))
                qf[(m, t)] = r; r += 4
        a("s_waitcnt vmcnt(0)")
        for m in range(nm):
            for x in range(ti):
                for y in range(tj):
                    acc = ((m * ti + x) * tj + y) * 16
                    p = pf[(m if len(Ps) > 1 else 0, x)]; q = qf[(m if len(Qs) > 1 else 0, y)]
                    a("v_mfma_f32_32x32x16_bf16 a[%d:%d], v[%d:%d], v[%d:%d], a[%d:%d]" % (acc, acc + 15, p, p + 3, q, q + 3, acc, acc + 15))
        a("s_add_u32 s60, s60, 32")
        a("s_cmp_lt_u32 s60, %d" % (K * 2))
        a("s_cbranch_scc1 %s" % lab)
    a("s_nop 15"); a("s_nop 7")
    epi(a)
    a.label(done)
    a("s_endpgm")

def store_tile_T(a, vals, srdo, ldo, x, y, extra=None):
    a("v_add_u32 v60, v5, v2")
    if y: a("v_add_u32 v60, %d, v60" % (y * 32))
    a("s_mov_b32 s31, %d" % ldo)
    a("v_mul_lo_u32 v60, v60, s31")
    a("v_lshl_add_u32 v61, v3, 2, v4")
    if x: a("v_add_u32 v61, %d, v61" % (x * 32))
    a("v_lshl_add_u32 v60, v61, 1, v60")
    for g in range(4):
        if extra: extra(a, g, vals)
        a("v_cvt_pk_bf16_f32 v62, v%d, v%d" % (vals[4 * g], vals[4 * g + 1]))
        a("v_cvt_pk_bf16_f32 v63, v%d, v%d" % (vals[4 * g + 2], vals[4 * g + 3]))
        a("buffer_store_dwordx2 v[62:63], v60, s[%d:%d], 0 offen offset:%d" % (srdo, srdo + 3, g * 16))
        a("s_nop 1")

def main():
    a = Asm()
    a.raw(HEADER.rstrip("\n"))
    a.raw("; @launch kernel=ln_kernel grid=(512,1,1) block=(256,1,1) lds=0")
    a.raw("; @launch kernel=tr_kernel grid=(3888,1,1) block=(256,1,1) lds=0")
    a.raw("; @launch kernel=g1_kernel grid=(576,1,1) block=(256,1,1) lds=0")
    a.raw("; @launch kernel=a1_kernel grid=(144,1,1) block=(256,1,1) lds=0")
    a.raw("; @launch kernel=fin_kernel grid=(288,1,1) block=(256,1,1) lds=0")
    EXTRA = sys.argv[2:]
    a.raw('.amdgcn_target "amdgcn-amd-amdhsa--gfx950"')
    k_ln(a)
    k_tr(a)
    def setup_g1(a):
        srd(a, 32, 26, D * F * 2, WS_WGT); srd(a, 36, 26, D * F * 2, WS_WUT); srd(a, 40, 26, S * D * 2, WS_XN)
        srd(a, 44, 26, S * F * 2, WS_H)
    def epi_g1(a):
        c0 = -2.0 * 0.7978845608028654 * 1.4426950408889634
        c1 = c0 * 0.044715
        a("s_mov_b32 s61, 0x%08x" % f2u(c0)); a("s_mov_b32 s62, 0x%08x" % f2u(c1))
        a("v_mov_b32 v59, s61")
        for x in range(2):
            for y in range(2):
                ag = ((0 * 2 + x) * 2 + y) * 16; au = ((1 * 2 + x) * 2 + y) * 16
                for r in range(16):
                    a("v_accvgpr_read_b32 v%d, a%d" % (64 + r, ag + r))
                    a("v_accvgpr_read_b32 v%d, a%d" % (80 + r, au + r))
                for r in range(16):
                    g = 64 + r; u = 80 + r
                    a("v_mul_f32 v56, v%d, v%d" % (g, g))
                    a("v_fma_f32 v56, v56, s62, v59")
                    a("v_mul_f32 v56, v56, v%d" % g)
                    a("v_exp_f32 v56, v56")
                    a("s_nop 0")
                    a("v_add_f32 v56, 1.0, v56")
                    a("v_rcp_f32 v56, v56")
                    a("v_mul_f32 v%d, v%d, v%d" % (g, g, u))
                    a("v_mul_f32 v%d, v%d, v56" % (g, g))
                store_tile_T(a, [64 + r for r in range(16)], 44, F * 2, x, y)
    gemm(a, "g1_kernel", 576, 36, 2, 2, 2, 2, [([32, 36], D * 2, [40], D * 2, D, setup_g1)], 2, 1, epi_g1)
    def setup_a1(a):
        srd(a, 32, 26, S * D * 2, WS_XN); srd(a, 36, 10, D * D * 2); srd(a, 40, 12, D * D * 2)
        srd(a, 44, 26, S * D * 2, WS_AT); srd(a, 48, 26, S * D * 2, WS_NBT)
    def epi_a1(a):
        for m in range(2):
            for x in range(2):
                ac = ((m * 2 + x) * 1 + 0) * 16
                for r in range(16):
                    a("v_accvgpr_read_b32 v%d, a%d" % (64 + r, ac + r))
                if m == 1:
                    for r in range(16):
                        a("v_sub_f32 v%d, 0, v%d" % (64 + r, 64 + r))
                store_tile_T(a, [64 + r for r in range(16)], 44 + 4 * m, S * 2, x, 0)
    gemm(a, "a1_kernel", 144, 8, 4, 1, 2, 1, [([32], D * 2, [36, 40], D * 2, D, setup_a1)], 1, 2, epi_a1)
    def s0(a):
        srd(a, 32, 26, D * F * 2, WS_WDT); srd(a, 36, 26, S * F * 2, WS_H)
        srd(a, 44, 22, S * D * 2); srd(a, 48, 4, S * D * 2)
    def s1(a):
        srd(a, 32, 26, S * D * 2, WS_AT); srd(a, 36, 6, S * S * 2)
    def s2(a):
        srd(a, 32, 26, S * D * 2, WS_NBT); srd(a, 36, 8, S * S * 2)
    def epi_f(a):
        for r in range(16):
            a("v_accvgpr_read_b32 v%d, a%d" % (64 + r, r))
        def extra(a, g, vals):
            a("buffer_load_dwordx2 v[56:57], v60, s[48:51], 0 offen offset:%d" % (g * 16))
            a("s_waitcnt vmcnt(0)")
            a("v_lshlrev_b32 v58, 16, v56"); a("v_add_f32 v%d, v%d, v58" % (vals[4 * g], vals[4 * g]))
            a("v_and_b32 v58, 0xffff0000, v56"); a("v_add_f32 v%d, v%d, v58" % (vals[4 * g + 1], vals[4 * g + 1]))
            a("v_lshlrev_b32 v58, 16, v57"); a("v_add_f32 v%d, v%d, v58" % (vals[4 * g + 2], vals[4 * g + 2]))
            a("v_and_b32 v58, 0xffff0000, v57"); a("v_add_f32 v%d, v%d, v58" % (vals[4 * g + 3], vals[4 * g + 3]))
        store_tile_T(a, [64 + r for r in range(16)], 44, D * 2, 0, 0, extra)
    gemm(a, "fin_kernel", 288, 9, 2, 2, 1, 1, [([32], F * 2, [36], F * 2, F, s0), ([32], S * 2, [36], S * 2, S, s1), ([32], S * 2, [36], S * 2, S, s2)], 1, 1, epi_f)
    kernel_desc(a, "ln_kernel", 64, 64, 64)
    kernel_desc(a, "tr_kernel", 32, 64, 32)
    kernel_desc(a, "g1_kernel", 256, 80, 128)
    kernel_desc(a, "a1_kernel", 256, 80, 128)
    kernel_desc(a, "fin_kernel", 256, 80, 128)
    open(sys.argv[1], "w").write(a.text())
main()
```

```python
import struct
def f2u(x):
    return struct.unpack("<I", struct.pack("<f", x))[0]

class Stream:
    def __init__(self, a):
        self.a = a
        self.vm = []
        self.lg = []
        self.ninstr = 0
    def __call__(self, s):
        self.a(s); self.ninstr += 1
    def vmem(self, s, tag):
        self(s); self.vm.append(tag)
    def lds(self, s, tag):
        self(s); self.lg.append(tag)
    def _need(self, q, tags, maxn):
        last = -1
        for i, t in enumerate(q):
            if t in tags: last = i
        if last < 0: return None
        n = len(q) - 1 - last
        return min(n, maxn)
    def wait(self, vm=(), lg=()):
        parts = []
        nv = self._need(self.vm, set(vm), 63) if vm else None
        nl = self._need(self.lg, set(lg), 15) if lg else None
        if nv is not None:
            parts.append("vmcnt(%d)" % nv)
            self.vm = self.vm[len(self.vm) - nv:] if nv else []
        if nl is not None:
            parts.append("lgkmcnt(%d)" % nl)
            self.lg = self.lg[len(self.lg) - nl:] if nl else []
        if parts:
            self("s_waitcnt " + " ".join(parts))
    def wait_all(self, vm=True, lg=True):
        parts = []
        if vm: parts.append("vmcnt(0)"); self.vm = []
        if lg: parts.append("lgkmcnt(0)"); self.lg = []
        self("s_waitcnt " + " ".join(parts))
```

```python
import sys, math
from asmgen import *
from sched import *

S, D, F = 2048, 576, 4608
STAMPS = False
WS_XNF   = 0
WS_XN    = 4 << 20
WS_AT    = 8 << 20
WS_NBT   = 12 << 20
WS_YT    = 16 << 20
WS_PART  = 24 << 20
WS_STAMP = 128 << 20
PART_BYTES = 16 * S * D * 2

def srd(a, sd, sp, nbytes, off=0):
    if off:
        a("s_add_u32 s%d, s%d, %d" % (sd, sp, off))
        a("s_addc_u32 s%d, s%d, 0" % (sd + 1, sp + 1))
    else:
        a("s_mov_b32 s%d, s%d" % (sd, sp))
        a("s_mov_b32 s%d, s%d" % (sd + 1, sp + 1))
    a("s_mov_b32 s%d, %d" % (sd + 2, nbytes))
    a("s_mov_b32 s%d, 0x00020000" % (sd + 3))

def load_ptrs(a):
    a("s_load_dwordx8 s[4:11], s[0:1], 0")
    a("s_load_dwordx2 s[12:13], s[0:1], 32")
    a("s_load_dwordx8 s[16:23], s[0:1], 48")
    a("s_load_dwordx4 s[24:27], s[0:1], 80")
    a("s_waitcnt lgkmcnt(0)")

def stamp(a, kidx, slot, sreg=90):
    if not STAMPS: return
    lab = a.newlabel("L_st")
    a("s_memrealtime s[%d:%d]" % (sreg, sreg + 1))
    a("s_waitcnt lgkmcnt(0)")
    a("v_cmp_eq_u32 vcc, 0, v0")
    a("s_and_saveexec_b64 s[%d:%d], vcc" % (sreg + 2, sreg + 3))
    a("s_cbranch_execz %s" % lab)
    a("s_lshl_b32 s%d, s2, 7" % (sreg + 4))
    a("s_add_u32 s%d, s%d, %d" % (sreg + 4, sreg + 4, WS_STAMP + kidx * 65536 + slot * 8))
    a("s_add_u32 s%d, s26, s%d" % (sreg + 4, sreg + 4))
    a("s_addc_u32 s%d, s27, 0" % (sreg + 5))
    a("v_mov_b32 v252, s%d" % sreg); a("v_mov_b32 v253, s%d" % (sreg + 1))
    a("v_mov_b32 v251, 0")
    a("global_store_dwordx2 v251, v[252:253], s[%d:%d]" % (sreg + 4, sreg + 5))
    a.label(lab)
    a("s_mov_b64 exec, s[%d:%d]" % (sreg + 2, sreg + 3))

def k_ln(a):
    name = "ln_kernel"
    kernel_begin(a, name)
    a("s_cmp_ge_u32 s2, 128"); a("s_cbranch_scc1 L_ln_done")
    load_ptrs(a)
    stamp(a, 0, 0)
    srd(a, 32, 4, S * D * 2)
    srd(a, 36, 26, S * D * 2, WS_XNF)
    srd(a, 40, 26, S * D * 2, WS_XN)
    a("v_lshrrev_b32 v1, 4, v0")
    a("v_and_b32 v2, 15, v0")
    a("s_lshl_b32 s3, s2, 4")
    a("v_add_u32 v1, s3, v1")
    a("s_movk_i32 s28, 1152")
    a("v_mul_lo_u32 v3, v1, s28")
    a("v_lshl_add_u32 v3, v2, 3, v3")
    for i in range(9):
        a("buffer_load_dwordx2 v[%d:%d], v3, s[32:35], 0 offen offset:%d" % (8 + 2 * i, 9 + 2 * i, i * 128))
    a("v_lshrrev_b32 v4, 5, v1")
    a("s_mov_b32 s29, 36864")
    a("v_mul_lo_u32 v4, v4, s29")
    a("v_lshrrev_b32 v5, 2, v2")
    a("v_lshl_add_u32 v4, v5, 10, v4")
    a("v_bfe_u32 v5, v2, 1, 1")
    a("v_lshl_add_u32 v4, v5, 9, v4")
    a("v_and_b32 v5, 31, v1")
    a("v_lshl_add_u32 v4, v5, 4, v4")
    a("v_and_b32 v5, 1, v2")
    a("v_lshl_add_u32 v4, v5, 3, v4")
    a("s_waitcnt vmcnt(0)")
    for i in range(18):
        a("v_lshlrev_b32 v%d, 16, v%d" % (32 + 2 * i, 8 + i))
        a("v_and_b32 v%d, 0xffff0000, v%d" % (33 + 2 * i, 8 + i))
    a("v_add_f32 v70, v32, v33")
    a("v_add_f32 v71, v34, v35")
    for i in range(4, 36, 2):
        a("v_add_f32 v70, v70, v%d" % (32 + i))
        a("v_add_f32 v71, v71, v%d" % (33 + i))
    a("v_add_f32 v70, v70, v71")
    def row_sum(r):
        for sh in (8, 4, 2, 1):
            a("s_nop 1")
            a("v_add_f32_dpp v%d, v%d, v%d row_ror:%d row_mask:0xf bank_mask:0xf" % (r, r, r, sh))
    row_sum(70)
    a("v_mul_f32 v70, 0x%08x, v70" % f2u(1.0 / 576))
    a("v_mov_b32 v72, 0"); a("v_mov_b32 v73, 0")
    for i in range(0, 36, 2):
        a("v_sub_f32 v74, v%d, v70" % (32 + i))
        a("v_sub_f32 v75, v%d, v70" % (33 + i))
        a("v_fmac_f32 v72, v74, v74")
        a("v_fmac_f32 v73, v75, v75")
    a("v_add_f32 v72, v72, v73")
    row_sum(72)
    a("v_mul_f32 v72, 0x%08x, v72" % f2u(1.0 / 576))
    a("v_cvt_pk_bf16_f32 v76, v70, v72")
    a("v_lshlrev_b32 v70, 16, v76")
    a("v_and_b32 v72, 0xffff0000, v76")
    a("v_add_f32 v72, 0x%08x, v72" % f2u(1e-5))
    a("v_cvt_pk_bf16_f32 v76, v72, v72")
    a("v_lshlrev_b32 v72, 16, v76")
    a("v_sqrt_f32 v72, v72")
    a("s_nop 0")
    a("v_cvt_pk_bf16_f32 v76, v72, v72")
    a("v_lshlrev_b32 v72, 16, v76")
    a("v_rcp_f32 v72, v72")
    a("s_nop 0")
    for i in range(18):
        x0, x1 = 32 + 2 * i, 33 + 2 * i
        a("v_sub_f32 v%d, v%d, v70" % (x0, x0))
        a("v_sub_f32 v%d, v%d, v70" % (x1, x1))
        a("v_cvt_pk_bf16_f32 v76, v%d, v%d" % (x0, x1))
        a("v_lshlrev_b32 v%d, 16, v76" % x0)
        a("v_and_b32 v%d, 0xffff0000, v76" % x1)
        a("v_mul_f32 v%d, v%d, v72" % (x0, x0))
        a("v_mul_f32 v%d, v%d, v72" % (x1, x1))
        a("v_cvt_pk_bf16_f32 v%d, v%d, v%d" % (8 + i, x0, x1))
    for i in range(9):
        a("s_movk_i32 s30, %d" % (i * 4096) if i * 4096 < 32768 else "s_mov_b32 s30, %d" % (i * 4096))
        a("buffer_store_dwordx2 v[%d:%d], v4, s[36:39], s30 offen" % (8 + 2 * i, 9 + 2 * i))
        a("buffer_store_dwordx2 v[%d:%d], v3, s[40:43], 0 offen offset:%d" % (8 + 2 * i, 9 + 2 * i, i * 128))
    stamp(a, 0, 1)
    a.label("L_ln_done")
    a("s_endpgm")

RING = 0
HBASE = 73728
ACC = [16, 80]
XOV = 144
AF = 176
GT = 200
HP = 216
V_LANE16 = 1
V_DM0, V_DM1 = 2, 3
V_DH0, V_DH1 = 4, 5
V_TR = [6, 7, 8, 9]
V_TRH = [10, 11]
V_H = 12
V_HH = 13
V_C0 = 14
V_TMP = 15
V_D2 = 224
V_TR2 = [225, 226, 227, 228]
V_HR = 229
V_PF = 230
S_W = 32; S_X = 36; S_D = 40; S_P = 44
S_WAVE, S_TM, S_FH, S_M, S_J = 48, 49, 50, 51, 52
S_FB, S_FHB = 53, 54
S_LDSW = 55
S_COL = [56, 57, 58, 59, 60]
S_OFF = 61; S_T0 = 62; S_T1 = 63; S_C1 = 64
S_PB = 65
S_LDS2 = 66

def xreg(ks, t):
    i = ks * 2 + t
    if i < 64: return "a[%d:%d]" % (4 * i, 4 * i + 3)
    r = XOV + 4 * (i - 64)
    return "v[%d:%d]" % (r, r + 3)

def gelu_items(accbase, tiles, hdst):
    items = []
    c1 = "s%d" % S_C1
    for n, (ti, off, areg) in enumerate(tiles):
        base = accbase + 16 * ti
        hp = HP + 4 * (n & 1)
        for pr in range(4):
            g0, g1 = base + 2 * pr, base + 2 * pr + 1
            u0, u1 = g0 + 8, g1 + 8
            t0, t1 = GT + 4 * (pr & 1), GT + 4 * (pr & 1) + 1
            m0, m1 = t0 + 2, t0 + 3
            items += [
                "v_mul_f32 v%d, v%d, v%d" % (t0, g0, g0),
                "v_mul_f32 v%d, v%d, v%d" % (t1, g1, g1),
                "v_fma_f32 v%d, v%d, %s, v%d" % (t0, t0, c1, V_C0),
                "v_fma_f32 v%d, v%d, %s, v%d" % (t1, t1, c1, V_C0),
                "v_mul_f32 v%d, v%d, v%d" % (t0, t0, g0),
                "v_mul_f32 v%d, v%d, v%d" % (t1, t1, g1),
                "v_exp_f32 v%d, v%d" % (t0, t0),
                "v_exp_f32 v%d, v%d" % (t1, t1),
                "v_mul_f32 v%d, v%d, v%d" % (m0, g0, u0),
                "v_mul_f32 v%d, v%d, v%d" % (m1, g1, u1),
                "v_add_f32 v%d, 1.0, v%d" % (t0, t0),
                "v_add_f32 v%d, 1.0, v%d" % (t1, t1),
                "v_rcp_f32 v%d, v%d" % (t0, t0),
                "v_rcp_f32 v%d, v%d" % (t1, t1),
                "v_mul_f32 v%d, v%d, v%d" % (m0, m0, t0),
                "v_mul_f32 v%d, v%d, v%d" % (m1, m1, t1),
                "v_cvt_pk_bf16_f32 v%d, v%d, v%d" % (hp + pr, m0, m1),
            ]
        items.append(("w", "ds_write_b128 v%d, v[%d:%d] offset:%d" % (areg, hp, hp + 3, off), "hw"))
    return items

def k_ffn(a):
    name = "ffn_kernel"
    kernel_begin(a, name)
    a("s_cmp_ge_u32 s2, 256"); a("s_cbranch_scc1 L_ffn_done")
    load_ptrs(a)
    stamp(a, 1, 0)
    st = Stream(a)
    a("v_lshrrev_b32 v20, 6, v0")
    a("v_and_b32 v21, 63, v0")
    a("v_readfirstlane_b32 s%d, v20" % S_WAVE)
    a("s_and_b32 s%d, s2, 7" % S_T0)
    a("s_lshr_b32 s%d, s2, 3" % S_T1)
    a("s_lshr_b32 s%d, s%d, 1" % (S_M, S_T1))
    a("s_and_b32 s%d, s%d, 1" % (S_T1, S_T1))
    a("s_lshl_b32 s%d, s%d, 1" % (S_J, S_T0))
    a("s_add_u32 s%d, s%d, s%d" % (S_J, S_J, S_T1))
    a("s_lshr_b32 s%d, s%d, 1" % (S_TM, S_WAVE))
    a("s_and_b32 s%d, s%d, 1" % (S_FH, S_WAVE))
    a("s_mul_i32 s%d, s%d, 288" % (S_T0, S_J))
    a("s_lshl_b32 s%d, s%d, 5" % (S_FB, S_T1))
    a("s_add_u32 s%d, s%d, s%d" % (S_FB, S_FB, S_T0))
    a("s_cmp_eq_u32 s%d, 0" % S_T1)
    a("s_cselect_b32 s%d, 256, 0" % S_FHB)
    a("s_add_u32 s%d, s%d, s%d" % (S_FHB, S_FHB, S_T0))
    for s_ in range(4):
        a("s_add_u32 s%d, s%d, %d" % (S_COL[s_], S_FB, 64 * s_))
        a("s_lshl_b32 s%d, s%d, 1" % (S_COL[s_], S_COL[s_]))
    a("s_lshl_b32 s%d, s%d, 5" % (S_COL[4], S_T1))
    a("s_sub_u32 s%d, s%d, s%d" % (S_COL[4], S_FHB, S_COL[4]))
    a("s_lshl_b32 s%d, s%d, 1" % (S_COL[4], S_COL[4]))
    a("s_cmp_ge_u32 s%d, 2" % S_WAVE)
    a("s_cselect_b32 s%d, s18, s16" % S_W)
    a("s_cselect_b32 s%d, s19, s17" % (S_W + 1))
    a("s_mov_b32 s%d, %d" % (S_W + 2, D * F * 2)); a("s_mov_b32 s%d, 0x00020000" % (S_W + 3))
    srd(a, S_X, 26, S * D * 2, WS_XNF)
    srd(a, S_D, 20, D * F * 2)
    srd(a, S_P, 26, PART_BYTES, WS_PART)
    a("s_lshl_b32 s%d, s%d, 11" % (S_LDSW, S_WAVE))
    a("s_lshl_b32 s%d, s%d, 10" % (S_LDS2, S_WAVE))
    a("s_mov_b32 s%d, 0x%08x" % (S_C1, f2u(-2.0 * 0.7978845608028654 * 1.4426950408889634 * 0.044715)))
    a("v_mov_b32 v%d, 0x%08x" % (V_C0, f2u(-2.0 * 0.7978845608028654 * 1.4426950408889634)))
    a("v_lshlrev_b32 v%d, 4, v21" % V_LANE16)
    a("v_lshrrev_b32 v22, 3, v21")
    a("s_lshl_b32 s%d, s%d, 4" % (S_T0, S_FH))
    a("v_add_u32 v22, s%d, v22" % S_T0)
    a("s_movk_i32 s%d, 9216" % S_T0)
    a("v_mul_lo_u32 v22, v22, s%d" % S_T0)
    a("v_bfe_u32 v23, v21, 4, 1")
    a("s_lshl_b32 s%d, s%d, 1" % (S_T0, S_TM))
    a("v_or_b32 v23, s%d, v23" % S_T0)
    a("v_bfe_u32 v24, v21, 1, 2")
    a("v_xor_b32 v24, v24, v23")
    a("v_and_b32 v25, 1, v21")
    a("v_lshlrev_b32 v25, 4, v25")
    a("v_lshl_add_u32 v25, v24, 5, v25")
    a("v_add_u32 v%d, v22, v25" % V_DM0)
    a("v_add_u32 v%d, %d, v%d" % (V_DM1, 8 * 9216, V_DM0))
    a("v_lshrrev_b32 v24, 1, v24")
    a("s_and_b32 s%d, s%d, 1" % (S_T0, S_J))
    a("v_cmp_eq_u32 vcc, s%d, v24" % S_T0)
    a("v_mov_b32 v26, 0x7ff00000")
    a("s_nop 0")
    a("v_cndmask_b32 v%d, v26, v%d, vcc" % (V_DH0, V_DM0))
    a("v_cndmask_b32 v%d, v26, v%d, vcc" % (V_DH1, V_DM1))
    a("v_bfe_u32 v22, v21, 4, 1")
    a("v_bfe_u32 v23, v21, 5, 1")
    a("v_bfe_u32 v24, v21, 2, 2")
    a("v_and_b32 v25, 3, v21")
    a("v_lshlrev_b32 v26, 12, v22")
    a("v_lshl_add_u32 v27, v23, 3, v24")
    a("v_lshl_add_u32 v26, v27, 7, v26")
    a("v_lshl_add_u32 v26, v25, 3, v26")
    a("v_lshrrev_b32 v27, 1, v24")
    a("v_lshl_or_b32 v27, v22, 1, v27")
    a("s_lshl_b32 s%d, s%d, 1" % (S_T0, S_FH))
    a("v_xor_b32 v28, s%d, v27" % S_T0)
    a("v_lshl_add_u32 v%d, v28, 5, v26" % V_TR[0])
    a("v_xor_b32 v28, 1, v28")
    a("v_lshl_add_u32 v%d, v28, 5, v26" % V_TR[1])
    a("v_add_u32 v%d, 32768, v%d" % (V_TR[2], V_TR[0]))
    a("v_add_u32 v%d, 32768, v%d" % (V_TR[3], V_TR[1]))
    a("s_and_b32 s%d, s%d, 1" % (S_T0, S_J))
    a("s_lshl_b32 s%d, s%d, 1" % (S_T0, S_T0))
    a("s_add_u32 s%d, s%d, s%d" % (S_T0, S_T0, S_FH))
    a("v_xor_b32 v28, s%d, v27" % S_T0)
    a("v_lshl_add_u32 v%d, v28, 5, v26" % V_TRH[0])
    a("v_add_u32 v%d, 32768, v%d" % (V_TRH[1], V_TRH[0]))
    a("s_mul_i32 s%d, s%d, 36" % (S_T0, S_TM))
    a("s_lshl_b32 s%d, s%d, 1" % (S_T1, S_FH))
    a("s_add_u32 s%d, s%d, s%d" % (S_T1, S_T1, S_T0))
    a("s_lshl_b32 s%d, s%d, 10" % (S_T1, S_T1))
    a("s_add_u32 s%d, s%d, %d" % (S_T1, S_T1, HBASE))
    a("v_add_u32 v%d, s%d, v%d" % (V_H, S_T1, V_LANE16))
    a("s_add_u32 s%d, s%d, 16" % (S_T1, S_T0))
    a("s_add_u32 s%d, s%d, s%d" % (S_T1, S_T1, S_FH))
    a("s_lshl_b32 s%d, s%d, 10" % (S_T1, S_T1))
    a("s_add_u32 s%d, s%d, %d" % (S_T1, S_T1, HBASE))
    a("v_add_u32 v%d, s%d, v%d" % (V_HH, S_T1, V_LANE16))
    a("s_lshl_b32 s%d, s%d, 10" % (S_T1, S_T0))
    a("s_add_u32 s%d, s%d, %d" % (S_T1, S_T1, HBASE))
    a("v_add_u32 v%d, s%d, v%d" % (V_HR, S_T1, V_LANE16))
    a("v_lshrrev_b32 v22, 3, v21")
    a("s_lshl_b32 s%d, s%d, 3" % (S_T0, S_WAVE))
    a("v_add_u32 v22, s%d, v22" % S_T0)
    a("s_movk_i32 s%d, 1152" % S_T0)
    a("v_mul_lo_u32 v22, v22, s%d" % S_T0)
    a("v_bfe_u32 v23, v21, 4, 1")
    a("v_lshlrev_b32 v23, 1, v23")
    a("v_bfe_u32 v24, v21, 1, 2")
    a("v_xor_b32 v24, v24, v23")
    a("v_and_b32 v25, 1, v21")
    a("v_lshlrev_b32 v25, 4, v25")
    a("v_lshl_add_u32 v25, v24, 5, v25")
    a("v_add_u32 v%d, v22, v25" % V_D2)
    a("v_bfe_u32 v22, v21, 4, 1")
    a("v_bfe_u32 v23, v21, 5, 1")
    a("v_bfe_u32 v24, v21, 2, 2")
    a("v_and_b32 v25, 3, v21")
    a("v_lshl_add_u32 v26, v23, 2, v24")
    a("v_lshlrev_b32 v26, 7, v26")
    a("v_lshl_add_u32 v26, v25, 3, v26")
    a("v_and_b32 v27, 2, v24")
    a("s_lshl_b32 s%d, s%d, 1" % (S_T0, S_FH))
    a("v_or_b32 v28, s%d, v22" % S_T0)
    a("v_xor_b32 v28, v28, v27")
    a("v_lshl_add_u32 v%d, v28, 5, v26" % V_TR2[0])
    for b in range(1, 4):
        a("v_add_u32 v%d, %d, v%d" % (V_TR2[b], 36864 * b, V_TR2[0]))
    a("s_lshl_b32 s%d, s%d, 4" % (S_T0, S_J))
    a("s_add_u32 s%d, s%d, s%d" % (S_T0, S_T0, S_M))
    a("s_lshl_b32 s%d, s%d, 2" % (S_T0, S_T0))
    a("s_lshl_b32 s%d, s%d, 1" % (S_T1, S_TM))
    a("s_add_u32 s%d, s%d, s%d" % (S_T0, S_T0, S_T1))
    a("s_mul_i32 s%d, s%d, %d" % (S_PB, S_T0, 18 * 2048))
    a("s_lshl_b32 s%d, s%d, 11" % (S_T1, S_FH))
    a("s_add_u32 s%d, s%d, s%d" % (S_PB, S_PB, S_T1))

    def dma_slab(g):
        stg, s_ = divmod(g, 18)
        if stg > 4: return
        slot = g % 9
        v0_, v1_ = (V_DH0, V_DH1) if stg == 4 else (V_DM0, V_DM1)
        st("s_add_u32 s%d, s%d, %d" % (S_OFF, S_COL[stg], s_ * 32 * 9216))
        st("s_add_u32 m0, s%d, %d" % (S_LDSW, RING + slot * 8192))
        st("s_nop 0")
        st.vmem("buffer_load_dwordx4 v%d, s[%d:%d], s%d offen lds" % (v0_, S_W, S_W + 3, S_OFF), ("W", g))
        st("s_add_u32 m0, s%d, %d" % (S_LDSW, RING + slot * 8192 + 1024))
        st("s_nop 0")
        st.vmem("buffer_load_dwordx4 v%d, s[%d:%d], s%d offen lds" % (v1_, S_W, S_W + 3, S_OFF), ("W", g))
    def xload(ks):
        for t in range(2):
            off = (t * 36 + ks) * 1024
            st("s_add_u32 s%d, s%d, %d" % (S_OFF, S_T1, off))
            st.vmem("buffer_load_dwordx4 %s, v%d, s[%d:%d], s%d offen" % (xreg(ks, t), V_LANE16, S_X, S_X + 3, S_OFF), ("X", ks))
    a("s_lshl_b32 s%d, s%d, 2" % (S_T0, S_M))
    a("s_lshl_b32 s%d, s%d, 1" % (S_T1, S_TM))
    a("s_add_u32 s%d, s%d, s%d" % (S_T0, S_T0, S_T1))
    a("s_mul_i32 s%d, s%d, 36864" % (S_T1, S_T0))
    for s_ in range(8):
        dma_slab(s_)
        xload(2 * s_); xload(2 * s_ + 1)
    for ks in range(16, 36):
        xload(ks)
    stamp(a, 1, 1)

    def trread(g, kk, half):
        slot = g % 9
        gks = g * 2 + kk
        buf = gks % 3
        out = []
        ncs = 1 if half else 2
        for c in range(ncs):
            for q in range(2):
                off = slot * 8192 + kk * 2048 + q * 512
                hi = off >= 32768
                if half: areg = V_TRH[1 if hi else 0]
                else: areg = V_TR[c + (2 if hi else 0)]
                if hi: off -= 32768
                r = AF + (buf * 2 + c) * 4 + q * 2
                out.append(("ds_read_b64_tr_b16 v[%d:%d], v%d offset:%d" % (r, r + 1, areg, off), ("A", gks)))
        return out

    st.wait(vm=[("W", 0)])
    st("s_barrier")
    for kk in range(2):
        for txt, tag in trread(0, kk, False): st.lds(txt, tag)

    NG = 5 * 18
    def stage(stg, accset, gelu_q):
        half = stg == 4
        ncs = 1 if half else 2
        gq = list(gelu_q)
        nm_total = 36 * ncs * 2
        ngaps = nm_total - 4
        per = len(gq) / float(ngaps) if ngaps else 0
        acc_q = 0.0
        emitted = 0
        mi = 0
        for ks in range(36):
            g = stg * 18 + ks // 2
            gks = stg * 36 + ks
            buf = gks % 3
            pend = []
            g2, kk2 = divmod(gks + 2, 2)
            pre = []
            if ks % 2 == 0:
                if g + 1 < NG:
                    pre.append(("bar", g + 1))
                pre_dma = g + 8 if g + 8 < NG else None
            else:
                pre_dma = None
            reads = trread(g2, kk2, g2 // 18 == 4) if g2 < NG else []
            st.wait(vm=[("X", ks)] if stg == 0 else [], lg=[("A", gks)])
            k = 0
            for c in range(ncs):
                for t in range(2):
                    ti = c * 2 + t
                    d = ACC[accset] + 16 * ti
                    ar = AF + (buf * 2 + c) * 4
                    src = "0" if ks == 0 else "v[%d:%d]" % (d, d + 15)
                    st("v_mfma_f32_32x32x16_bf16 v[%d:%d], v[%d:%d], %s, %s" % (d, d + 15, ar, ar + 3, xreg(ks, t), src))
                    mi += 1
                    if k == 0:
                        for p in pre:
                            st.wait(vm=[("W", p[1])])
                            st("s_barrier")
                    nrd = len(reads) // (ncs * 2) + (1 if len(reads) % (ncs * 2) > k else 0)
                    lo = k * len(reads) // (ncs * 2); hi_ = (k + 1) * len(reads) // (ncs * 2)
                    for txt, tag in reads[lo:hi_]: st.lds(txt, tag)
                    if k == ncs * 2 - 1 and pre_dma is not None:
                        dma_slab(pre_dma)
                    if mi > 4:
                        acc_q += per
                        while gq and emitted < acc_q:
                            it = gq.pop(0); emitted += 1
                            if isinstance(it, tuple): st.lds(it[1], it[2])
                            else: st(it)
                    k += 1
        for it in gq:
            if isinstance(it, tuple): st.lds(it[1], it[2])
            else: st(it)

    def full_tiles(stg):
        return [(c * 2 + t, (t * 18 + c) * 1024 + stg * 4096, V_H) for c in range(2) for t in range(2)]
    stage(0, 0, [])
    stamp(a, 1, 2)
    stage(1, 1, gelu_items(ACC[0], full_tiles(0), None))
    stage(2, 0, gelu_items(ACC[1], full_tiles(1), None))
    stage(3, 1, gelu_items(ACC[0], full_tiles(2), None))
    stage(4, 0, gelu_items(ACC[1], full_tiles(3), None))
    stamp(a, 1, 3)
    def dma_wd(b):
        buf = b % 4
        for i in range(9):
            if i < 8: st("s_add_u32 s%d, s%d, %d" % (S_T0, S_FB, 32 * i))
            else: st("s_mov_b32 s%d, s%d" % (S_T0, S_FHB))
            st("s_mul_i32 s%d, s%d, 1152" % (S_OFF, S_T0))
            st("s_add_u32 s%d, s%d, %d" % (S_OFF, S_OFF, b * 128))
            st("s_add_u32 m0, s%d, %d" % (S_LDS2, buf * 36864 + i * 4096))
            st("s_nop 0")
            st.vmem("buffer_load_dwordx4 v%d, s[%d:%d], s%d offen lds" % (V_D2, S_D, S_D + 3, S_OFF), ("D", b))
    st.wait_all(vm=False, lg=True)
    st("s_barrier")
    dma_wd(0); dma_wd(1)
    for it in gelu_items(ACC[0], [(t, t * 18 * 1024, V_HH) for t in range(2)], None):
        if isinstance(it, tuple): st.lds(it[1], it[2])
        else: st(it)
    st.wait_all(vm=False, lg=True)
    st("s_barrier")
    for t in range(2):
        for ci in range(18):
            i = t * 18 + ci
            st.lds("ds_read_b128 a[%d:%d], v%d offset:%d" % (4 * i, 4 * i + 3, V_HR, i * 1024), ("H", i))
    st.wait_all(vm=False, lg=True)
    st("s_barrier")
    dma_wd(2)
    stamp(a, 1, 4)
    A2 = 176
    ACC2 = [16, 48]
    PK = 200
    def trread2(b, ci):
        gk = b * 18 + ci
        r = A2 + (gk % 4) * 4
        return [("ds_read_b64_tr_b16 v[%d:%d], v%d offset:%d" % (r + 2 * q, r + 2 * q + 1, V_TR2[b % 4], ci * 2048 + q * 1024), ("A2", gk)) for q in range(2)]
    def epi_items(b):
        items = []
        acc = ACC2[b % 2]
        for t in range(2):
            pk = PK + 8 * t
            for d in range(8):
                items.append("v_cvt_pk_bf16_f32 v%d, v%d, v%d" % (pk + d, acc + 16 * t + 2 * d, acc + 16 * t + 2 * d + 1))
            items.append("s_add_u32 s%d, s%d, %d" % (S_OFF, S_PB, t * 18 * 2048 + b * 2 * 2048))
            for q in range(2):
                items.append(("st", "buffer_store_dwordx4 v[%d:%d], v%d, s[%d:%d], s%d offen offset:%d" % (pk + 4 * q, pk + 4 * q + 3, V_LANE16, S_P, S_P + 3, S_OFF, q * 1024), ("P", b)))
        return items
    st.wait(vm=[("D", 0)])
    st("s_barrier")
    for ci in range(3):
        for txt, tag in trread2(0, ci): st.lds(txt, tag)
    for b in range(9):
        eq = epi_items(b - 1) if b > 0 else []
        mi = 0
        for ci in range(18):
            gk = b * 18 + ci
            nb, nci = divmod(gk + 3, 18)
            reads = trread2(nb, nci) if nb < 9 else []
            st.wait(lg=[("A2", gk)])
            for t in range(2):
                d = ACC2[b % 2] + 16 * t
                ar = A2 + (gk % 4) * 4
                hr = (t * 18 + ci) * 4
                src = "0" if ci == 0 else "v[%d:%d]" % (d, d + 15)
                st("v_mfma_f32_32x32x16_bf16 v[%d:%d], v[%d:%d], a[%d:%d], %s" % (d, d + 15, ar, ar + 3, hr, hr + 3, src))
                mi += 1
                if t == 0 and ci == 15 and b + 1 < 9:
                    st.wait(vm=[("D", b + 1)])
                    st("s_barrier")
                if t == 0:
                    for txt, tag in reads[:1]: st.lds(txt, tag)
                else:
                    for txt, tag in reads[1:]: st.lds(txt, tag)
                if t == 1 and ci == 15 and b + 3 < 9:
                    pass
                if mi > 4 and eq:
                    it = eq.pop(0)
                    if isinstance(it, tuple): st.vmem(it[1], it[2])
                    else: st(it)
            if ci == 16 and b + 3 < 9:
                dma_wd(b + 3)
        assert not eq
    st("s_nop 15"); st("s_nop 3")
    for it in epi_items(8):
        if isinstance(it, tuple): st.vmem(it[1], it[2])
        else: st(it)
    stamp(a, 1, 5)
    a.label("L_ffn_done")
    a("s_endpgm")

def gemm(a, name, nwg, gi, wi, wj, ti, tj, segs, npm, nqm, epi):
    kernel_begin(a, name)
    done = "L_%s_done" % name
    a("s_cmp_ge_u32 s2, %d" % nwg); a("s_cbranch_scc1 %s" % done)
    load_ptrs(a)
    a("s_mov_b32 s28, %d" % (-(-(1 << 32) // gi)))
    a("s_mul_hi_u32 s29, s2, s28")
    a("s_mul_i32 s30, s29, %d" % gi)
    a("s_sub_u32 s30, s2, s30")
    a("v_lshrrev_b32 v1, 6, v0")
    a("v_and_b32 v2, 31, v0")
    a("v_bfe_u32 v3, v0, 5, 1")
    lw = int(math.log2(wi))
    a("v_and_b32 v4, %d, v1" % (wi - 1))
    a("v_lshrrev_b32 v5, %d, v1" % lw)
    a("s_mul_i32 s31, s30, %d" % (wi * ti * 32))
    a("v_mul_u32_u24 v4, %d, v4" % (ti * 32))
    a("v_add_u32 v4, s31, v4")
    a("s_mul_i32 s31, s29, %d" % (wj * tj * 32))
    a("v_mul_u32_u24 v5, %d, v5" % (tj * 32))
    a("v_add_u32 v5, s31, v5")
    nm = max(npm, nqm)
    nacc = nm * ti * tj
    for r in range(nacc * 16):
        a("v_accvgpr_write_b32 a%d, 0" % r)
    PF = 16
    for si, (Ps, ldp, Qs, ldq, K, setup) in enumerate(segs):
        setup(a)
        a("v_add_u32 v6, v4, v2")
        a("s_mov_b32 s31, %d" % ldp)
        a("v_mul_lo_u32 v6, v6, s31")
        a("v_lshl_add_u32 v6, v3, 4, v6")
        a("v_add_u32 v7, v5, v2")
        a("s_mov_b32 s31, %d" % ldq)
        a("v_mul_lo_u32 v7, v7, s31")
        a("v_lshl_add_u32 v7, v3, 4, v7")
        for t in range(1, ti):
            a("v_add_u32 v%d, %d, v6" % (8 + t - 1, t * 32 * ldp))
        for t in range(1, tj):
            a("v_add_u32 v%d, %d, v7" % (12 + t - 1, t * 32 * ldq))
        a("s_mov_b32 s60, 0")
        lab = "L_%s_k%d" % (name, si)
        a.label(lab)
        r = PF
        pf = {}; qf = {}
        for m in range(len(Ps)):
            for t in range(ti):
                va = 6 if t == 0 else 8 + t - 1
                a("buffer_load_dwordx4 v[%d:%d], v%d, s[%d:%d], s60 offen" % (r, r + 3, va, Ps[m], Ps[m] + 3))
                pf[(m, t)] = r; r += 4
        for m in range(len(Qs)):
            for t in range(tj):
                va = 7 if t == 0 else 12 + t - 1
                a("buffer_load_dwordx4 v[%d:%d], v%d, s[%d:%d], s60 offen" % (r, r + 3, va, Qs[m], Qs[m] + 3))
                qf[(m, t)] = r; r += 4
        a("s_waitcnt vmcnt(0)")
        for m in range(nm):
            for x in range(ti):
                for y in range(tj):
                    acc = ((m * ti + x) * tj + y) * 16
                    p = pf[(m if len(Ps) > 1 else 0, x)]; q = qf[(m if len(Qs) > 1 else 0, y)]
                    a("v_mfma_f32_32x32x16_bf16 a[%d:%d], v[%d:%d], v[%d:%d], a[%d:%d]" % (acc, acc + 15, p, p + 3, q, q + 3, acc, acc + 15))
        a("s_add_u32 s60, s60, 32")
        a("s_cmp_lt_u32 s60, %d" % (K * 2))
        a("s_cbranch_scc1 %s" % lab)
    a("s_nop 15"); a("s_nop 7")
    epi(a)
    a.label(done)
    a("s_endpgm")

def store_tile_T(a, vals, srdo, ldo, x, y, f32=False):
    esz = 4 if f32 else 2
    a("v_add_u32 v60, v5, v2")
    if y: a("v_add_u32 v60, %d, v60" % (y * 32))
    a("s_mov_b32 s31, %d" % ldo)
    a("v_mul_lo_u32 v60, v60, s31")
    a("v_lshl_add_u32 v61, v3, 2, v4")
    if x: a("v_add_u32 v61, %d, v61" % (x * 32))
    a("v_lshl_add_u32 v60, v61, %d, v60" % (2 if f32 else 1))
    for g in range(4):
        if f32:
            a("buffer_store_dwordx4 v[%d:%d], v60, s[%d:%d], 0 offen offset:%d" % (vals[4 * g], vals[4 * g] + 3, srdo, srdo + 3, g * 32))
        else:
            a("v_cvt_pk_bf16_f32 v62, v%d, v%d" % (vals[4 * g], vals[4 * g + 1]))
            a("v_cvt_pk_bf16_f32 v63, v%d, v%d" % (vals[4 * g + 2], vals[4 * g + 3]))
            a("buffer_store_dwordx2 v[62:63], v60, s[%d:%d], 0 offen offset:%d" % (srdo, srdo + 3, g * 16))
        a("s_nop 1")

def k_naive_a(a):
    def setup_a1(a):
        srd(a, 32, 26, S * D * 2, WS_XN); srd(a, 36, 10, D * D * 2); srd(a, 40, 12, D * D * 2)
        srd(a, 44, 26, S * D * 2, WS_AT); srd(a, 48, 26, S * D * 2, WS_NBT)
    def epi_a1(a):
        for m in range(2):
            for x in range(2):
                ac = ((m * 2 + x) * 1 + 0) * 16
                for r in range(16):
                    a("v_accvgpr_read_b32 v%d, a%d" % (64 + r, ac + r))
                if m == 1:
                    for r in range(16):
                        a("v_sub_f32 v%d, 0, v%d" % (64 + r, 64 + r))
                store_tile_T(a, [64 + r for r in range(16)], 44 + 4 * m, S * 2, x, 0)
    gemm(a, "a1_kernel", 144, 8, 4, 1, 2, 1, [([32], D * 2, [36, 40], D * 2, D, setup_a1)], 1, 2, epi_a1)
    def s1(a):
        srd(a, 32, 6, S * S * 2); srd(a, 36, 26, S * D * 2, WS_AT); srd(a, 44, 26, S * D * 4, WS_YT)
    def s2(a):
        srd(a, 32, 8, S * S * 2); srd(a, 36, 26, S * D * 2, WS_NBT)
    def epi(a):
        for r in range(16):
            a("v_accvgpr_read_b32 v%d, a%d" % (64 + r, r))
        store_tile_T(a, [64 + r for r in range(16)], 44, S * 4, 0, 0, f32=True)
    gemm(a, "a2_kernel", 288, 32, 2, 2, 1, 1, [([32], S * 2, [36], S * 2, S, s1), ([32], S * 2, [36], S * 2, S, s2)], 1, 1, epi)

def k_red(a):
    name = "red_kernel"
    kernel_begin(a, name)
    a("s_cmp_ge_u32 s2, 288"); a("s_cbranch_scc1 L_red_done")
    load_ptrs(a)
    stamp(a, 2, 0)
    srd(a, 32, 26, PART_BYTES, WS_PART)
    srd(a, 36, 26, S * D * 4, WS_YT)
    srd(a, 40, 4, S * D * 2)
    srd(a, 44, 22, S * D * 2)
    a("v_lshrrev_b32 v1, 6, v0")
    a("v_and_b32 v2, 63, v0")
    a("v_readfirstlane_b32 s48, v1")
    a("s_lshl_b32 s49, s2, 2")
    a("s_add_u32 s49, s49, s48")
    a("s_mov_b32 s50, %d" % (-(-(1 << 32) // 18)))
    a("s_mul_hi_u32 s51, s49, s50")
    a("s_mul_i32 s52, s51, 18")
    a("s_sub_u32 s52, s49, s52")
    a("v_lshlrev_b32 v3, 4, v2")
    a("s_lshl_b32 s53, s49, 11")
    for j in range(16):
        for q in range(2):
            r = 32 + (j * 2 + q) * 4
            a("buffer_load_dwordx4 v[%d:%d], v3, s[32:35], s53 offen offset:%d" % (r, r + 3, q * 1024))
        a("s_add_u32 s53, s53, %d" % (64 * 18 * 2048))
    a("v_and_b32 v4, 31, v2")
    a("v_lshrrev_b32 v5, 5, v2")
    a("v_lshlrev_b32 v6, 15, v5")
    a("v_lshl_add_u32 v6, v4, 2, v6")
    a("s_lshl_b32 s54, s52, 18")
    a("s_lshl_b32 s55, s51, 7")
    a("s_add_u32 s54, s54, s55")
    for r in range(16):
        a("s_add_u32 s55, s54, %d" % ((8 * (r >> 2) + (r & 3)) * 8192))
        a("buffer_load_dword v%d, v6, s[36:39], s55 offen" % (160 + r))
    a("s_lshl_b32 s55, s51, 5")
    a("v_add_u32 v7, s55, v4")
    a("s_movk_i32 s56, 1152")
    a("v_mul_lo_u32 v7, v7, s56")
    a("s_lshl_b32 s57, s52, 6")
    a("v_add_u32 v7, s57, v7")
    a("v_lshl_add_u32 v8, v5, 3, v7")
    for g in range(4):
        a("buffer_load_dwordx2 v[%d:%d], v8, s[40:43], 0 offen offset:%d" % (176 + 2 * g, 177 + 2 * g, g * 16))
    a("v_lshl_add_u32 v9, v5, 4, v7")
    n = 16 * 2 + 16 + 4
    first = True
    for j in range(16):
        a("s_waitcnt vmcnt(%d)" % (n - 2 * (j + 1)))
        for q in range(2):
            for d in range(4):
                src = 32 + (j * 2 + q) * 4 + d
                e = 8 * q + 2 * d
                if j == 0:
                    a("v_lshlrev_b32 v%d, 16, v%d" % (16 + e, src))
                    a("v_and_b32 v%d, 0xffff0000, v%d" % (17 + e, src))
                else:
                    a("v_lshlrev_b32 v10, 16, v%d" % src)
                    a("v_and_b32 v11, 0xffff0000, v%d" % src)
                    a("v_add_f32 v%d, v%d, v10" % (16 + e, 16 + e))
                    a("v_add_f32 v%d, v%d, v11" % (17 + e, 17 + e))
    a("s_waitcnt vmcnt(0)")
    for r in range(16):
        a("v_add_f32 v%d, v%d, v%d" % (16 + r, 16 + r, 160 + r))
    for g in range(4):
        for h in range(2):
            src = 176 + 2 * g + h
            e = 4 * g + 2 * h
            a("v_lshlrev_b32 v10, 16, v%d" % src)
            a("v_and_b32 v11, 0xffff0000, v%d" % src)
            a("v_add_f32 v%d, v%d, v10" % (16 + e, 16 + e))
            a("v_add_f32 v%d, v%d, v11" % (17 + e, 17 + e))
    for d in range(8):
        a("v_cvt_pk_bf16_f32 v%d, v%d, v%d" % (32 + d, 16 + 2 * d, 17 + 2 * d))
    a("s_nop 1")
    a("v_permlane32_swap_b32 v32, v34")
    a("v_permlane32_swap_b32 v33, v35")
    a("v_permlane32_swap_b32 v36, v38")
    a("v_permlane32_swap_b32 v37, v39")
    a("s_nop 1")
    a("buffer_store_dwordx4 v[32:35], v9, s[44:47], 0 offen")
    a("buffer_store_dwordx4 v[36:39], v9, s[44:47], 0 offen offset:32")
    stamp(a, 2, 1)
    a.label("L_red_done")
    a("s_endpgm")

def main():
    global STAMPS
    out = sys.argv[1]
    STAMPS = "stamps" in sys.argv[2:]
    a = Asm()
    a.raw(HEADER.rstrip("\n"))
    a.raw("; @launch kernel=ln_kernel grid=(128,1,1) block=(256,1,1) lds=0")
    a.raw("; @launch kernel=a1_kernel grid=(144,1,1) block=(256,1,1) lds=0")
    a.raw("; @launch kernel=a2_kernel grid=(288,1,1) block=(256,1,1) lds=0")
    a.raw("; @launch kernel=ffn_kernel grid=(256,1,1) block=(256,1,1) lds=147456")
    a.raw("; @launch kernel=red_kernel grid=(288,1,1) block=(256,1,1) lds=0")
    a.raw('.amdgcn_target "amdgcn-amd-amdhsa--gfx950"')
    k_ln(a); k_naive_a(a); k_ffn(a); k_red(a)
    kernel_desc(a, "ln_kernel", 256 if STAMPS else 128, 96, 256 if STAMPS else 128)
    kernel_desc(a, "a1_kernel", 256, 96, 128)
    kernel_desc(a, "a2_kernel", 256, 96, 128)
    kernel_desc(a, "ffn_kernel", 512, 96, 256)
    kernel_desc(a, "red_kernel", 256, 96, 256)
    open(out, "w").write(a.text())
if __name__ == "__main__":
    main()
```

```python
import sys, math
from asmgen import *
from sched import *

S, D, F = 2048, 576, 4608
STAMPS = False
PERT = 0.0
ABL = set()
PF_K2 = 0
PF_K1 = 0
WS_XNF   = 0
WS_XN    = 4 << 20
WS_AT    = 8 << 20
WS_NBT   = 12 << 20
WS_YT    = 16 << 20
WS_PART  = 24 << 20
WS_STAMP = 128 << 20
PART_BYTES = 16 * S * D * 2

def srd(a, sd, sp, nbytes, off=0):
    if off:
        a("s_add_u32 s%d, s%d, %d" % (sd, sp, off))
        a("s_addc_u32 s%d, s%d, 0" % (sd + 1, sp + 1))
    else:
        a("s_mov_b32 s%d, s%d" % (sd, sp))
        a("s_mov_b32 s%d, s%d" % (sd + 1, sp + 1))
    a("s_mov_b32 s%d, %d" % (sd + 2, nbytes))
    a("s_mov_b32 s%d, 0x00020000" % (sd + 3))

def load_ptrs(a):
    a("s_load_dwordx8 s[4:11], s[0:1], 0")
    a("s_load_dwordx2 s[12:13], s[0:1], 32")
    a("s_load_dwordx8 s[16:23], s[0:1], 48")
    a("s_load_dwordx4 s[24:27], s[0:1], 80")
    a("s_waitcnt lgkmcnt(0)")

def stamp(a, kidx, slot, sreg=88):
    if not STAMPS: return
    lab = a.newlabel("L_st")
    a("s_memrealtime s[%d:%d]" % (sreg, sreg + 1))
    a("s_memtime s[%d:%d]" % (sreg + 6, sreg + 7))
    a("s_waitcnt lgkmcnt(0)")
    a("v_cmp_eq_u32 vcc, 0, v0")
    a("s_and_saveexec_b64 s[%d:%d], vcc" % (sreg + 2, sreg + 3))
    a("s_cbranch_execz %s" % lab)
    a("s_lshl_b32 s%d, s2, 7" % (sreg + 4))
    a("s_add_u32 s%d, s%d, %d" % (sreg + 4, sreg + 4, WS_STAMP + kidx * 65536 + slot * 8))
    a("s_add_u32 s%d, s26, s%d" % (sreg + 4, sreg + 4))
    a("s_addc_u32 s%d, s27, 0" % (sreg + 5))
    a("v_mov_b32 v252, s%d" % sreg); a("v_mov_b32 v253, s%d" % (sreg + 1))
    a("v_mov_b32 v251, 0")
    a("global_store_dwordx2 v251, v[252:253], s[%d:%d]" % (sreg + 4, sreg + 5))
    a("v_mov_b32 v252, s%d" % (sreg + 6)); a("v_mov_b32 v253, s%d" % (sreg + 7))
    a("s_nop 1")
    a("global_store_dwordx2 v251, v[252:253], s[%d:%d] offset:64" % (sreg + 4, sreg + 5))
    a.label(lab)
    a("s_mov_b64 exec, s[%d:%d]" % (sreg + 2, sreg + 3))


def prefetch_w(a, sM, sJ, sW, vl, sector, sa, sb, sc_, srdg, srdu, srdd, vdst):
    a("v_mul_u32_u24 v40, 52, v%d" % vl)
    a("v_lshrrev_b32 v40, 8, v40")
    a("v_mul_u32_u24 v41, 5, v40")
    a("v_sub_u32 v41, v%d, v41" % vl)
    a("s_lshl_b32 s%d, s%d, 2" % (sa, sM))
    a("s_add_u32 s%d, s%d, s%d" % (sa, sa, sW))
    a("s_mul_i32 s%d, s%d, 9" % (sa, sa))
    a("v_add_u32 v42, s%d, v40" % sa)
    a("s_movk_i32 s%d, 9216" % sb)
    a("v_mul_lo_u32 v42, v42, s%d" % sb)
    a("v_lshl_add_u32 v42, v41, 7, v42")
    a("v_cmp_gt_u32 vcc, 9, v40")
    a("v_mov_b32 v43, 0x7ff00000")
    a("s_nop 0")
    a("v_cndmask_b32 v42, v43, v42, vcc")
    a("s_mul_i32 s%d, s%d, 288" % (sa, sJ))
    a("s_and_b32 s%d, s%d, 1" % (sb, sJ))
    a("s_lshl_b32 s%d, s%d, 5" % (sb, sb))
    a("s_sub_u32 s%d, s%d, s%d" % (sa, sa, sb))
    a("s_lshl_b32 s%d, s%d, 1" % (sa, sa))
    for srd_ in (srdg, srdu):
        a("buffer_load_dword v%d, v42, s[%d:%d], s%d offen" % (vdst, srd_, srd_ + 3, sa))
        if sector: a("buffer_load_dword v%d, v42, s[%d:%d], s%d offen offset:64" % (vdst, srd_, srd_ + 3, sa))
    a("v_mul_u32_u24 v40, 57, v0")
    a("v_lshrrev_b32 v40, 9, v40")
    a("v_mul_u32_u24 v41, 9, v40")
    a("v_sub_u32 v41, v0, v41")
    a("s_mul_i32 s%d, s%d, 288" % (sa, sJ))
    a("s_mul_i32 s%d, s%d, 18" % (sb, sM))
    a("s_add_u32 s%d, s%d, s%d" % (sa, sa, sb))
    a("v_add_u32 v42, s%d, v40" % sa)
    a("s_movk_i32 s%d, 1152" % sb)
    a("v_mul_lo_u32 v42, v42, s%d" % sb)
    a("v_lshl_add_u32 v42, v41, 7, v42")
    a("v_cmp_gt_u32 vcc, 18, v40")
    a("s_nop 1")
    a("v_cndmask_b32 v42, v43, v42, vcc")
    a("buffer_load_dword v%d, v42, s[%d:%d], 0 offen" % (vdst, srdd, srdd + 3))
    if sector: a("buffer_load_dword v%d, v42, s[%d:%d], 0 offen offset:64" % (vdst, srdd, srdd + 3))

def k_ln(a):
    name = "ln_kernel"
    kernel_begin(a, name)
    a("s_cmp_ge_u32 s2, %d" % (256 if PF_K1 else 128)); a("s_cbranch_scc1 L_ln_done")
    load_ptrs(a)
    stamp(a, 0, 0)
    if PF_K1:
        a("v_lshrrev_b32 v20, 6, v0")
        a("v_and_b32 v21, 63, v0")
        a("v_readfirstlane_b32 s48, v20")
        a("s_and_b32 s62, s2, 7"); a("s_lshr_b32 s63, s2, 3"); a("s_lshr_b32 s51, s63, 1"); a("s_and_b32 s63, s63, 1")
        a("s_lshl_b32 s52, s62, 1"); a("s_add_u32 s52, s52, s63")
        srd(a, 68, 16, D * F * 2); srd(a, 72, 18, D * F * 2); srd(a, 76, 20, D * F * 2)
        prefetch_w(a, 51, 52, 48, 21, PF_K1 == 2, 62, 63, 61, 68, 72, 76, 100)
        a("s_cmp_ge_u32 s2, 128"); a("s_cbranch_scc1 L_ln_done")
    srd(a, 32, 4, S * D * 2)
    srd(a, 36, 26, S * D * 2, WS_XNF)
    srd(a, 40, 26, S * D * 2, WS_XN)
    a("v_lshrrev_b32 v1, 4, v0")
    a("v_and_b32 v2, 15, v0")
    a("s_lshl_b32 s3, s2, 4")
    a("v_add_u32 v1, s3, v1")
    a("s_movk_i32 s28, 1152")
    a("v_mul_lo_u32 v3, v1, s28")
    a("v_lshl_add_u32 v3, v2, 3, v3")
    for i in range(9):
        a("buffer_load_dwordx2 v[%d:%d], v3, s[32:35], 0 offen offset:%d" % (8 + 2 * i, 9 + 2 * i, i * 128))
    a("v_lshrrev_b32 v4, 5, v1")
    a("s_mov_b32 s29, 36864")
    a("v_mul_lo_u32 v4, v4, s29")
    a("v_lshrrev_b32 v5, 2, v2")
    a("v_lshl_add_u32 v4, v5, 10, v4")
    a("v_bfe_u32 v5, v2, 1, 1")
    a("v_lshl_add_u32 v4, v5, 9, v4")
    a("v_and_b32 v5, 31, v1")
    a("v_lshl_add_u32 v4, v5, 4, v4")
    a("v_and_b32 v5, 1, v2")
    a("v_lshl_add_u32 v4, v5, 3, v4")
    a("s_waitcnt vmcnt(0)")
    for i in range(18):
        a("v_lshlrev_b32 v%d, 16, v%d" % (32 + 2 * i, 8 + i))
        a("v_and_b32 v%d, 0xffff0000, v%d" % (33 + 2 * i, 8 + i))
    a("v_add_f32 v70, v32, v33")
    a("v_add_f32 v71, v34, v35")
    for i in range(4, 36, 2):
        a("v_add_f32 v70, v70, v%d" % (32 + i))
        a("v_add_f32 v71, v71, v%d" % (33 + i))
    a("v_add_f32 v70, v70, v71")
    def row_sum(r):
        for sh in (8, 4, 2, 1):
            a("s_nop 1")
            a("v_add_f32_dpp v%d, v%d, v%d row_ror:%d row_mask:0xf bank_mask:0xf" % (r, r, r, sh))
    row_sum(70)
    a("v_mul_f32 v70, 0x%08x, v70" % f2u(1.0 / 576))
    a("v_mov_b32 v72, 0"); a("v_mov_b32 v73, 0")
    for i in range(0, 36, 2):
        a("v_sub_f32 v74, v%d, v70" % (32 + i))
        a("v_sub_f32 v75, v%d, v70" % (33 + i))
        a("v_fmac_f32 v72, v74, v74")
        a("v_fmac_f32 v73, v75, v75")
    a("v_add_f32 v72, v72, v73")
    row_sum(72)
    a("v_mul_f32 v72, 0x%08x, v72" % f2u(1.0 / 576))
    a("v_cvt_pk_bf16_f32 v76, v70, v72")
    a("v_lshlrev_b32 v70, 16, v76")
    a("v_and_b32 v72, 0xffff0000, v76")
    a("v_add_f32 v72, 0x%08x, v72" % f2u(1e-5))
    a("v_cvt_pk_bf16_f32 v76, v72, v72")
    a("v_lshlrev_b32 v72, 16, v76")
    a("v_sqrt_f32 v72, v72")
    a("s_nop 0")
    a("v_cvt_pk_bf16_f32 v76, v72, v72")
    a("v_lshlrev_b32 v72, 16, v76")
    a("v_rcp_f32 v72, v72")
    a("s_nop 0")
    for i in range(18):
        x0, x1 = 32 + 2 * i, 33 + 2 * i
        a("v_sub_f32 v%d, v%d, v70" % (x0, x0))
        a("v_sub_f32 v%d, v%d, v70" % (x1, x1))
        a("v_cvt_pk_bf16_f32 v76, v%d, v%d" % (x0, x1))
        a("v_lshlrev_b32 v%d, 16, v76" % x0)
        a("v_and_b32 v%d, 0xffff0000, v76" % x1)
        a("v_mul_f32 v%d, v%d, v72" % (x0, x0))
        a("v_mul_f32 v%d, v%d, v72" % (x1, x1))
        a("v_cvt_pk_bf16_f32 v%d, v%d, v%d" % (8 + i, x0, x1))
    for i in range(9):
        a("s_movk_i32 s30, %d" % (i * 4096) if i * 4096 < 32768 else "s_mov_b32 s30, %d" % (i * 4096))
        a("buffer_store_dwordx2 v[%d:%d], v4, s[36:39], s30 offen" % (8 + 2 * i, 9 + 2 * i))
        a("buffer_store_dwordx2 v[%d:%d], v3, s[40:43], 0 offen offset:%d" % (8 + 2 * i, 9 + 2 * i, i * 128))
    stamp(a, 0, 1)
    a.label("L_ln_done")
    a("s_endpgm")

RING = 0
HBASE = 73728
ACC = [16, 80]
XOV = 144
AF = 176
GT = 200
HP = 216
V_LANE16 = 1
V_DM0, V_DM1 = 2, 3
V_DH0, V_DH1 = 4, 5
V_TR = [6, 7, 8, 9]
V_TRH = [10, 11]
V_H = 12
V_HH = 13
V_C0 = 14
V_TMP = 15
V_D2 = 224
V_TR2 = [225, 226, 227, 228]
V_HR = 229
V_PF = 230
S_W = 32; S_X = 36; S_D = 40; S_P = 44
S_WAVE, S_TM, S_FH, S_M, S_J = 48, 49, 50, 51, 52
S_FB, S_FHB = 53, 54
S_LDSW = 55
S_COL = [56, 57, 58, 59, 60]
S_OFF = 61; S_T0 = 62; S_T1 = 63; S_C1 = 64
S_PB = 65
S_LDS2 = 66

def xreg(ks, t):
    i = ks * 2 + t
    if i < 64: return "a[%d:%d]" % (4 * i, 4 * i + 3)
    r = XOV + 4 * (i - 64)
    return "v[%d:%d]" % (r, r + 3)

def gelu_items(accbase, tiles, hdst):
    items = []
    c1 = "s%d" % S_C1
    for n, (ti, off, areg) in enumerate(tiles):
        base = accbase + 16 * ti
        hp = HP + 4 * (n & 1)
        for pr in range(4):
            g0, g1 = base + 2 * pr, base + 2 * pr + 1
            u0, u1 = g0 + 8, g1 + 8
            t0, t1 = GT + 4 * (pr & 1), GT + 4 * (pr & 1) + 1
            m0, m1 = t0 + 2, t0 + 3
            items += [
                "v_mul_f32 v%d, v%d, v%d" % (t0, g0, g0),
                "v_mul_f32 v%d, v%d, v%d" % (t1, g1, g1),
                "v_fma_f32 v%d, v%d, %s, v%d" % (t0, t0, c1, V_C0),
                "v_fma_f32 v%d, v%d, %s, v%d" % (t1, t1, c1, V_C0),
                "v_mul_f32 v%d, v%d, v%d" % (t0, t0, g0),
                "v_mul_f32 v%d, v%d, v%d" % (t1, t1, g1),
                "v_exp_f32 v%d, v%d" % (t0, t0),
                "v_exp_f32 v%d, v%d" % (t1, t1),
                "v_mul_f32 v%d, v%d, v%d" % (m0, g0, u0),
                "v_mul_f32 v%d, v%d, v%d" % (m1, g1, u1),
                "v_add_f32 v%d, 1.0, v%d" % (t0, t0),
                "v_add_f32 v%d, 1.0, v%d" % (t1, t1),
                "v_rcp_f32 v%d, v%d" % (t0, t0),
                "v_rcp_f32 v%d, v%d" % (t1, t1),
                "v_mul_f32 v%d, v%d, v%d" % (m0, m0, t0),
                "v_mul_f32 v%d, v%d, v%d" % (m1, m1, t1),
                "v_cvt_pk_bf16_f32 v%d, v%d, v%d" % (hp + pr, m0, m1),
            ]
        items.append(("w", "ds_write_b128 v%d, v[%d:%d] offset:%d" % (areg, hp, hp + 3, off), "hw"))
    return items

def k_ffn(a):
    name = "ffn_kernel"
    kernel_begin(a, name)
    a("s_cmp_ge_u32 s2, 256"); a("s_cbranch_scc1 L_ffn_done")
    load_ptrs(a)
    stamp(a, 1, 0)
    st = Stream(a)
    a("v_lshrrev_b32 v20, 6, v0")
    a("v_and_b32 v21, 63, v0")
    a("v_readfirstlane_b32 s%d, v20" % S_WAVE)
    a("s_and_b32 s%d, s2, 7" % S_T0)
    a("s_lshr_b32 s%d, s2, 3" % S_T1)
    a("s_lshr_b32 s%d, s%d, 1" % (S_M, S_T1))
    a("s_and_b32 s%d, s%d, 1" % (S_T1, S_T1))
    a("s_lshl_b32 s%d, s%d, 1" % (S_J, S_T0))
    a("s_add_u32 s%d, s%d, s%d" % (S_J, S_J, S_T1))
    a("s_lshr_b32 s%d, s%d, 1" % (S_TM, S_WAVE))
    a("s_and_b32 s%d, s%d, 1" % (S_FH, S_WAVE))
    a("s_mul_i32 s%d, s%d, 288" % (S_T0, S_J))
    a("s_lshl_b32 s%d, s%d, 5" % (S_FB, S_T1))
    a("s_add_u32 s%d, s%d, s%d" % (S_FB, S_FB, S_T0))
    a("s_cmp_eq_u32 s%d, 0" % S_T1)
    a("s_cselect_b32 s%d, 256, 0" % S_FHB)
    a("s_add_u32 s%d, s%d, s%d" % (S_FHB, S_FHB, S_T0))
    for s_ in range(4):
        a("s_add_u32 s%d, s%d, %d" % (S_COL[s_], S_FB, 64 * s_))
        a("s_lshl_b32 s%d, s%d, 1" % (S_COL[s_], S_COL[s_]))
    a("s_lshl_b32 s%d, s%d, 5" % (S_COL[4], S_T1))
    a("s_sub_u32 s%d, s%d, s%d" % (S_COL[4], S_FHB, S_COL[4]))
    a("s_lshl_b32 s%d, s%d, 1" % (S_COL[4], S_COL[4]))
    a("s_cmp_ge_u32 s%d, 2" % S_WAVE)
    a("s_cselect_b32 s%d, s18, s16" % S_W)
    a("s_cselect_b32 s%d, s19, s17" % (S_W + 1))
    a("s_mov_b32 s%d, %d" % (S_W + 2, D * F * 2)); a("s_mov_b32 s%d, 0x00020000" % (S_W + 3))
    srd(a, S_X, 26, S * D * 2, WS_XNF)
    srd(a, S_D, 20, D * F * 2)
    srd(a, S_P, 26, PART_BYTES, WS_PART)
    a("s_lshl_b32 s%d, s%d, 11" % (S_LDSW, S_WAVE))
    a("s_lshl_b32 s%d, s%d, 10" % (S_LDS2, S_WAVE))
    a("s_mov_b32 s%d, 0x%08x" % (S_C1, f2u(-2.0 * 0.7978845608028654 * 1.4426950408889634 * 0.044715)))
    a("v_mov_b32 v%d, 0x%08x" % (V_C0, f2u(-2.0 * 0.7978845608028654 * 1.4426950408889634)))
    a("v_lshlrev_b32 v%d, 4, v21" % V_LANE16)
    a("v_lshrrev_b32 v22, 3, v21")
    a("s_lshl_b32 s%d, s%d, 4" % (S_T0, S_FH))
    a("v_add_u32 v22, s%d, v22" % S_T0)
    a("s_movk_i32 s%d, 9216" % S_T0)
    a("v_mul_lo_u32 v22, v22, s%d" % S_T0)
    a("v_bfe_u32 v23, v21, 4, 1")
    a("s_lshl_b32 s%d, s%d, 1" % (S_T0, S_TM))
    a("v_or_b32 v23, s%d, v23" % S_T0)
    a("v_bfe_u32 v24, v21, 1, 2")
    a("v_xor_b32 v24, v24, v23")
    a("v_and_b32 v25, 1, v21")
    a("v_lshlrev_b32 v25, 4, v25")
    a("v_lshl_add_u32 v25, v24, 5, v25")
    a("v_add_u32 v%d, v22, v25" % V_DM0)
    a("v_add_u32 v%d, %d, v%d" % (V_DM1, 8 * 9216, V_DM0))
    a("v_lshrrev_b32 v24, 1, v24")
    a("s_and_b32 s%d, s%d, 1" % (S_T0, S_J))
    a("v_cmp_eq_u32 vcc, s%d, v24" % S_T0)
    a("v_mov_b32 v26, 0x7ff00000")
    a("s_nop 0")
    a("v_cndmask_b32 v%d, v26, v%d, vcc" % (V_DH0, V_DM0))
    a("v_cndmask_b32 v%d, v26, v%d, vcc" % (V_DH1, V_DM1))
    a("v_bfe_u32 v22, v21, 4, 1")
    a("v_bfe_u32 v23, v21, 5, 1")
    a("v_bfe_u32 v24, v21, 2, 2")
    a("v_and_b32 v25, 3, v21")
    a("v_lshlrev_b32 v26, 12, v22")
    a("v_lshl_add_u32 v27, v23, 3, v24")
    a("v_lshl_add_u32 v26, v27, 7, v26")
    a("v_lshl_add_u32 v26, v25, 3, v26")
    a("v_lshrrev_b32 v27, 1, v24")
    a("v_lshl_or_b32 v27, v22, 1, v27")
    a("s_lshl_b32 s%d, s%d, 1" % (S_T0, S_FH))
    a("v_xor_b32 v28, s%d, v27" % S_T0)
    a("v_lshl_add_u32 v%d, v28, 5, v26" % V_TR[0])
    a("v_xor_b32 v28, 1, v28")
    a("v_lshl_add_u32 v%d, v28, 5, v26" % V_TR[1])
    a("v_add_u32 v%d, 32768, v%d" % (V_TR[2], V_TR[0]))
    a("v_add_u32 v%d, 32768, v%d" % (V_TR[3], V_TR[1]))
    a("s_and_b32 s%d, s%d, 1" % (S_T0, S_J))
    a("s_lshl_b32 s%d, s%d, 1" % (S_T0, S_T0))
    a("s_add_u32 s%d, s%d, s%d" % (S_T0, S_T0, S_FH))
    a("v_xor_b32 v28, s%d, v27" % S_T0)
    a("v_lshl_add_u32 v%d, v28, 5, v26" % V_TRH[0])
    a("v_add_u32 v%d, 32768, v%d" % (V_TRH[1], V_TRH[0]))
    a("s_mul_i32 s%d, s%d, 36" % (S_T0, S_TM))
    a("s_lshl_b32 s%d, s%d, 1" % (S_T1, S_FH))
    a("s_add_u32 s%d, s%d, s%d" % (S_T1, S_T1, S_T0))
    a("s_lshl_b32 s%d, s%d, 10" % (S_T1, S_T1))
    a("s_add_u32 s%d, s%d, %d" % (S_T1, S_T1, HBASE))
    a("v_add_u32 v%d, s%d, v%d" % (V_H, S_T1, V_LANE16))
    a("s_add_u32 s%d, s%d, 16" % (S_T1, S_T0))
    a("s_add_u32 s%d, s%d, s%d" % (S_T1, S_T1, S_FH))
    a("s_lshl_b32 s%d, s%d, 10" % (S_T1, S_T1))
    a("s_add_u32 s%d, s%d, %d" % (S_T1, S_T1, HBASE))
    a("v_add_u32 v%d, s%d, v%d" % (V_HH, S_T1, V_LANE16))
    a("s_lshl_b32 s%d, s%d, 10" % (S_T1, S_T0))
    a("s_add_u32 s%d, s%d, %d" % (S_T1, S_T1, HBASE))
    a("v_add_u32 v%d, s%d, v%d" % (V_HR, S_T1, V_LANE16))
    a("v_lshrrev_b32 v22, 3, v21")
    a("s_lshl_b32 s%d, s%d, 3" % (S_T0, S_WAVE))
    a("v_add_u32 v22, s%d, v22" % S_T0)
    a("s_movk_i32 s%d, 1152" % S_T0)
    a("v_mul_lo_u32 v22, v22, s%d" % S_T0)
    a("v_bfe_u32 v23, v21, 4, 1")
    a("v_lshlrev_b32 v23, 1, v23")
    a("v_bfe_u32 v24, v21, 1, 2")
    a("v_xor_b32 v24, v24, v23")
    a("v_and_b32 v25, 1, v21")
    a("v_lshlrev_b32 v25, 4, v25")
    a("v_lshl_add_u32 v25, v24, 5, v25")
    a("v_add_u32 v%d, v22, v25" % V_D2)
    a("v_bfe_u32 v22, v21, 4, 1")
    a("v_bfe_u32 v23, v21, 5, 1")
    a("v_bfe_u32 v24, v21, 2, 2")
    a("v_and_b32 v25, 3, v21")
    a("v_lshl_add_u32 v26, v23, 2, v24")
    a("v_lshlrev_b32 v26, 7, v26")
    a("v_lshl_add_u32 v26, v25, 3, v26")
    a("v_and_b32 v27, 2, v24")
    a("s_lshl_b32 s%d, s%d, 1" % (S_T0, S_FH))
    a("v_or_b32 v28, s%d, v22" % S_T0)
    a("v_xor_b32 v28, v28, v27")
    a("v_lshl_add_u32 v%d, v28, 5, v26" % V_TR2[0])
    for b in range(1, 4):
        a("v_add_u32 v%d, %d, v%d" % (V_TR2[b], 36864 * b, V_TR2[0]))
    a("s_lshl_b32 s%d, s%d, 4" % (S_T0, S_J))
    a("s_add_u32 s%d, s%d, s%d" % (S_T0, S_T0, S_M))
    a("s_lshl_b32 s%d, s%d, 2" % (S_T0, S_T0))
    a("s_lshl_b32 s%d, s%d, 1" % (S_T1, S_TM))
    a("s_add_u32 s%d, s%d, s%d" % (S_T0, S_T0, S_T1))
    a("s_mul_i32 s%d, s%d, %d" % (S_PB, S_T0, 18 * 2048))
    a("s_lshl_b32 s%d, s%d, 11" % (S_T1, S_FH))
    a("s_add_u32 s%d, s%d, s%d" % (S_PB, S_PB, S_T1))

    if PF_K2:
        srd(a, 68, 16, D * F * 2); srd(a, 72, 18, D * F * 2)
        prefetch_w(a, S_M, S_J, S_WAVE, 21, PF_K2 == 2, S_T0, S_T1, S_OFF, 68, 72, S_D, V_PF)
        for _ in range((2 if PF_K2 == 2 else 1) * 3): st.vm.append(("PF", 0))
    def dma_slab(g):
        stg, s_ = divmod(g, 18)
        if stg > 4: return
        if "nodma" in ABL and g >= 8: return
        slot = g % 9
        v0_, v1_ = (V_DH0, V_DH1) if stg == 4 else (V_DM0, V_DM1)
        st("s_add_u32 s%d, s%d, %d" % (S_OFF, S_COL[stg], s_ * 32 * 9216))
        st("s_add_u32 m0, s%d, %d" % (S_LDSW, RING + slot * 8192))
        st("s_nop 0")
        st.vmem("buffer_load_dwordx4 v%d, s[%d:%d], s%d offen lds" % (v0_, S_W, S_W + 3, S_OFF), ("W", g))
        st("s_add_u32 m0, s%d, %d" % (S_LDSW, RING + slot * 8192 + 1024))
        st("s_nop 0")
        st.vmem("buffer_load_dwordx4 v%d, s[%d:%d], s%d offen lds" % (v1_, S_W, S_W + 3, S_OFF), ("W", g))
    def xload(ks):
        for t in range(2):
            off = (t * 36 + ks) * 1024
            st("s_add_u32 s%d, s%d, %d" % (S_OFF, S_T1, off))
            st.vmem("buffer_load_dwordx4 %s, v%d, s[%d:%d], s%d offen" % (xreg(ks, t), V_LANE16, S_X, S_X + 3, S_OFF), ("X", ks))
    a("s_lshl_b32 s%d, s%d, 2" % (S_T0, S_M))
    a("s_lshl_b32 s%d, s%d, 1" % (S_T1, S_TM))
    a("s_add_u32 s%d, s%d, s%d" % (S_T0, S_T0, S_T1))
    a("s_mul_i32 s%d, s%d, 36864" % (S_T1, S_T0))
    for s_ in range(8):
        dma_slab(s_)
        xload(2 * s_); xload(2 * s_ + 1)
    for ks in range(16, 36):
        xload(ks)
    stamp(a, 1, 1)

    def trread(g, kk, half):
        slot = g % 9
        gks = g * 2 + kk
        buf = gks % 3
        out = []
        ncs = 1 if half else 2
        for c in range(ncs):
            for q in range(2):
                off = slot * 8192 + kk * 2048 + q * 512
                hi = off >= 32768
                if half: areg = V_TRH[1 if hi else 0]
                else: areg = V_TR[c + (2 if hi else 0)]
                if hi: off -= 32768
                r = AF + (buf * 2 + c) * 4 + q * 2
                out.append(("ds_read_b64_tr_b16 v[%d:%d], v%d offset:%d" % (r, r + 1, areg, off), ("A", gks)))
        return out

    st.wait(vm=[("W", 0)])
    st("s_barrier")
    for kk in range(2):
        for txt, tag in trread(0, kk, False): st.lds(txt, tag)

    NG = 5 * 18
    def stage(stg, accset, gelu_q):
        half = stg == 4
        ncs = 1 if half else 2
        gq = list(gelu_q) if "nogelu" not in ABL else []
        nm_total = 36 * ncs * 2
        ngaps = nm_total - 4
        per = len(gq) / float(ngaps) if ngaps else 0
        acc_q = 0.0
        emitted = 0
        mi = 0
        for ks in range(36):
            g = stg * 18 + ks // 2
            gks = stg * 36 + ks
            buf = gks % 3
            pend = []
            g2, kk2 = divmod(gks + 2, 2)
            pre = []
            if ks % 2 == 0:
                if g + 1 < NG:
                    pre.append(("bar", g + 1))
                pre_dma = g + 8 if g + 8 < NG else None
            else:
                pre_dma = None
            reads = trread(g2, kk2, g2 // 18 == 4) if (g2 < NG and "notr" not in ABL) else []
            st.wait(vm=[("X", ks)] if stg == 0 else [], lg=[("A", gks)])
            k = 0
            for c in range(ncs):
                for t in range(2):
                    ti = c * 2 + t
                    d = ACC[accset] + 16 * ti
                    ar = AF + (buf * 2 + c) * 4
                    src = "0" if ks == 0 else "v[%d:%d]" % (d, d + 15)
                    st("v_mfma_f32_32x32x16_bf16 v[%d:%d], v[%d:%d], %s, %s" % (d, d + 15, ar, ar + 3, xreg(ks, t), src))
                    mi += 1
                    if k == 0:
                        for p in pre:
                            st.wait(vm=[("W", p[1])])
                            if "nobar" not in ABL: st("s_barrier")
                    nrd = len(reads) // (ncs * 2) + (1 if len(reads) % (ncs * 2) > k else 0)
                    lo = k * len(reads) // (ncs * 2); hi_ = (k + 1) * len(reads) // (ncs * 2)
                    for txt, tag in reads[lo:hi_]: st.lds(txt, tag)
                    if k == ncs * 2 - 1 and pre_dma is not None:
                        dma_slab(pre_dma)
                    if mi > 4:
                        acc_q += per
                        while gq and emitted < acc_q:
                            it = gq.pop(0); emitted += 1
                            if isinstance(it, tuple): st.lds(it[1], it[2])
                            else: st(it)
                    k += 1
        for it in gq:
            if isinstance(it, tuple): st.lds(it[1], it[2])
            else: st(it)

    def full_tiles(stg):
        return [(c * 2 + t, (t * 18 + c) * 1024 + stg * 4096, V_H) for c in range(2) for t in range(2)]
    stage(0, 0, [])
    stamp(a, 1, 2)
    stage(1, 1, gelu_items(ACC[0], full_tiles(0), None))
    stage(2, 0, gelu_items(ACC[1], full_tiles(1), None))
    stage(3, 1, gelu_items(ACC[0], full_tiles(2), None))
    stage(4, 0, gelu_items(ACC[1], full_tiles(3), None))
    stamp(a, 1, 3)
    def dma_wd(b):
        buf = b % 4
        for i in range(9):
            if i < 8: st("s_add_u32 s%d, s%d, %d" % (S_T0, S_FB, 32 * i))
            else: st("s_mov_b32 s%d, s%d" % (S_T0, S_FHB))
            st("s_mul_i32 s%d, s%d, 1152" % (S_OFF, S_T0))
            st("s_add_u32 s%d, s%d, %d" % (S_OFF, S_OFF, b * 128))
            st("s_add_u32 m0, s%d, %d" % (S_LDS2, buf * 36864 + i * 4096))
            st("s_nop 0")
            st.vmem("buffer_load_dwordx4 v%d, s[%d:%d], s%d offen lds" % (V_D2, S_D, S_D + 3, S_OFF), ("D", b))
    st.wait_all(vm=False, lg=True)
    st("s_barrier")
    dma_wd(0); dma_wd(1)
    for it in gelu_items(ACC[0], [(t, t * 18 * 1024, V_HH) for t in range(2)], None):
        if isinstance(it, tuple): st.lds(it[1], it[2])
        else: st(it)
    st.wait_all(vm=False, lg=True)
    st("s_barrier")
    for t in range(2):
        for ci in range(18):
            i = t * 18 + ci
            st.lds("ds_read_b128 a[%d:%d], v%d offset:%d" % (4 * i, 4 * i + 3, V_HR, i * 1024), ("H", i))
    st.wait_all(vm=False, lg=True)
    st("s_barrier")
    dma_wd(2)
    stamp(a, 1, 4)
    A2 = 176
    ACC2 = [16, 48]
    PK = 200
    def trread2(b, ci):
        gk = b * 18 + ci
        r = A2 + (gk % 4) * 4
        return [("ds_read_b64_tr_b16 v[%d:%d], v%d offset:%d" % (r + 2 * q, r + 2 * q + 1, V_TR2[b % 4], ci * 2048 + q * 1024), ("A2", gk)) for q in range(2)]
    def epi_items(b):
        items = []
        acc = ACC2[b % 2]
        for t in range(2):
            pk = PK + 8 * t
            for d in range(8):
                items.append("v_cvt_pk_bf16_f32 v%d, v%d, v%d" % (pk + d, acc + 16 * t + 2 * d, acc + 16 * t + 2 * d + 1))
            items.append("s_add_u32 s%d, s%d, %d" % (S_OFF, S_PB, t * 18 * 2048 + b * 2 * 2048))
            for q in range(2):
                items.append(("st", "buffer_store_dwordx4 v[%d:%d], v%d, s[%d:%d], s%d offen offset:%d" % (pk + 4 * q, pk + 4 * q + 3, V_LANE16, S_P, S_P + 3, S_OFF, q * 1024), ("P", b)))
        return items
    st.wait(vm=[("D", 0)])
    st("s_barrier")
    for ci in range(3):
        for txt, tag in trread2(0, ci): st.lds(txt, tag)
    for b in range(9):
        eq = epi_items(b - 1) if b > 0 else []
        mi = 0
        for ci in range(18):
            gk = b * 18 + ci
            nb, nci = divmod(gk + 3, 18)
            reads = trread2(nb, nci) if nb < 9 else []
            st.wait(lg=[("A2", gk)])
            for t in range(2):
                d = ACC2[b % 2] + 16 * t
                ar = A2 + (gk % 4) * 4
                hr = (t * 18 + ci) * 4
                src = "0" if ci == 0 else "v[%d:%d]" % (d, d + 15)
                st("v_mfma_f32_32x32x16_bf16 v[%d:%d], v[%d:%d], a[%d:%d], %s" % (d, d + 15, ar, ar + 3, hr, hr + 3, src))
                mi += 1
                if t == 0 and ci == 15 and b + 1 < 9:
                    st.wait(vm=[("D", b + 1)])
                    st("s_barrier")
                if t == 0:
                    for txt, tag in reads[:1]: st.lds(txt, tag)
                else:
                    for txt, tag in reads[1:]: st.lds(txt, tag)
                if t == 1 and ci == 15 and b + 3 < 9:
                    pass
                if mi > 4 and eq:
                    it = eq.pop(0)
                    if isinstance(it, tuple): st.vmem(it[1], it[2])
                    else: st(it)
            if ci == 16 and b + 3 < 9:
                dma_wd(b + 3)
        assert not eq
    st("s_nop 15"); st("s_nop 3")
    for it in epi_items(8):
        if isinstance(it, tuple): st.vmem(it[1], it[2])
        else: st(it)
    stamp(a, 1, 5)
    a.label("L_ffn_done")
    a("s_endpgm")

def gemm(a, name, nwg, gi, wi, wj, ti, tj, segs, npm, nqm, epi):
    kernel_begin(a, name)
    done = "L_%s_done" % name
    a("s_cmp_ge_u32 s2, %d" % nwg); a("s_cbranch_scc1 %s" % done)
    load_ptrs(a)
    a("s_mov_b32 s28, %d" % (-(-(1 << 32) // gi)))
    a("s_mul_hi_u32 s29, s2, s28")
    a("s_mul_i32 s30, s29, %d" % gi)
    a("s_sub_u32 s30, s2, s30")
    a("v_lshrrev_b32 v1, 6, v0")
    a("v_and_b32 v2, 31, v0")
    a("v_bfe_u32 v3, v0, 5, 1")
    lw = int(math.log2(wi))
    a("v_and_b32 v4, %d, v1" % (wi - 1))
    a("v_lshrrev_b32 v5, %d, v1" % lw)
    a("s_mul_i32 s31, s30, %d" % (wi * ti * 32))
    a("v_mul_u32_u24 v4, %d, v4" % (ti * 32))
    a("v_add_u32 v4, s31, v4")
    a("s_mul_i32 s31, s29, %d" % (wj * tj * 32))
    a("v_mul_u32_u24 v5, %d, v5" % (tj * 32))
    a("v_add_u32 v5, s31, v5")
    nm = max(npm, nqm)
    nacc = nm * ti * tj
    for r in range(nacc * 16):
        a("v_accvgpr_write_b32 a%d, 0" % r)
    PF = 16
    for si, (Ps, ldp, Qs, ldq, K, setup) in enumerate(segs):
        setup(a)
        a("v_add_u32 v6, v4, v2")
        a("s_mov_b32 s31, %d" % ldp)
        a("v_mul_lo_u32 v6, v6, s31")
        a("v_lshl_add_u32 v6, v3, 4, v6")
        a("v_add_u32 v7, v5, v2")
        a("s_mov_b32 s31, %d" % ldq)
        a("v_mul_lo_u32 v7, v7, s31")
        a("v_lshl_add_u32 v7, v3, 4, v7")
        for t in range(1, ti):
            a("v_add_u32 v%d, %d, v6" % (8 + t - 1, t * 32 * ldp))
        for t in range(1, tj):
            a("v_add_u32 v%d, %d, v7" % (12 + t - 1, t * 32 * ldq))
        a("s_mov_b32 s60, 0")
        lab = "L_%s_k%d" % (name, si)
        a.label(lab)
        r = PF
        pf = {}; qf = {}
        for m in range(len(Ps)):
            for t in range(ti):
                va = 6 if t == 0 else 8 + t - 1
                a("buffer_load_dwordx4 v[%d:%d], v%d, s[%d:%d], s60 offen" % (r, r + 3, va, Ps[m], Ps[m] + 3))
                pf[(m, t)] = r; r += 4
        for m in range(len(Qs)):
            for t in range(tj):
                va = 7 if t == 0 else 12 + t - 1
                a("buffer_load_dwordx4 v[%d:%d], v%d, s[%d:%d], s60 offen" % (r, r + 3, va, Qs[m], Qs[m] + 3))
                qf[(m, t)] = r; r += 4
        a("s_waitcnt vmcnt(0)")
        for m in range(nm):
            for x in range(ti):
                for y in range(tj):
                    acc = ((m * ti + x) * tj + y) * 16
                    p = pf[(m if len(Ps) > 1 else 0, x)]; q = qf[(m if len(Qs) > 1 else 0, y)]
                    a("v_mfma_f32_32x32x16_bf16 a[%d:%d], v[%d:%d], v[%d:%d], a[%d:%d]" % (acc, acc + 15, p, p + 3, q, q + 3, acc, acc + 15))
        a("s_add_u32 s60, s60, 32")
        a("s_cmp_lt_u32 s60, %d" % (K * 2))
        a("s_cbranch_scc1 %s" % lab)
    a("s_nop 15"); a("s_nop 7")
    epi(a)
    a.label(done)
    a("s_endpgm")

def store_tile_T(a, vals, srdo, ldo, x, y, f32=False):
    esz = 4 if f32 else 2
    a("v_add_u32 v60, v5, v2")
    if y: a("v_add_u32 v60, %d, v60" % (y * 32))
    a("s_mov_b32 s31, %d" % ldo)
    a("v_mul_lo_u32 v60, v60, s31")
    a("v_lshl_add_u32 v61, v3, 2, v4")
    if x: a("v_add_u32 v61, %d, v61" % (x * 32))
    a("v_lshl_add_u32 v60, v61, %d, v60" % (2 if f32 else 1))
    for g in range(4):
        if f32:
            a("buffer_store_dwordx4 v[%d:%d], v60, s[%d:%d], 0 offen offset:%d" % (vals[4 * g], vals[4 * g] + 3, srdo, srdo + 3, g * 32))
        else:
            a("v_cvt_pk_bf16_f32 v62, v%d, v%d" % (vals[4 * g], vals[4 * g + 1]))
            a("v_cvt_pk_bf16_f32 v63, v%d, v%d" % (vals[4 * g + 2], vals[4 * g + 3]))
            a("buffer_store_dwordx2 v[62:63], v60, s[%d:%d], 0 offen offset:%d" % (srdo, srdo + 3, g * 16))
        a("s_nop 1")

def k_naive_a(a):
    def setup_a1(a):
        srd(a, 32, 26, S * D * 2, WS_XN); srd(a, 36, 10, D * D * 2); srd(a, 40, 12, D * D * 2)
        srd(a, 44, 26, S * D * 2, WS_AT); srd(a, 48, 26, S * D * 2, WS_NBT)
    def epi_a1(a):
        for m in range(2):
            for x in range(2):
                ac = ((m * 2 + x) * 1 + 0) * 16
                for r in range(16):
                    a("v_accvgpr_read_b32 v%d, a%d" % (64 + r, ac + r))
                if m == 1:
                    for r in range(16):
                        a("v_sub_f32 v%d, 0, v%d" % (64 + r, 64 + r))
                store_tile_T(a, [64 + r for r in range(16)], 44 + 4 * m, S * 2, x, 0)
    gemm(a, "a1_kernel", 144, 8, 4, 1, 2, 1, [([32], D * 2, [36, 40], D * 2, D, setup_a1)], 1, 2, epi_a1)
    def s1(a):
        srd(a, 32, 6, S * S * 2); srd(a, 36, 26, S * D * 2, WS_AT); srd(a, 44, 26, S * D * 4, WS_YT)
    def s2(a):
        srd(a, 32, 8, S * S * 2); srd(a, 36, 26, S * D * 2, WS_NBT)
    def epi(a):
        for r in range(16):
            a("v_accvgpr_read_b32 v%d, a%d" % (64 + r, r))
        store_tile_T(a, [64 + r for r in range(16)], 44, S * 4, 0, 0, f32=True)
    gemm(a, "a2_kernel", 288, 32, 2, 2, 1, 1, [([32], S * 2, [36], S * 2, S, s1), ([32], S * 2, [36], S * 2, S, s2)], 1, 1, epi)

def k_red(a):
    name = "red_kernel"
    kernel_begin(a, name)
    a("s_cmp_ge_u32 s2, 288"); a("s_cbranch_scc1 L_red_done")
    load_ptrs(a)
    stamp(a, 2, 0)
    srd(a, 32, 26, PART_BYTES, WS_PART)
    srd(a, 36, 26, S * D * 4, WS_YT)
    srd(a, 40, 4, S * D * 2)
    srd(a, 44, 22, S * D * 2)
    a("v_lshrrev_b32 v1, 6, v0")
    a("v_and_b32 v2, 63, v0")
    a("v_readfirstlane_b32 s48, v1")
    a("s_lshl_b32 s49, s2, 2")
    a("s_add_u32 s49, s49, s48")
    a("s_mov_b32 s50, %d" % (-(-(1 << 32) // 18)))
    a("s_mul_hi_u32 s51, s49, s50")
    a("s_mul_i32 s52, s51, 18")
    a("s_sub_u32 s52, s49, s52")
    a("v_lshlrev_b32 v3, 4, v2")
    a("s_lshl_b32 s53, s49, 11")
    for j in range(16):
        for q in range(2):
            r = 32 + (j * 2 + q) * 4
            a("buffer_load_dwordx4 v[%d:%d], v3, s[32:35], s53 offen offset:%d" % (r, r + 3, q * 1024))
        a("s_add_u32 s53, s53, %d" % (64 * 18 * 2048))
    a("v_and_b32 v4, 31, v2")
    a("v_lshrrev_b32 v5, 5, v2")
    a("v_lshlrev_b32 v6, 15, v5")
    a("v_lshl_add_u32 v6, v4, 2, v6")
    a("s_lshl_b32 s54, s52, 18")
    a("s_lshl_b32 s55, s51, 7")
    a("s_add_u32 s54, s54, s55")
    for r in range(16):
        a("s_add_u32 s55, s54, %d" % ((8 * (r >> 2) + (r & 3)) * 8192))
        a("buffer_load_dword v%d, v6, s[36:39], s55 offen" % (160 + r))
    a("s_lshl_b32 s55, s51, 5")
    a("v_add_u32 v7, s55, v4")
    a("s_movk_i32 s56, 1152")
    a("v_mul_lo_u32 v7, v7, s56")
    a("s_lshl_b32 s57, s52, 6")
    a("v_add_u32 v7, s57, v7")
    a("v_lshl_add_u32 v8, v5, 3, v7")
    for g in range(4):
        a("buffer_load_dwordx2 v[%d:%d], v8, s[40:43], 0 offen offset:%d" % (176 + 2 * g, 177 + 2 * g, g * 16))
    a("v_lshl_add_u32 v9, v5, 4, v7")
    n = 16 * 2 + 16 + 4
    first = True
    for j in range(16):
        a("s_waitcnt vmcnt(%d)" % (n - 2 * (j + 1)))
        for q in range(2):
            for d in range(4):
                src = 32 + (j * 2 + q) * 4 + d
                e = 8 * q + 2 * d
                if j == 0:
                    a("v_lshlrev_b32 v%d, 16, v%d" % (16 + e, src))
                    a("v_and_b32 v%d, 0xffff0000, v%d" % (17 + e, src))
                else:
                    a("v_lshlrev_b32 v10, 16, v%d" % src)
                    a("v_and_b32 v11, 0xffff0000, v%d" % src)
                    a("v_add_f32 v%d, v%d, v10" % (16 + e, 16 + e))
                    a("v_add_f32 v%d, v%d, v11" % (17 + e, 17 + e))
    a("s_waitcnt vmcnt(0)")
    for r in range(16):
        a("v_add_f32 v%d, v%d, v%d" % (16 + r, 16 + r, 160 + r))
    for g in range(4):
        for h in range(2):
            src = 176 + 2 * g + h
            e = 4 * g + 2 * h
            a("v_lshlrev_b32 v10, 16, v%d" % src)
            a("v_and_b32 v11, 0xffff0000, v%d" % src)
            a("v_add_f32 v%d, v%d, v10" % (16 + e, 16 + e))
            a("v_add_f32 v%d, v%d, v11" % (17 + e, 17 + e))
    if PERT:
        a("v_and_b32 v10, 1, v0")
        a("v_cvt_f32_u32 v10, v10")
        a("v_fma_f32 v10, v10, 2.0, -1.0")
        a("v_mul_f32 v10, 0x%08x, v10" % f2u(PERT))
        for r in range(16):
            if r % 2: a("v_fma_f32 v%d, v%d, v10, v%d" % (16 + r, 16 + r, 16 + r))
            else: a("v_fma_f32 v%d, -v%d, v10, v%d" % (16 + r, 16 + r, 16 + r))
    for d in range(8):
        a("v_cvt_pk_bf16_f32 v%d, v%d, v%d" % (32 + d, 16 + 2 * d, 17 + 2 * d))
    a("s_nop 1")
    a("v_permlane32_swap_b32 v32, v34")
    a("v_permlane32_swap_b32 v33, v35")
    a("v_permlane32_swap_b32 v36, v38")
    a("v_permlane32_swap_b32 v37, v39")
    a("s_nop 1")
    a("buffer_store_dwordx4 v[32:35], v9, s[44:47], 0 offen")
    a("buffer_store_dwordx4 v[36:39], v9, s[44:47], 0 offen offset:32")
    stamp(a, 2, 1)
    a.label("L_red_done")
    a("s_endpgm")

def main():
    global STAMPS
    out = sys.argv[1]
    global PF_K1, PF_K2
    STAMPS = "stamps" in sys.argv[2:]
    for o in sys.argv[2:]:
        if o.startswith("abl="): ABL.update(o[4:].split(","))
        if o.startswith("pfk1="): PF_K1 = int(o[5:])
        if o.startswith("pfk2="): PF_K2 = int(o[5:])
    a = Asm()
    a.raw(HEADER.rstrip("\n"))
    a.raw("; @launch kernel=ln_kernel grid=(%d,1,1) block=(256,1,1) lds=0" % (256 if PF_K1 else 128))
    a.raw("; @launch kernel=a1_kernel grid=(144,1,1) block=(256,1,1) lds=0")
    a.raw("; @launch kernel=a2_kernel grid=(288,1,1) block=(256,1,1) lds=0")
    if PF_K1: a.raw("; @launch kernel=ln_kernel grid=(256,1,1) block=(256,1,1) lds=0")
    a.raw("; @launch kernel=ffn_kernel grid=(256,1,1) block=(256,1,1) lds=147456")
    a.raw("; @launch kernel=red_kernel grid=(288,1,1) block=(256,1,1) lds=0")
    a.raw('.amdgcn_target "amdgcn-amd-amdhsa--gfx950"')
    k_ln(a); k_naive_a(a); k_ffn(a); k_red(a)
    kernel_desc(a, "ln_kernel", 256 if STAMPS else 128, 96, 256 if STAMPS else 128)
    kernel_desc(a, "a1_kernel", 256, 96, 128)
    kernel_desc(a, "a2_kernel", 256, 96, 128)
    kernel_desc(a, "ffn_kernel", 512, 96, 256)
    kernel_desc(a, "red_kernel", 256, 96, 256)
    open(out, "w").write(a.text())
if __name__ == "__main__":
    main()
```

```python
import sys, math
import gen1
from gen1 import *
OPT = {"B": 2, "R": 9, "abl": set(), "gcap": 3}

class Gap:
    pass

def emit_item(st, it):
    if isinstance(it, tuple):
        kind = it[0]
        if kind == "w" or kind == "lds": st.lds(it[1], it[2])
        elif kind == "vm": st.vmem(it[1], it[2])
        elif kind == "waitvm": st.wait(vm=it[1])
        elif kind == "bar":
            st.wait(vm=it[1])
            if "nobar" not in OPT["abl"]: st("s_barrier")
        else: raise ValueError(kind)
    else:
        st(it)

def k_ffn2(a):
    R = OPT["R"]; ABLS = OPT["abl"]
    HB = R * 8192
    name = "ffn_kernel"
    kernel_begin(a, name)
    a("s_cmp_ge_u32 s2, 256"); a("s_cbranch_scc1 L_ffn_done")
    load_ptrs(a)
    stamp(a, 1, 0)
    st = Stream(a)
    a("v_lshrrev_b32 v20, 6, v0")
    a("v_and_b32 v21, 63, v0")
    a("v_readfirstlane_b32 s%d, v20" % S_WAVE)
    a("s_and_b32 s%d, s2, 7" % S_T0)
    a("s_lshr_b32 s%d, s2, 3" % S_T1)
    a("s_lshr_b32 s%d, s%d, 1" % (S_M, S_T1))
    a("s_and_b32 s%d, s%d, 1" % (S_T1, S_T1))
    a("s_lshl_b32 s%d, s%d, 1" % (S_J, S_T0))
    a("s_add_u32 s%d, s%d, s%d" % (S_J, S_J, S_T1))
    a("s_lshr_b32 s%d, s%d, 1" % (S_TM, S_WAVE))
    a("s_and_b32 s%d, s%d, 1" % (S_FH, S_WAVE))
    a("s_mul_i32 s%d, s%d, 288" % (S_T0, S_J))
    a("s_lshl_b32 s%d, s%d, 5" % (S_FB, S_T1))
    a("s_add_u32 s%d, s%d, s%d" % (S_FB, S_FB, S_T0))
    a("s_cmp_eq_u32 s%d, 0" % S_T1)
    a("s_cselect_b32 s%d, 256, 0" % S_FHB)
    a("s_add_u32 s%d, s%d, s%d" % (S_FHB, S_FHB, S_T0))
    for s_ in range(4):
        a("s_add_u32 s%d, s%d, %d" % (S_COL[s_], S_FB, 64 * s_))
        a("s_lshl_b32 s%d, s%d, 1" % (S_COL[s_], S_COL[s_]))
    a("s_lshl_b32 s%d, s%d, 5" % (S_COL[4], S_T1))
    a("s_sub_u32 s%d, s%d, s%d" % (S_COL[4], S_FHB, S_COL[4]))
    a("s_lshl_b32 s%d, s%d, 1" % (S_COL[4], S_COL[4]))
    a("s_cmp_ge_u32 s%d, 2" % S_WAVE)
    a("s_cselect_b32 s%d, s18, s16" % S_W)
    a("s_cselect_b32 s%d, s19, s17" % (S_W + 1))
    a("s_mov_b32 s%d, %d" % (S_W + 2, D * F * 2)); a("s_mov_b32 s%d, 0x00020000" % (S_W + 3))
    srd(a, S_X, 26, S * D * 2, WS_XNF)
    srd(a, S_D, 20, D * F * 2)
    srd(a, S_P, 26, PART_BYTES, WS_PART)
    a("s_lshl_b32 s%d, s%d, 11" % (S_LDSW, S_WAVE))
    a("s_lshl_b32 s%d, s%d, 10" % (S_LDS2, S_WAVE))
    a("s_mov_b32 s%d, 0x%08x" % (S_C1, f2u(-2.0 * 0.7978845608028654 * 1.4426950408889634 * 0.044715)))
    a("v_mov_b32 v%d, 0x%08x" % (V_C0, f2u(-2.0 * 0.7978845608028654 * 1.4426950408889634)))
    a("v_lshlrev_b32 v%d, 4, v21" % V_LANE16)
    a("v_lshrrev_b32 v22, 3, v21")
    a("s_lshl_b32 s%d, s%d, 4" % (S_T0, S_FH))
    a("v_add_u32 v22, s%d, v22" % S_T0)
    a("s_movk_i32 s%d, 9216" % S_T0)
    a("v_mul_lo_u32 v22, v22, s%d" % S_T0)
    a("v_bfe_u32 v23, v21, 4, 1")
    a("s_lshl_b32 s%d, s%d, 1" % (S_T0, S_TM))
    a("v_or_b32 v23, s%d, v23" % S_T0)
    a("v_bfe_u32 v24, v21, 1, 2")
    a("v_xor_b32 v24, v24, v23")
    a("v_and_b32 v25, 1, v21")
    a("v_lshlrev_b32 v25, 4, v25")
    a("v_lshl_add_u32 v25, v24, 5, v25")
    a("v_add_u32 v%d, v22, v25" % V_DM0)
    a("v_add_u32 v%d, %d, v%d" % (V_DM1, 8 * 9216, V_DM0))
    a("v_lshrrev_b32 v24, 1, v24")
    a("s_and_b32 s%d, s%d, 1" % (S_T0, S_J))
    a("v_cmp_eq_u32 vcc, s%d, v24" % S_T0)
    a("v_mov_b32 v26, 0x7ff00000")
    a("s_nop 0")
    a("v_cndmask_b32 v%d, v26, v%d, vcc" % (V_DH0, V_DM0))
    a("v_cndmask_b32 v%d, v26, v%d, vcc" % (V_DH1, V_DM1))
    a("v_bfe_u32 v22, v21, 4, 1")
    a("v_bfe_u32 v23, v21, 5, 1")
    a("v_bfe_u32 v24, v21, 2, 2")
    a("v_and_b32 v25, 3, v21")
    a("v_lshlrev_b32 v26, 12, v22")
    a("v_lshl_add_u32 v27, v23, 3, v24")
    a("v_lshl_add_u32 v26, v27, 7, v26")
    a("v_lshl_add_u32 v26, v25, 3, v26")
    a("v_lshrrev_b32 v27, 1, v24")
    a("v_lshl_or_b32 v27, v22, 1, v27")
    a("s_lshl_b32 s%d, s%d, 1" % (S_T0, S_FH))
    a("v_xor_b32 v28, s%d, v27" % S_T0)
    a("v_lshl_add_u32 v%d, v28, 5, v26" % V_TR[0])
    a("v_xor_b32 v28, 1, v28")
    a("v_lshl_add_u32 v%d, v28, 5, v26" % V_TR[1])
    a("v_add_u32 v%d, 49152, v%d" % (V_TR[2], V_TR[0]))
    a("v_add_u32 v%d, 49152, v%d" % (V_TR[3], V_TR[1]))
    a("s_and_b32 s%d, s%d, 1" % (S_T0, S_J))
    a("s_lshl_b32 s%d, s%d, 1" % (S_T0, S_T0))
    a("s_add_u32 s%d, s%d, s%d" % (S_T0, S_T0, S_FH))
    a("v_xor_b32 v28, s%d, v27" % S_T0)
    a("v_lshl_add_u32 v%d, v28, 5, v26" % V_TRH[0])
    a("v_add_u32 v%d, 49152, v%d" % (V_TRH[1], V_TRH[0]))
    a("s_mul_i32 s%d, s%d, 36" % (S_T0, S_TM))
    a("s_lshl_b32 s%d, s%d, 1" % (S_T1, S_FH))
    a("s_add_u32 s%d, s%d, s%d" % (S_T1, S_T1, S_T0))
    a("s_lshl_b32 s%d, s%d, 10" % (S_T1, S_T1))
    a("s_add_u32 s%d, s%d, %d" % (S_T1, S_T1, HB))
    a("v_add_u32 v%d, s%d, v%d" % (V_H, S_T1, V_LANE16))
    a("s_add_u32 s%d, s%d, 16" % (S_T1, S_T0))
    a("s_add_u32 s%d, s%d, s%d" % (S_T1, S_T1, S_FH))
    a("s_lshl_b32 s%d, s%d, 10" % (S_T1, S_T1))
    a("s_add_u32 s%d, s%d, %d" % (S_T1, S_T1, HB))
    a("v_add_u32 v%d, s%d, v%d" % (V_HH, S_T1, V_LANE16))
    a("s_lshl_b32 s%d, s%d, 10" % (S_T1, S_T0))
    a("s_add_u32 s%d, s%d, %d" % (S_T1, S_T1, HB))
    a("v_add_u32 v%d, s%d, v%d" % (V_HR, S_T1, V_LANE16))
    a("v_lshrrev_b32 v22, 3, v21")
    a("s_lshl_b32 s%d, s%d, 3" % (S_T0, S_WAVE))
    a("v_add_u32 v22, s%d, v22" % S_T0)
    a("s_movk_i32 s%d, 1152" % S_T0)
    a("v_mul_lo_u32 v22, v22, s%d" % S_T0)
    a("v_bfe_u32 v23, v21, 4, 1")
    a("v_lshlrev_b32 v23, 1, v23")
    a("v_bfe_u32 v24, v21, 1, 2")
    a("v_xor_b32 v24, v24, v23")
    a("v_and_b32 v25, 1, v21")
    a("v_lshlrev_b32 v25, 4, v25")
    a("v_lshl_add_u32 v25, v24, 5, v25")
    a("v_add_u32 v%d, v22, v25" % V_D2)
    a("v_bfe_u32 v22, v21, 4, 1")
    a("v_bfe_u32 v23, v21, 5, 1")
    a("v_bfe_u32 v24, v21, 2, 2")
    a("v_and_b32 v25, 3, v21")
    a("v_lshl_add_u32 v26, v23, 2, v24")
    a("v_lshlrev_b32 v26, 7, v26")
    a("v_lshl_add_u32 v26, v25, 3, v26")
    a("v_and_b32 v27, 2, v24")
    a("s_lshl_b32 s%d, s%d, 1" % (S_T0, S_FH))
    a("v_or_b32 v28, s%d, v22" % S_T0)
    a("v_xor_b32 v28, v28, v27")
    a("v_lshl_add_u32 v%d, v28, 5, v26" % V_TR2[0])
    for b in range(1, 4):
        a("v_add_u32 v%d, %d, v%d" % (V_TR2[b], 36864 * b, V_TR2[0]))
    a("s_lshl_b32 s%d, s%d, 4" % (S_T0, S_J))
    a("s_add_u32 s%d, s%d, s%d" % (S_T0, S_T0, S_M))
    a("s_lshl_b32 s%d, s%d, 2" % (S_T0, S_T0))
    a("s_lshl_b32 s%d, s%d, 1" % (S_T1, S_TM))
    a("s_add_u32 s%d, s%d, s%d" % (S_T0, S_T0, S_T1))
    a("s_mul_i32 s%d, s%d, %d" % (S_PB, S_T0, 18 * 2048))
    a("s_lshl_b32 s%d, s%d, 11" % (S_T1, S_FH))
    a("s_add_u32 s%d, s%d, s%d" % (S_PB, S_PB, S_T1))
    S_WD0, S_WD1, S_OFF2 = 67, 68, 69
    a("s_mul_i32 s%d, s%d, 1152" % (S_WD0, S_FB))
    a("s_mul_i32 s%d, s%d, 1152" % (S_WD1, S_FHB))
    if gen1.PF_K2:
        srd(a, 72, 16, D * F * 2); srd(a, 76, 18, D * F * 2)
        prefetch_w(a, S_M, S_J, S_WAVE, 21, gen1.PF_K2 == 2, S_T0, S_T1, S_OFF, 72, 76, S_D, V_PF)

    def dma_items(g):
        stg, s_ = divmod(g, 18)
        if stg > 4: return []
        if "nodma" in ABLS and g >= 8: return []
        slot = g % R
        v0_, v1_ = (V_DH0, V_DH1) if stg == 4 else (V_DM0, V_DM1)
        g0 = ["s_add_u32 s%d, s%d, %d" % (S_OFF, S_COL[stg], s_ * 32 * 9216),
              "s_add_u32 m0, s%d, %d" % (S_LDSW, slot * 8192),
              "NOPSLOT",
              ("vm", "buffer_load_dwordx4 v%d, s[%d:%d], s%d offen %s lds" % (v0_, S_W, S_W + 3, S_OFF, OPT.get("wflags", "")), ("W", g))]
        g1 = ["s_add_u32 m0, s%d, %d" % (S_LDSW, slot * 8192 + 1024),
              "NOPSLOT",
              ("vm", "buffer_load_dwordx4 v%d, s[%d:%d], s%d offen %s lds" % (v1_, S_W, S_W + 3, S_OFF, OPT.get("wflags", "")), ("W", g))]
        return [g0, g1]
    def emit_group(grp, filler=None):
        for it in grp:
            if it == "NOPSLOT":
                if not (filler and filler()): st("s_nop 0")
            else: emit_item(st, it)
    def xload(ks):
        for t in range(2):
            off = (t * 36 + ks) * 1024
            st("s_add_u32 s%d, s%d, %d" % (S_OFF2, S_T1, off))
            st.vmem("buffer_load_dwordx4 %s, v%d, s[%d:%d], s%d offen" % (xreg(ks, t), V_LANE16, S_X, S_X + 3, S_OFF2), ("X", ks))
    a("s_lshl_b32 s%d, s%d, 2" % (S_T0, S_M))
    a("s_lshl_b32 s%d, s%d, 1" % (S_T1, S_TM))
    a("s_add_u32 s%d, s%d, s%d" % (S_T0, S_T0, S_T1))
    a("s_mul_i32 s%d, s%d, 36864" % (S_T1, S_T0))
    NPRE = R - 1
    for s_ in range(NPRE):
        for grp in dma_items(s_): emit_group(grp)
        xload(2 * s_); xload(2 * s_ + 1)
    for ks in range(2 * NPRE, 36):
        xload(ks)
    stamp(a, 1, 1)

    HI = 49152
    def trread(g, kk, half):
        slot = g % R
        gks = g * 2 + kk
        buf = gks % 3
        out = []
        ncs = 1 if half else 2
        for c in range(ncs):
            for q in range(2):
                off = slot * 8192 + kk * 2048 + q * 512
                hi = off >= HI
                if half: areg = V_TRH[1 if hi else 0]
                else: areg = V_TR[c + (2 if hi else 0)]
                if hi: off -= HI
                assert off < 65536
                r = AF + (buf * 2 + c) * 4 + q * 2
                out.append(("lds", "ds_read_b64_tr_b16 v[%d:%d], v%d offset:%d" % (r, r + 1, areg, off), ("A", gks)))
        return out

    B = OPT["B"]
    NG = 5 * 18
    st.wait(vm=[("W", i) for i in range(B)])
    st("s_barrier")
    for kk in range(2):
        for it in trread(0, kk, False): emit_item(st, it)
    next_dma = [NPRE]
    dma_pending = []
    def stage(stg, accset, gelu_q):
        half = stg == 4
        ncs = 1 if half else 2
        gq = list(gelu_q) if "nogelu" not in ABLS else []
        nm_total = 36 * ncs * 2
        per = len(gq) / float(nm_total - 6)
        state = {"acc": 0.0, "em": 0}
        def pop_gelu():
            if gq:
                emit_item(st, gq.pop(0)); state["em"] += 1
                return True
            return False
        mi = 0
        since_dma = 99
        for ks in range(36):
            g = stg * 18 + ks // 2
            gks = stg * 36 + ks
            buf = gks % 3
            g2, kk2 = divmod(gks + 2, 2)
            bar = None
            if kk2 == 0 and g2 % B == 0 and g2 < NG:
                bar = [("W", i) for i in range(g2, min(g2 + B, NG))]
            reads = trread(g2, kk2, g2 // 18 == 4) if (g2 < NG and "notr" not in ABLS) else []
            st.wait(vm=[("X", ks)] if stg == 0 else [], lg=[("A", gks)])
            ng = ncs * 2
            k = 0
            order = [(c, t) for c in range(ncs) for t in range(2)]
            if OPT.get("gray") and ncs == 2: order = [(0, 0), (0, 1), (1, 1), (1, 0)] if ks % 2 == 0 else [(0, 0), (0, 1), (1, 1), (1, 0)]
            for (c, t) in order:
                if True:
                    ti = c * 2 + t
                    d = ACC[accset] + 16 * ti
                    ar = AF + (buf * 2 + c) * 4
                    src = "0" if ks == 0 else "v[%d:%d]" % (d, d + 15)
                    st("v_mfma_f32_32x32x16_bf16 v[%d:%d], v[%d:%d], %s, %s" % (d, d + 15, ar, ar + 3, xreg(ks, t), src))
                    mi += 1
                    if k == 0 and bar is not None:
                        emit_item(st, ("bar", bar))
                        while next_dma[0] < NG and next_dma[0] - R <= g2 - 2:
                            dma_pending.extend(dma_items(next_dma[0])); next_dma[0] += 1
                    lo = k * len(reads) // ng; hi_ = (k + 1) * len(reads) // ng
                    for it in reads[lo:hi_]: emit_item(st, it)
                    since_dma += 1
                    did = False
                    if dma_pending and since_dma >= OPT.get("dmagap", 4 if not half else 2) and not (k == 0 and bar is not None):
                        emit_group(dma_pending.pop(0), pop_gelu if mi > 6 else None)
                        since_dma = 0; did = True
                    if mi > 6:
                        state["acc"] += per
                        n = 0
                        cap = OPT["gcap"] - (2 if did else 0)
                        while gq and state["em"] < state["acc"] and n < cap:
                            pop_gelu(); n += 1
                    k += 1
        while gq: pop_gelu()

    def full_tiles(stg):
        return [(c * 2 + t, (t * 18 + c) * 1024 + stg * 4096, V_H) for c in range(2) for t in range(2)]
    stage(0, 0, [])
    stamp(a, 1, 2)
    stage(1, 1, gelu_items(ACC[0], full_tiles(0), None))
    stage(2, 0, gelu_items(ACC[1], full_tiles(1), None))
    stage(3, 1, gelu_items(ACC[0], full_tiles(2), None))
    stage(4, 0, gelu_items(ACC[1], full_tiles(3), None))
    assert not dma_pending
    stamp(a, 1, 3)
    def wd_groups(b):
        buf = b % 4
        out = []
        for i in range(9):
            base = S_WD0 if i < 8 else S_WD1
            off = (32 * i * 1152 if i < 8 else 0) + b * 128
            out.append(["s_add_u32 s%d, s%d, %d" % (S_OFF, base, off),
                        "s_add_u32 m0, s%d, %d" % (S_LDS2, buf * 36864 + i * 4096),
                        "NOPSLOT",
                        ("vm", "buffer_load_dwordx4 v%d, s[%d:%d], s%d offen %s lds" % (V_D2, S_D, S_D + 3, S_OFF, OPT.get("wflags", "")), ("D", b))])
        return out
    st.wait_all(vm=False, lg=True)
    st("s_barrier")
    for b in range(2):
        for grp in wd_groups(b): emit_group(grp)
    for it in gelu_items(ACC[0], [(t, t * 18 * 1024, V_HH) for t in range(2)], None): emit_item(st, it)
    st.wait_all(vm=False, lg=True)
    st("s_barrier")
    for t in range(2):
        for ci in range(18):
            i = t * 18 + ci
            st.lds("ds_read_b128 a[%d:%d], v%d offset:%d" % (4 * i, 4 * i + 3, V_HR, i * 1024), ("H", i))
    st.wait_all(vm=False, lg=True)
    st("s_barrier")
    for grp in wd_groups(2): emit_group(grp)
    stamp(a, 1, 4)
    A2 = 176; ACC2 = [16, 48]; PK = 200
    def trread2(b, ci):
        gk = b * 18 + ci
        r = A2 + (gk % 4) * 4
        return [("lds", "ds_read_b64_tr_b16 v[%d:%d], v%d offset:%d" % (r + 2 * q, r + 2 * q + 1, V_TR2[b % 4], ci * 2048 + q * 1024), ("A2", gk)) for q in range(2)]
    def epi_items(b):
        items = []
        acc = ACC2[b % 2]
        for t in range(2):
            pk = PK + 8 * t
            for d in range(8):
                items.append("v_cvt_pk_bf16_f32 v%d, v%d, v%d" % (pk + d, acc + 16 * t + 2 * d, acc + 16 * t + 2 * d + 1))
            for q in range(2):
                items.append(["s_add_u32 s%d, s%d, %d" % (S_OFF2, S_PB, t * 18 * 2048 + b * 2 * 2048),
                              ("vm", "buffer_store_dwordx4 v[%d:%d], v%d, s[%d:%d], s%d offen offset:%d %s" % (pk + 4 * q, pk + 4 * q + 3, V_LANE16, S_P, S_P + 3, S_OFF2, q * 1024, OPT.get("stflags", "")), ("P", b))])
        return items
    st.wait(vm=[("D", 0)])
    st("s_barrier")
    for ci in range(3):
        for it in trread2(0, ci): emit_item(st, it)
    pend = list(wd_groups(3))
    for b in range(9):
        eq = epi_items(b - 1) if b > 0 else []
        mi = 0
        since = 99
        for ci in range(18):
            gk = b * 18 + ci
            nb, nci = divmod(gk + 3, 18)
            reads = trread2(nb, nci) if nb < 9 else []
            st.wait(lg=[("A2", gk)])
            for t in range(2):
                d = ACC2[b % 2] + 16 * t
                ar = A2 + (gk % 4) * 4
                hr = (t * 18 + ci) * 4
                src = "0" if ci == 0 else "v[%d:%d]" % (d, d + 15)
                st("v_mfma_f32_32x32x16_bf16 v[%d:%d], v[%d:%d], a[%d:%d], %s" % (d, d + 15, ar, ar + 3, hr, hr + 3, src))
                mi += 1
                isbar = (t == 0 and ci == 15 and b + 1 < 9)
                if isbar:
                    emit_item(st, ("bar", [("D", b + 1)]))
                    if b >= 1 and b + 3 <= 8:
                        pend.extend(wd_groups(b + 3))
                emit_item(st, reads[t]) if reads else None
                since += 1
                vm_done = False
                if pend and since >= 3 and not isbar:
                    emit_group(pend.pop(0)); since = 0; vm_done = True
                if mi > 4 and eq and not vm_done:
                    it = eq.pop(0)
                    if isinstance(it, list):
                        if since >= 2:
                            for x in it: emit_item(st, x)
                            since = 0
                        else: eq.insert(0, it)
                    else:
                        emit_item(st, it)
                        if eq and not isinstance(eq[0], list): emit_item(st, eq.pop(0))
        while eq:
            it = eq.pop(0)
            if isinstance(it, list):
                for x in it: emit_item(st, x)
            else: emit_item(st, it)
    assert not pend
    st("s_nop 15"); st("s_nop 3")
    for it in epi_items(8):
        if isinstance(it, list):
            for x in it: emit_item(st, x)
        else: emit_item(st, it)
    stamp(a, 1, 5)
    a.label("L_ffn_done")
    a("s_endpgm")
    return max(R * 8192 + 73728, 147456)

def main():
    out = sys.argv[1]
    for o in sys.argv[2:]:
        if o == "stamps": gen1.STAMPS = True
        elif o.startswith("abl="): OPT["abl"].update(o[4:].split(","))
        elif o.startswith("pert="): gen1.PERT = float(o[5:])
        elif o.startswith("pfk1="): gen1.PF_K1 = int(o[5:])
        elif o.startswith("pfk2="): gen1.PF_K2 = int(o[5:])
        elif "=" in o:
            k, v = o.split("=", 1)
            OPT[k] = int(v) if v.lstrip("-").isdigit() else v.replace("+", " ")
    lds = max(OPT["R"] * 8192 + 73728, 147456)
    a = Asm()
    a.raw(HEADER.rstrip("\n"))
    a.raw("; @launch kernel=ln_kernel grid=(%d,1,1) block=(256,1,1) lds=0" % (256 if gen1.PF_K1 else 128))
    a.raw("; @launch kernel=a1_kernel grid=(144,1,1) block=(256,1,1) lds=0")
    a.raw("; @launch kernel=a2_kernel grid=(288,1,1) block=(256,1,1) lds=0")
    if gen1.PF_K1: a.raw("; @launch kernel=ln_kernel grid=(256,1,1) block=(256,1,1) lds=0")
    a.raw("; @launch kernel=ffn_kernel grid=(256,1,1) block=(256,1,1) lds=%d" % lds)
    a.raw("; @launch kernel=red_kernel grid=(288,1,1) block=(256,1,1) lds=0")
    a.raw('.amdgcn_target "amdgcn-amd-amdhsa--gfx950"')
    k_ln(a); k_naive_a(a); k_ffn2(a); k_red(a)
    kernel_desc(a, "ln_kernel", 256 if gen1.STAMPS else 128, 96, 256 if gen1.STAMPS else 128)
    kernel_desc(a, "a1_kernel", 256, 96, 128)
    kernel_desc(a, "a2_kernel", 256, 96, 128)
    kernel_desc(a, "ffn_kernel", 512, 96, 256)
    kernel_desc(a, "red_kernel", 256, 96, 256)
    open(out, "w").write(a.text())
if __name__ == "__main__":
    main()
```

```python
import sys, math
from asmgen import *
from sched import *

S, D, F = 2048, 576, 4608
OPT = {"B": 2, "R": 9, "abl": set(), "gcap": 3, "stamps": 0, "pf": 2, "stflags": "sc1", "xahead": 6, "pert": 0.0}
WS_XNF   = 0
WS_CF    = 4 << 20
CF_BYTES = 289 * 8192
WS_DF    = 8 << 20
DF_BYTES = 18 * 36864
WS_TAB   = 9 << 20
TAB_BYTES = 38 * 1024
WS_YT    = 12 << 20
YT_BYTES = 289 * 8192
WS_PART  = 24 << 20
PART_BYTES = 16 * S * D * 2
WS_STAMP = 128 << 20
N_LN, N_DF, N_TAB = 128, 162, 10
N_FFT, N_RED = 73, 288

def srd(a, sd, sp, nbytes, off=0):
    if off:
        a("s_add_u32 s%d, s%d, %d" % (sd, sp, off))
        a("s_addc_u32 s%d, s%d, 0" % (sd + 1, sp + 1))
    else:
        a("s_mov_b32 s%d, s%d" % (sd, sp))
        a("s_mov_b32 s%d, s%d" % (sd + 1, sp + 1))
    a("s_mov_b32 s%d, %d" % (sd + 2, nbytes))
    a("s_mov_b32 s%d, 0x00020000" % (sd + 3))

def load_ptrs(a):
    a("s_load_dwordx2 s[4:5], s[0:1], 0")
    a("s_load_dwordx4 s[8:11], s[0:1], 16")
    a("s_load_dwordx2 s[12:13], s[0:1], 32")
    a("s_load_dwordx8 s[16:23], s[0:1], 48")
    a("s_load_dwordx4 s[24:27], s[0:1], 80")
    a("s_waitcnt lgkmcnt(0)")

def stamp(a, kidx, slot, sreg=88):
    if not OPT["stamps"]: return
    lab = a.newlabel("L_st")
    a("s_memrealtime s[%d:%d]" % (sreg, sreg + 1))
    a("s_memtime s[%d:%d]" % (sreg + 6, sreg + 7))
    a("s_waitcnt lgkmcnt(0)")
    a("v_cmp_eq_u32 vcc, 0, v0")
    a("s_and_saveexec_b64 s[%d:%d], vcc" % (sreg + 2, sreg + 3))
    a("s_cbranch_execz %s" % lab)
    a("s_lshl_b32 s%d, s2, 7" % (sreg + 4))
    a("s_add_u32 s%d, s%d, %d" % (sreg + 4, sreg + 4, WS_STAMP + kidx * 65536 + slot * 8))
    a("s_add_u32 s%d, s26, s%d" % (sreg + 4, sreg + 4))
    a("s_addc_u32 s%d, s27, 0" % (sreg + 5))
    a("v_mov_b32 v252, s%d" % sreg); a("v_mov_b32 v253, s%d" % (sreg + 1))
    a("v_mov_b32 v251, 0")
    a("global_store_dwordx2 v251, v[252:253], s[%d:%d]" % (sreg + 4, sreg + 5))
    a("v_mov_b32 v252, s%d" % (sreg + 6)); a("v_mov_b32 v253, s%d" % (sreg + 7))
    a("s_nop 1")
    a("global_store_dwordx2 v251, v[252:253], s[%d:%d] offset:64" % (sreg + 4, sreg + 5))
    a.label(lab)
    a("s_mov_b64 exec, s[%d:%d]" % (sreg + 2, sreg + 3))

def prefetch_w(a, sM, sJ, sW, vl, sector, sa, sb, srdg, srdu, srdd, vdst, vt):
    t0, t1, t2, t3 = vt, vt + 1, vt + 2, vt + 3
    a("v_mul_u32_u24 v%d, 52, v%d" % (t0, vl))
    a("v_lshrrev_b32 v%d, 8, v%d" % (t0, t0))
    a("v_mul_u32_u24 v%d, 5, v%d" % (t1, t0))
    a("v_sub_u32 v%d, v%d, v%d" % (t1, vl, t1))
    a("s_lshl_b32 s%d, s%d, 2" % (sa, sM))
    a("s_add_u32 s%d, s%d, s%d" % (sa, sa, sW))
    a("s_mul_i32 s%d, s%d, 9" % (sa, sa))
    a("v_add_u32 v%d, s%d, v%d" % (t2, sa, t0))
    a("s_movk_i32 s%d, 9216" % sb)
    a("v_mul_lo_u32 v%d, v%d, s%d" % (t2, t2, sb))
    a("v_lshl_add_u32 v%d, v%d, 7, v%d" % (t2, t1, t2))
    a("v_cmp_gt_u32 vcc, 9, v%d" % t0)
    a("v_mov_b32 v%d, 0x7ff00000" % t3)
    a("s_nop 0")
    a("v_cndmask_b32 v%d, v%d, v%d, vcc" % (t2, t3, t2))
    a("s_mul_i32 s%d, s%d, 288" % (sa, sJ))
    a("s_and_b32 s%d, s%d, 1" % (sb, sJ))
    a("s_lshl_b32 s%d, s%d, 5" % (sb, sb))
    a("s_sub_u32 s%d, s%d, s%d" % (sa, sa, sb))
    a("s_lshl_b32 s%d, s%d, 1" % (sa, sa))
    n = 0
    for srd_ in (srdg, srdu):
        a("buffer_load_dword v%d, v%d, s[%d:%d], s%d offen" % (vdst, t2, srd_, srd_ + 3, sa)); n += 1
        if sector: a("buffer_load_dword v%d, v%d, s[%d:%d], s%d offen offset:64" % (vdst, t2, srd_, srd_ + 3, sa)); n += 1
    a("v_mul_u32_u24 v%d, 57, v0" % t0)
    a("v_lshrrev_b32 v%d, 9, v%d" % (t0, t0))
    a("v_mul_u32_u24 v%d, 9, v%d" % (t1, t0))
    a("v_sub_u32 v%d, v0, v%d" % (t1, t1))
    a("s_mul_i32 s%d, s%d, 288" % (sa, sJ))
    a("s_mul_i32 s%d, s%d, 18" % (sb, sM))
    a("s_add_u32 s%d, s%d, s%d" % (sa, sa, sb))
    a("v_add_u32 v%d, s%d, v%d" % (t2, sa, t0))
    a("s_movk_i32 s%d, 1152" % sb)
    a("v_mul_lo_u32 v%d, v%d, s%d" % (t2, t2, sb))
    a("v_lshl_add_u32 v%d, v%d, 7, v%d" % (t2, t1, t2))
    a("v_cmp_gt_u32 vcc, 18, v%d" % t0)
    a("s_nop 1")
    a("v_cndmask_b32 v%d, v%d, v%d, vcc" % (t2, t3, t2))
    a("buffer_load_dword v%d, v%d, s[%d:%d], 0 offen" % (vdst, t2, srdd, srdd + 3)); n += 1
    if sector: a("buffer_load_dword v%d, v%d, s[%d:%d], 0 offen offset:64" % (vdst, t2, srdd, srdd + 3)); n += 1
    return n

def mj_from_wg(a, sM, sJ, t0, t1):
    a("s_and_b32 s%d, s2, 7" % t0)
    a("s_lshr_b32 s%d, s2, 3" % t1)
    a("s_lshr_b32 s%d, s%d, 1" % (sM, t1))
    a("s_and_b32 s%d, s%d, 1" % (t1, t1))
    a("s_lshl_b32 s%d, s%d, 1" % (sJ, t0))
    a("s_add_u32 s%d, s%d, s%d" % (sJ, sJ, t1))

def k1(a):
    name = "prep_kernel"
    kernel_begin(a, name)
    NT = N_LN + N_DF + N_TAB
    a("s_cmp_ge_u32 s2, %d" % NT); a("s_cbranch_scc1 L_k1_done")
    load_ptrs(a)
    stamp(a, 0, 0)
    a("v_lshrrev_b32 v20, 6, v0")
    a("v_and_b32 v21, 63, v0")
    a("v_readfirstlane_b32 s48, v20")
    def do_prefetch():
        if not OPT["pf"]: return
        lab = a.newlabel("L_nopf")
        a("s_cmp_ge_u32 s2, 256"); a("s_cbranch_scc1 %s" % lab)
        mj_from_wg(a, 51, 52, 62, 63)
        srd(a, 68, 16, D * F * 2); srd(a, 72, 18, D * F * 2); srd(a, 76, 20, D * F * 2)
        prefetch_w(a, 51, 52, 48, 21, OPT["pf"] == 2, 62, 63, 68, 72, 76, 100, 101)
        a.label(lab)
    a("s_cmp_ge_u32 s2, %d" % N_LN); a("s_cbranch_scc1 L_k1_df")
    srd(a, 32, 4, S * D * 2)
    srd(a, 36, 26, S * D * 2, WS_XNF)
    srd(a, 40, 26, CF_BYTES, WS_CF)
    a("v_lshrrev_b32 v1, 4, v0")
    a("v_and_b32 v2, 15, v0")
    a("s_lshl_b32 s3, s2, 4")
    a("v_add_u32 v1, s3, v1")
    a("s_movk_i32 s28, 1152")
    a("v_mul_lo_u32 v3, v1, s28")
    a("v_lshl_add_u32 v3, v2, 3, v3")
    for i in range(9):
        a("buffer_load_dwordx2 v[%d:%d], v3, s[32:35], 0 offen offset:%d" % (8 + 2 * i, 9 + 2 * i, i * 128))
    do_prefetch()
    a("v_lshrrev_b32 v4, 5, v1")
    a("s_mov_b32 s29, 36864")
    a("v_mul_lo_u32 v4, v4, s29")
    a("v_lshrrev_b32 v5, 2, v2")
    a("v_lshl_add_u32 v4, v5, 10, v4")
    a("v_bfe_u32 v5, v2, 1, 1")
    a("v_lshl_add_u32 v4, v5, 9, v4")
    a("v_and_b32 v5, 31, v1")
    a("v_lshl_add_u32 v4, v5, 4, v4")
    a("v_and_b32 v5, 1, v2")
    a("v_lshl_add_u32 v4, v5, 3, v4")
    npf = (6 if OPT["pf"] == 2 else 3) if OPT["pf"] else 0
    a("s_waitcnt vmcnt(%d)" % npf)
    for i in range(18):
        a("v_lshlrev_b32 v%d, 16, v%d" % (32 + 2 * i, 8 + i))
        a("v_and_b32 v%d, 0xffff0000, v%d" % (33 + 2 * i, 8 + i))
    a("v_add_f32 v70, v32, v33")
    a("v_add_f32 v71, v34, v35")
    for i in range(4, 36, 2):
        a("v_add_f32 v70, v70, v%d" % (32 + i))
        a("v_add_f32 v71, v71, v%d" % (33 + i))
    a("v_add_f32 v70, v70, v71")
    def row_sum(r):
        for sh in (8, 4, 2, 1):
            a("s_nop 1")
            a("v_add_f32_dpp v%d, v%d, v%d row_ror:%d row_mask:0xf bank_mask:0xf" % (r, r, r, sh))
    row_sum(70)
    a("v_mul_f32 v70, 0x%08x, v70" % f2u(1.0 / 576))
    a("v_mov_b32 v72, 0"); a("v_mov_b32 v73, 0")
    for i in range(0, 36, 2):
        a("v_sub_f32 v74, v%d, v70" % (32 + i))
        a("v_sub_f32 v75, v%d, v70" % (33 + i))
        a("v_fmac_f32 v72, v74, v74")
        a("v_fmac_f32 v73, v75, v75")
    a("v_add_f32 v72, v72, v73")
    row_sum(72)
    a("v_mul_f32 v72, 0x%08x, v72" % f2u(1.0 / 576))
    a("v_cvt_pk_bf16_f32 v76, v70, v72")
    a("v_lshlrev_b32 v70, 16, v76")
    a("v_and_b32 v72, 0xffff0000, v76")
    a("v_add_f32 v72, 0x%08x, v72" % f2u(1e-5))
    a("v_cvt_pk_bf16_f32 v76, v72, v72")
    a("v_lshlrev_b32 v72, 16, v76")
    a("v_sqrt_f32 v72, v72")
    a("s_nop 0")
    a("v_cvt_pk_bf16_f32 v76, v72, v72")
    a("v_lshlrev_b32 v72, 16, v76")
    a("v_rcp_f32 v72, v72")
    a("v_mov_b32 v77, 0")
    for i in range(18):
        x0, x1 = 32 + 2 * i, 33 + 2 * i
        a("v_sub_f32 v%d, v%d, v70" % (x0, x0))
        a("v_sub_f32 v%d, v%d, v70" % (x1, x1))
        a("v_cvt_pk_bf16_f32 v76, v%d, v%d" % (x0, x1))
        a("v_lshlrev_b32 v%d, 16, v76" % x0)
        a("v_and_b32 v%d, 0xffff0000, v76" % x1)
        a("v_mul_f32 v%d, v%d, v72" % (x0, x0))
        a("v_mul_f32 v%d, v%d, v72" % (x1, x1))
        a("v_cvt_pk_bf16_f32 v%d, v%d, v%d" % (8 + i, x0, x1))
        a("v_lshlrev_b32 v%d, 16, v%d" % (x0, 8 + i))
        a("v_and_b32 v%d, 0xffff0000, v%d" % (x1, 8 + i))
        a("v_sub_f32 v%d, v%d, v%d" % (x0, x0, x1))
        a("v_add_f32 v77, v77, v%d" % x0)
    for i in range(9):
        a("s_mov_b32 s30, %d" % (i * 4096))
        a("buffer_store_dwordx2 v[%d:%d], v4, s[36:39], s30 offen" % (8 + 2 * i, 9 + 2 * i))
    row_sum(77)
    a("v_cvt_pk_bf16_f32 v77, v77, v77")
    a("v_mov_b32 v78, 0")
    a("v_lshlrev_b32 v79, 1, v1")
    a("v_add_u32 v79, %d, v79" % (288 * 8192))
    a("v_cmp_eq_u32 vcc, 0, v2")
    a("v_mov_b32 v80, 0x7ff00000")
    a("s_nop 0")
    a("v_cndmask_b32 v79, v80, v79, vcc")
    a("buffer_store_short v77, v79, s[40:43], 0 offen")
    a("s_movk_i32 s30, 4096")
    a("buffer_store_short v78, v79, s[40:43], s30 offen")
    stamp(a, 0, 1)
    a("s_branch L_k1_done")
    a.label("L_k1_df")
    a("s_cmp_ge_u32 s2, %d" % (N_LN + N_DF)); a("s_cbranch_scc1 L_k1_tab")
    a("s_sub_u32 s28, s2, %d" % N_LN)
    a("s_lshl_b32 s28, s28, 2")
    a("s_add_u32 s28, s28, s48")
    a("s_mul_hi_u32 s29, s28, %d" % (-(-(1 << 32) // 36)))
    a("s_mul_i32 s30, s29, 36")
    a("s_sub_u32 s30, s28, s30")
    a("s_cmp_ge_u32 s29, 9")
    a("s_cselect_b32 s32, s12, s10")
    a("s_cselect_b32 s33, s13, s11")
    a("s_cselect_b32 s31, 9, 0")
    a("s_mov_b32 s34, %d" % (D * D * 2)); a("s_mov_b32 s35, 0x00020000")
    a("s_sub_u32 s29, s29, s31")
    srd(a, 36, 26, DF_BYTES, WS_DF)
    a("v_and_b32 v1, 31, v21")
    a("s_lshl_b32 s29, s29, 5")
    a("v_add_u32 v1, s29, v1")
    a("s_movk_i32 s31, 1152")
    a("v_mul_lo_u32 v1, v1, s31")
    a("v_lshrrev_b32 v2, 5, v21")
    a("v_lshl_add_u32 v1, v2, 4, v1")
    a("s_lshl_b32 s30, s30, 5")
    a("buffer_load_dwordx4 v[8:11], v1, s[32:35], s30 offen")
    do_prefetch()
    a("v_lshlrev_b32 v3, 4, v21")
    a("s_lshl_b32 s28, s28, 10")
    a("s_waitcnt vmcnt(%d)" % npf if True else "")
    a("s_cmp_lt_u32 s2, 256"); a("s_cbranch_scc1 L_k1_df2")
    a("s_waitcnt vmcnt(0)")
    a.label("L_k1_df2")
    a("buffer_store_dwordx4 v[8:11], v3, s[36:39], s28 offen")
    a("s_branch L_k1_done")
    a.label("L_k1_tab")
    a("s_sub_u32 s28, s2, %d" % (N_LN + N_DF))
    a("s_lshl_b32 s28, s28, 2")
    a("s_add_u32 s28, s28, s48")
    a("s_cmp_ge_u32 s28, 38"); a("s_cbranch_scc1 L_k1_done")
    srd(a, 36, 26, TAB_BYTES, WS_TAB)
    a("v_and_b32 v1, 31, v21")
    a("v_lshrrev_b32 v2, 5, v21")
    a("v_lshlrev_b32 v3, 4, v21")
    a("s_lshl_b32 s29, s28, 10")
    a("s_cmp_ge_u32 s28, 22"); a("s_cbranch_scc1 L_k1_t3")
    a("s_cmp_ge_u32 s28, 6"); a("s_cbranch_scc1 L_k1_t2")
    a("s_and_b32 s30, s28, 1")
    a("s_lshl_b32 s30, s30, 4")
    a("v_lshl_add_u32 v4, v2, 3, s30")
    for j in range(8):
        a("v_add_u32 v5, %d, v4" % j)
        a("v_mul_u32_u24 v5, v5, v1")
        a("v_and_b32 v5, 31, v5")
        a("v_cvt_f32_u32 v5, v5")
        a("v_mul_f32 v5, 0x%08x, v5" % f2u(1.0 / 32))
        a("v_cos_f32 v%d, v5" % (8 + j))
        a("v_sin_f32 v%d, v5" % (16 + j))
    a("s_nop 0")
    a("s_cmp_lt_u32 s28, 2"); a("s_cbranch_scc1 L_k1_t1p")
    for j in range(8): a("v_mov_b32 v%d, v%d" % (8 + j, 16 + j))
    a("s_cmp_lt_u32 s28, 4"); a("s_cbranch_scc1 L_k1_t1p")
    for j in range(8): a("v_sub_f32 v%d, 0, v%d" % (8 + j, 16 + j))
    a.label("L_k1_t1p")
    for d in range(4): a("v_cvt_pk_bf16_f32 v%d, v%d, v%d" % (24 + d, 8 + 2 * d, 9 + 2 * d))
    a("buffer_store_dwordx4 v[24:27], v3, s[36:39], s29 offen")
    a("s_branch L_k1_done")
    a.label("L_k1_t2")
    a("s_sub_u32 s30, s28, 6")
    a("s_lshr_b32 s31, s30, 3")
    a("s_and_b32 s30, s30, 7")
    a("s_lshl_b32 s31, s31, 5")
    a("s_lshr_b32 s40, s30, 1"); a("s_lshl_b32 s40, s40, 3")
    a("s_add_u32 s31, s31, s40")
    a("s_and_b32 s40, s30, 1"); a("s_lshl_b32 s40, s40, 1")
    a("s_add_u32 s31, s31, s40")
    a("v_lshl_add_u32 v4, v2, 2, s31")
    for i in range(2):
        a("v_add_u32 v5, %d, v4" % i)
        a("v_mul_u32_u24 v5, v5, v1")
        a("v_cvt_f32_u32 v5, v5")
        a("v_mul_f32 v5, 0x%08x, v5" % f2u(1.0 / 2048))
        a("v_cos_f32 v%d, v5" % (24 + 2 * i))
        a("v_sin_f32 v%d, v5" % (25 + 2 * i))
    a("s_nop 1")
    a("buffer_store_dwordx4 v[24:27], v3, s[36:39], s29 offen")
    a("s_branch L_k1_done")
    a.label("L_k1_t3")
    a("s_sub_u32 s30, s28, 22")
    a("s_lshr_b32 s31, s30, 3")
    a("s_bfe_u32 s40, s30, 0x10002")
    a("s_and_b32 s30, s30, 3")
    a("s_lshl_b32 s40, s40, 5")
    a("v_add_u32 v1, s40, v1")
    a("s_lshl_b32 s30, s30, 4")
    a("v_lshl_add_u32 v4, v2, 2, s30")
    for j in range(8):
        a("v_add_u32 v5, %d, v4" % (j if j < 4 else 8 + j - 4))
        a("v_mul_u32_u24 v5, v5, v1")
        a("v_and_b32 v5, 63, v5")
        a("v_cvt_f32_u32 v5, v5")
        a("v_mul_f32 v5, 0x%08x, v5" % f2u(1.0 / 64))
        a("v_cos_f32 v%d, v5" % (8 + j))
        a("v_sin_f32 v%d, v5" % (16 + j))
    a("s_nop 0")
    a("s_cmp_eq_u32 s31, 0"); a("s_cbranch_scc1 L_k1_t3p")
    for j in range(8): a("v_mov_b32 v%d, v%d" % (8 + j, 16 + j))
    a.label("L_k1_t3p")
    for d in range(4): a("v_cvt_pk_bf16_f32 v%d, v%d, v%d" % (24 + d, 8 + 2 * d, 9 + 2 * d))
    a("buffer_store_dwordx4 v[24:27], v3, s[36:39], s29 offen")
    a.label("L_k1_done")
    a("s_endpgm")
    return name

ACC = [16, 80]
XOV = 144
AF = 176
GT = 200
HP = 216
V_LANE16 = 1
V_DM0, V_DM1 = 2, 3
V_DH0, V_DH1 = 4, 5
V_TR = [6, 7, 8, 9]
V_TRH = [10, 11]
V_H = 12
V_HH = 13
V_C0 = 14
V_D2 = 224
V_TR2 = [225, 226, 227, 228]
V_HR = 229
V_CF = 230
BR = 232
S_W = 32; S_X = 36; S_D = 40; S_P = 44
S_WAVE, S_TM, S_FH, S_M, S_J = 48, 49, 50, 51, 52
S_FB, S_FHB = 53, 54
S_LDSW = 55
S_COL = [56, 57, 58, 59, 60]
S_OFF = 61; S_T0 = 62; S_T1 = 63; S_C1 = 64
S_PB = 65; S_LDS2 = 66
S_WD0, S_WD1, S_OFF2 = 67, 68, 69
S_XB = 70
S_DF = 72
S_CF = 76
S_DFB = 80; S_CFB = 81

def xreg(ks, t):
    i = ks * 2 + t
    if i < 64: return "a[%d:%d]" % (4 * i, 4 * i + 3)
    r = XOV + 4 * (i - 64)
    return "v[%d:%d]" % (r, r + 3)

def gelu_items(accbase, tiles):
    items = []
    c1 = "s%d" % S_C1
    for n, (ti, off, areg) in enumerate(tiles):
        base = accbase + 16 * ti
        hp = HP + 4 * (n & 1)
        for pr in range(4):
            g0, g1 = base + 2 * pr, base + 2 * pr + 1
            u0, u1 = g0 + 8, g1 + 8
            t0, t1 = GT + 4 * (pr & 1), GT + 4 * (pr & 1) + 1
            m0, m1 = t0 + 2, t0 + 3
            items += [
                "v_mul_f32 v%d, v%d, v%d" % (t0, g0, g0),
                "v_mul_f32 v%d, v%d, v%d" % (t1, g1, g1),
                "v_fma_f32 v%d, v%d, %s, v%d" % (t0, t0, c1, V_C0),
                "v_fma_f32 v%d, v%d, %s, v%d" % (t1, t1, c1, V_C0),
                "v_mul_f32 v%d, v%d, v%d" % (t0, t0, g0),
                "v_mul_f32 v%d, v%d, v%d" % (t1, t1, g1),
                "v_exp_f32 v%d, v%d" % (t0, t0),
                "v_exp_f32 v%d, v%d" % (t1, t1),
                "v_mul_f32 v%d, v%d, v%d" % (m0, g0, u0),
                "v_mul_f32 v%d, v%d, v%d" % (m1, g1, u1),
                "v_add_f32 v%d, 1.0, v%d" % (t0, t0),
                "v_add_f32 v%d, 1.0, v%d" % (t1, t1),
                "v_rcp_f32 v%d, v%d" % (t0, t0),
                "v_rcp_f32 v%d, v%d" % (t1, t1),
                "v_mul_f32 v%d, v%d, v%d" % (m0, m0, t0),
                "v_mul_f32 v%d, v%d, v%d" % (m1, m1, t1),
                "v_cvt_pk_bf16_f32 v%d, v%d, v%d" % (hp + pr, m0, m1),
            ]
        items.append(("lds", "ds_write_b128 v%d, v[%d:%d] offset:%d" % (areg, hp, hp + 3, off), "hw"))
    return items

def k2(a):
    R = OPT["R"]; ABLS = OPT["abl"]
    HB = R * 8192
    name = "ffn_kernel"
    kernel_begin(a, name)
    a("s_cmp_ge_u32 s2, 256"); a("s_cbranch_scc1 L_ffn_done")
    load_ptrs(a)
    stamp(a, 1, 0)
    st = Stream(a)
    def emit_item(it):
        if isinstance(it, tuple):
            kind = it[0]
            if kind == "lds": st.lds(it[1], it[2])
            elif kind == "vm": st.vmem(it[1], it[2])
            elif kind == "bar":
                st.wait(vm=it[1])
                if "nobar" not in ABLS: st("s_barrier")
            else: raise ValueError(kind)
        elif isinstance(it, list):
            for x in it: emit_item(x)
        else:
            st(it)
    a("v_lshrrev_b32 v20, 6, v0")
    a("v_and_b32 v21, 63, v0")
    a("v_readfirstlane_b32 s%d, v20" % S_WAVE)
    mj_from_wg(a, S_M, S_J, S_T0, S_T1)
    a("s_lshr_b32 s%d, s%d, 1" % (S_TM, S_WAVE))
    a("s_and_b32 s%d, s%d, 1" % (S_FH, S_WAVE))
    a("s_mul_i32 s%d, s%d, 288" % (S_T0, S_J))
    a("s_lshl_b32 s%d, s%d, 5" % (S_FB, S_T1))
    a("s_add_u32 s%d, s%d, s%d" % (S_FB, S_FB, S_T0))
    a("s_cmp_eq_u32 s%d, 0" % S_T1)
    a("s_cselect_b32 s%d, 256, 0" % S_FHB)
    a("s_add_u32 s%d, s%d, s%d" % (S_FHB, S_FHB, S_T0))
    for s_ in range(4):
        a("s_add_u32 s%d, s%d, %d" % (S_COL[s_], S_FB, 64 * s_))
        a("s_lshl_b32 s%d, s%d, 1" % (S_COL[s_], S_COL[s_]))
    a("s_lshl_b32 s%d, s%d, 5" % (S_COL[4], S_T1))
    a("s_sub_u32 s%d, s%d, s%d" % (S_COL[4], S_FHB, S_COL[4]))
    a("s_lshl_b32 s%d, s%d, 1" % (S_COL[4], S_COL[4]))
    a("s_cmp_ge_u32 s%d, 2" % S_WAVE)
    a("s_cselect_b32 s%d, s18, s16" % S_W)
    a("s_cselect_b32 s%d, s19, s17" % (S_W + 1))
    a("s_mov_b32 s%d, %d" % (S_W + 2, D * F * 2)); a("s_mov_b32 s%d, 0x00020000" % (S_W + 3))
    srd(a, S_X, 26, S * D * 2, WS_XNF)
    a("s_lshl_b32 s%d, s%d, 11" % (S_LDSW, S_WAVE))
    a("v_lshlrev_b32 v%d, 4, v21" % V_LANE16)
    a("v_lshrrev_b32 v22, 3, v21")
    a("s_lshl_b32 s%d, s%d, 4" % (S_T0, S_FH))
    a("v_add_u32 v22, s%d, v22" % S_T0)
    a("s_movk_i32 s%d, 9216" % S_T0)
    a("v_mul_lo_u32 v22, v22, s%d" % S_T0)
    a("v_bfe_u32 v23, v21, 4, 1")
    a("s_lshl_b32 s%d, s%d, 1" % (S_T0, S_TM))
    a("v_or_b32 v23, s%d, v23" % S_T0)
    a("v_bfe_u32 v24, v21, 1, 2")
    a("v_xor_b32 v24, v24, v23")
    a("v_and_b32 v25, 1, v21")
    a("v_lshlrev_b32 v25, 4, v25")
    a("v_lshl_add_u32 v25, v24, 5, v25")
    a("v_add_u32 v%d, v22, v25" % V_DM0)
    a("v_add_u32 v%d, %d, v%d" % (V_DM1, 8 * 9216, V_DM0))
    a("s_lshl_b32 s%d, s%d, 2" % (S_T0, S_M))
    a("s_lshl_b32 s%d, s%d, 1" % (S_T1, S_TM))
    a("s_add_u32 s%d, s%d, s%d" % (S_T0, S_T0, S_T1))
    a("s_mul_i32 s%d, s%d, 36864" % (S_XB, S_T0))

    def dma_items(g):
        stg, s_ = divmod(g, 18)
        if stg > 4: return []
        if "nodma" in ABLS and g >= 8: return []
        slot = g % R
        v0_, v1_ = (V_DH0, V_DH1) if stg == 4 else (V_DM0, V_DM1)
        g0 = ["s_add_u32 s%d, s%d, %d" % (S_OFF, S_COL[stg], s_ * 32 * 9216),
              "s_add_u32 m0, s%d, %d" % (S_LDSW, slot * 8192),
              "NOPSLOT",
              ("vm", "buffer_load_dwordx4 v%d, s[%d:%d], s%d offen lds" % (v0_, S_W, S_W + 3, S_OFF), ("W", g))]
        g1 = ["s_add_u32 m0, s%d, %d" % (S_LDSW, slot * 8192 + 1024),
              "NOPSLOT",
              ("vm", "buffer_load_dwordx4 v%d, s[%d:%d], s%d offen lds" % (v1_, S_W, S_W + 3, S_OFF), ("W", g))]
        return [g0, g1]
    def emit_group(grp, filler=None):
        for it in grp:
            if it == "NOPSLOT":
                if not (filler and filler()): st("s_nop 0")
            else: emit_item(it)
    def xload_items(ks):
        out = []
        for t in range(2):
            off = (t * 36 + ks) * 1024
            out.append(["s_add_u32 s%d, s%d, %d" % (S_OFF2, S_XB, off),
                        ("vm", "buffer_load_dwordx4 %s, v%d, s[%d:%d], s%d offen" % (xreg(ks, t), V_LANE16, S_X, S_X + 3, S_OFF2), ("X", ks))])
        return out
    NPRE = R - 1
    XA = OPT["xahead"]
    for s_ in range(NPRE):
        for grp in dma_items(s_): emit_group(grp)
        for ks in (2 * s_, 2 * s_ + 1):
            if ks < XA:
                for it in xload_items(ks): emit_item(it)
    srd(a, S_D, 20, D * F * 2)
    srd(a, S_P, 26, PART_BYTES, WS_PART)
    srd(a, S_DF, 26, DF_BYTES, WS_DF)
    srd(a, S_CF, 26, CF_BYTES, WS_CF)
    a("s_lshl_b32 s%d, s%d, 10" % (S_LDS2, S_WAVE))
    a("s_mov_b32 s%d, 0x%08x" % (S_C1, f2u(-2.0 * 0.7978845608028654 * 1.4426950408889634 * 0.044715)))
    a("v_mov_b32 v%d, 0x%08x" % (V_C0, f2u(-2.0 * 0.7978845608028654 * 1.4426950408889634)))
    a("v_lshrrev_b32 v24, 1, v24")
    a("s_and_b32 s%d, s%d, 1" % (S_T0, S_J))
    a("v_cmp_eq_u32 vcc, s%d, v24" % S_T0)
    a("v_mov_b32 v26, 0x7ff00000")
    a("s_nop 0")
    a("v_cndmask_b32 v%d, v26, v%d, vcc" % (V_DH0, V_DM0))
    a("v_cndmask_b32 v%d, v26, v%d, vcc" % (V_DH1, V_DM1))
    a("v_bfe_u32 v22, v21, 4, 1")
    a("v_bfe_u32 v23, v21, 5, 1")
    a("v_bfe_u32 v24, v21, 2, 2")
    a("v_and_b32 v25, 3, v21")
    a("v_lshlrev_b32 v26, 12, v22")
    a("v_lshl_add_u32 v27, v23, 3, v24")
    a("v_lshl_add_u32 v26, v27, 7, v26")
    a("v_lshl_add_u32 v26, v25, 3, v26")
    a("v_lshrrev_b32 v27, 1, v24")
    a("v_lshl_or_b32 v27, v22, 1, v27")
    a("s_lshl_b32 s%d, s%d, 1" % (S_T0, S_FH))
    a("v_xor_b32 v28, s%d, v27" % S_T0)
    a("v_lshl_add_u32 v%d, v28, 5, v26" % V_TR[0])
    a("v_xor_b32 v28, 1, v28")
    a("v_lshl_add_u32 v%d, v28, 5, v26" % V_TR[1])
    a("v_add_u32 v%d, 49152, v%d" % (V_TR[2], V_TR[0]))
    a("v_add_u32 v%d, 49152, v%d" % (V_TR[3], V_TR[1]))
    a("s_and_b32 s%d, s%d, 1" % (S_T0, S_J))
    a("s_lshl_b32 s%d, s%d, 1" % (S_T0, S_T0))
    a("s_add_u32 s%d, s%d, s%d" % (S_T0, S_T0, S_FH))
    a("v_xor_b32 v28, s%d, v27" % S_T0)
    a("v_lshl_add_u32 v%d, v28, 5, v26" % V_TRH[0])
    a("v_add_u32 v%d, 49152, v%d" % (V_TRH[1], V_TRH[0]))
    a("s_mul_i32 s%d, s%d, 36" % (S_T0, S_TM))
    a("s_lshl_b32 s%d, s%d, 1" % (S_T1, S_FH))
    a("s_add_u32 s%d, s%d, s%d" % (S_T1, S_T1, S_T0))
    a("s_lshl_b32 s%d, s%d, 10" % (S_T1, S_T1))
    a("s_add_u32 s%d, s%d, %d" % (S_T1, S_T1, HB))
    a("v_add_u32 v%d, s%d, v%d" % (V_H, S_T1, V_LANE16))
    a("s_add_u32 s%d, s%d, 16" % (S_T1, S_T0))
    a("s_add_u32 s%d, s%d, s%d" % (S_T1, S_T1, S_FH))
    a("s_lshl_b32 s%d, s%d, 10" % (S_T1, S_T1))
    a("s_add_u32 s%d, s%d, %d" % (S_T1, S_T1, HB))
    a("v_add_u32 v%d, s%d, v%d" % (V_HH, S_T1, V_LANE16))
    a("s_lshl_b32 s%d, s%d, 10" % (S_T1, S_T0))
    a("s_add_u32 s%d, s%d, %d" % (S_T1, S_T1, HB))
    a("v_add_u32 v%d, s%d, v%d" % (V_HR, S_T1, V_LANE16))
    a("v_lshrrev_b32 v22, 3, v21")
    a("s_lshl_b32 s%d, s%d, 3" % (S_T0, S_WAVE))
    a("v_add_u32 v22, s%d, v22" % S_T0)
    a("s_movk_i32 s%d, 1152" % S_T0)
    a("v_mul_lo_u32 v22, v22, s%d" % S_T0)
    a("v_bfe_u32 v23, v21, 4, 1")
    a("v_lshlrev_b32 v23, 1, v23")
    a("v_bfe_u32 v24, v21, 1, 2")
    a("v_xor_b32 v24, v24, v23")
    a("v_and_b32 v25, 1, v21")
    a("v_lshlrev_b32 v25, 4, v25")
    a("v_lshl_add_u32 v25, v24, 5, v25")
    a("v_add_u32 v%d, v22, v25" % V_D2)
    a("v_bfe_u32 v22, v21, 4, 1")
    a("v_bfe_u32 v23, v21, 5, 1")
    a("v_bfe_u32 v24, v21, 2, 2")
    a("v_and_b32 v25, 3, v21")
    a("v_lshl_add_u32 v26, v23, 2, v24")
    a("v_lshlrev_b32 v26, 7, v26")
    a("v_lshl_add_u32 v26, v25, 3, v26")
    a("v_and_b32 v27, 2, v24")
    a("s_lshl_b32 s%d, s%d, 1" % (S_T0, S_FH))
    a("v_or_b32 v28, s%d, v22" % S_T0)
    a("v_xor_b32 v28, v28, v27")
    a("v_lshl_add_u32 v%d, v28, 5, v26" % V_TR2[0])
    for b in range(1, 4):
        a("v_add_u32 v%d, %d, v%d" % (V_TR2[b], 36864 * b, V_TR2[0]))
    a("s_lshl_b32 s%d, s%d, 4" % (S_T0, S_J))
    a("s_add_u32 s%d, s%d, s%d" % (S_T0, S_T0, S_M))
    a("s_lshl_b32 s%d, s%d, 2" % (S_T0, S_T0))
    a("s_lshl_b32 s%d, s%d, 1" % (S_T1, S_TM))
    a("s_add_u32 s%d, s%d, s%d" % (S_T0, S_T0, S_T1))
    a("s_mul_i32 s%d, s%d, %d" % (S_PB, S_T0, 18 * 2048))
    a("s_lshl_b32 s%d, s%d, 11" % (S_T1, S_FH))
    a("s_add_u32 s%d, s%d, s%d" % (S_PB, S_PB, S_T1))
    a("s_mul_i32 s%d, s%d, 1152" % (S_WD0, S_FB))
    a("s_mul_i32 s%d, s%d, 1152" % (S_WD1, S_FHB))
    a("s_lshl_b32 s%d, s%d, 1" % (S_T0, S_J))
    a("s_add_u32 s%d, s%d, s%d" % (S_T0, S_T0, S_FH))
    a("s_mul_i32 s%d, s%d, 36864" % (S_DFB, S_T0))
    a("s_cmp_ge_u32 s%d, 9" % S_T0)
    a("s_cselect_b32 s%d, 9, 0" % S_T1)
    a("s_sub_u32 s%d, s%d, s%d" % (S_T0, S_T0, S_T1))
    a("s_lshl_b32 s%d, s%d, 18" % (S_CFB, S_T0))
    a("s_cselect_b32 s%d, 4096, 0" % S_T1)
    a("s_lshl_b32 s%d, s%d, 1" % (S_T0, S_J))
    a("s_add_u32 s%d, s%d, s%d" % (S_T0, S_T0, S_FH))
    a("s_cmp_ge_u32 s%d, 9" % S_T0)
    a("s_cselect_b32 s%d, 4096, 0" % S_T1)
    a("s_add_u32 s%d, s%d, s%d" % (S_CFB, S_CFB, S_T1))
    a("s_lshl_b32 s%d, s%d, 8" % (S_T0, S_M))
    a("s_add_u32 s%d, s%d, s%d" % (S_CFB, S_CFB, S_T0))
    a("s_lshl_b32 s%d, s%d, 7" % (S_T0, S_TM))
    a("s_add_u32 s%d, s%d, s%d" % (S_CFB, S_CFB, S_T0))
    a("v_and_b32 v22, 31, v21")
    a("v_lshlrev_b32 v22, 13, v22")
    a("v_lshrrev_b32 v23, 5, v21")
    a("v_lshl_add_u32 v%d, v23, 4, v22" % V_CF)
    stamp(a, 1, 1)

    HI = 49152
    def trread(g, kk, half):
        slot = g % R
        gks = g * 2 + kk
        buf = gks % 3
        out = []
        ncs = 1 if half else 2
        for c in range(ncs):
            for q in range(2):
                off = slot * 8192 + kk * 2048 + q * 512
                hi = off >= HI
                if half: areg = V_TRH[1 if hi else 0]
                else: areg = V_TR[c + (2 if hi else 0)]
                if hi: off -= HI
                r = AF + (buf * 2 + c) * 4 + q * 2
                out.append(("lds", "ds_read_b64_tr_b16 v[%d:%d], v%d offset:%d" % (r, r + 1, areg, off), ("A", gks)))
        return out
    B = OPT["B"]
    NG = 5 * 18
    st.wait(vm=[("W", i) for i in range(B)])
    st("s_barrier")
    for kk in range(2):
        for it in trread(0, kk, False): emit_item(it)
    next_dma = [NPRE]
    dma_pending = []
    def stage(stg, accset, gelu_q):
        half = stg == 4
        ncs = 1 if half else 2
        gq = list(gelu_q) if "nogelu" not in ABLS else []
        nm_total = 36 * ncs * 2
        per = len(gq) / float(nm_total - 6)
        state = {"acc": 0.0, "em": 0}
        def pop_gelu():
            if gq:
                emit_item(gq.pop(0)); state["em"] += 1
                return True
            return False
        mi = 0
        since_dma = 99
        xq = []
        for ks in range(36):
            g = stg * 18 + ks // 2
            gks = stg * 36 + ks
            buf = gks % 3
            g2, kk2 = divmod(gks + 2, 2)
            bar = None
            if kk2 == 0 and g2 % B == 0 and g2 < NG:
                bar = [("W", i) for i in range(g2, min(g2 + B, NG))]
            reads = trread(g2, kk2, g2 // 18 == 4) if (g2 < NG and "notr" not in ABLS) else []
            if stg == 0 and ks + XA < 36: xq.extend(xload_items(ks + XA))
            st.wait(vm=[("X", ks)] if stg == 0 else [], lg=[("A", gks)])
            ng = ncs * 2
            k = 0
            for c in range(ncs):
                for t in range(2):
                    ti = c * 2 + t
                    d = ACC[accset] + 16 * ti
                    ar = AF + (buf * 2 + c) * 4
                    src = "0" if ks == 0 else "v[%d:%d]" % (d, d + 15)
                    st("v_mfma_f32_32x32x16_bf16 v[%d:%d], v[%d:%d], %s, %s" % (d, d + 15, ar, ar + 3, xreg(ks, t), src))
                    mi += 1
                    if k == 0 and bar is not None:
                        emit_item(("bar", bar))
                        while next_dma[0] < NG and next_dma[0] - R <= g2 - 2:
                            dma_pending.extend(dma_items(next_dma[0])); next_dma[0] += 1
                    lo = k * len(reads) // ng; hi_ = (k + 1) * len(reads) // ng
                    for it in reads[lo:hi_]: emit_item(it)
                    since_dma += 1
                    did = False
                    if xq and k in (1, 3):
                        emit_item(xq.pop(0)); did = True
                    elif dma_pending and since_dma >= OPT.get("dmagap", 4 if not half else 2) and not (k == 0 and bar is not None):
                        emit_group(dma_pending.pop(0), pop_gelu if mi > 6 else None)
                        since_dma = 0; did = True
                    if mi > 6:
                        state["acc"] += per
                        n = 0
                        cap = OPT["gcap"] - (2 if did else 0)
                        while gq and state["em"] < state["acc"] and n < cap:
                            pop_gelu(); n += 1
                    k += 1
        assert not xq
        while gq: pop_gelu()

    def full_tiles(stg):
        return [(c * 2 + t, (t * 18 + c) * 1024 + stg * 4096, V_H) for c in range(2) for t in range(2)]
    stage(0, 0, [])
    stamp(a, 1, 2)
    stage(1, 1, gelu_items(ACC[0], full_tiles(0)))
    stage(2, 0, gelu_items(ACC[1], full_tiles(1)))
    stage(3, 1, gelu_items(ACC[0], full_tiles(2)))
    stage(4, 0, gelu_items(ACC[1], full_tiles(3)))
    assert not dma_pending
    stamp(a, 1, 3)
    def wd_groups(b):
        buf = b % 4
        out = []
        for i in range(9):
            base = S_WD0 if i < 8 else S_WD1
            off = (32 * i * 1152 if i < 8 else 0) + b * 128
            out.append(["s_add_u32 s%d, s%d, %d" % (S_OFF, base, off),
                        "s_add_u32 m0, s%d, %d" % (S_LDS2, buf * 36864 + i * 4096),
                        "NOPSLOT",
                        ("vm", "buffer_load_dwordx4 v%d, s[%d:%d], s%d offen lds" % (V_D2, S_D, S_D + 3, S_OFF), ("D", b))])
        return out
    st.wait_all(vm=False, lg=True)
    st("s_barrier")
    tail = gelu_items(ACC[0], [(t, t * 18 * 1024, V_HH) for t in range(2)])
    a("s_cmp_ge_u32 s%d, 9" % S_J)
    a("s_cbranch_scc1 L_ffn_noa1")
    vm_save, lg_save = list(st.vm), list(st.lg)
    NB = 10
    def breg(ks):
        i = ks % NB
        r = (AF + 4 * i) if i < 6 else (BR + 4 * (i - 6))
        return r
    def bload(ks):
        r = breg(ks)
        return ["s_add_u32 s%d, s%d, %d" % (S_OFF2, S_DFB, ks * 1024),
                ("vm", "buffer_load_dwordx4 v[%d:%d], v%d, s[%d:%d], s%d offen" % (r, r + 3, V_LANE16, S_DF, S_DF + 3, S_OFF2), ("B", ks))]
    for ks in range(NB - 1): emit_item(bload(ks))
    wdq = wd_groups(0) + wd_groups(1)
    for _ in range(4): emit_group(wdq.pop(0))
    A1ACC = ACC[1]
    tq = list(tail)
    for ks in range(36):
        st.wait(vm=[("B", ks)])
        for t in range(2):
            d = A1ACC + 16 * t
            br = breg(ks)
            src = "0" if ks == 0 else "v[%d:%d]" % (d, d + 15)
            st("v_mfma_f32_32x32x16_bf16 v[%d:%d], %s, v[%d:%d], %s" % (d, d + 15, xreg(ks, t), br, br + 3, src))
            if t == 0 and ks + NB - 1 < 36:
                emit_item(bload(ks + NB - 1))
            elif t == 1 and wdq and ks % 2 == 1:
                emit_group(wdq.pop(0))
            if ks >= 2:
                for _ in range(3):
                    if tq: emit_item(tq.pop(0))
    assert not tq and not wdq, (len(tq), len(wdq))
    st("s_nop 15"); st("s_nop 3")
    for t in range(2):
        pk = GT + 8 * 0 if t == 0 else HP
        for dd in range(8):
            st("v_cvt_pk_bf16_f32 v%d, v%d, v%d" % (pk + dd, A1ACC + 16 * t + 2 * dd, A1ACC + 16 * t + 2 * dd + 1))
        st("s_nop 1")
        st("v_permlane32_swap_b32 v%d, v%d" % (pk + 0, pk + 2))
        st("v_permlane32_swap_b32 v%d, v%d" % (pk + 1, pk + 3))
        st("v_permlane32_swap_b32 v%d, v%d" % (pk + 4, pk + 6))
        st("v_permlane32_swap_b32 v%d, v%d" % (pk + 5, pk + 7))
        st("s_add_u32 s%d, s%d, %d" % (S_OFF2, S_CFB, t * 64))
        st("s_nop 0")
        st.vmem("buffer_store_dwordx4 v[%d:%d], v%d, s[%d:%d], s%d offen" % (pk, pk + 3, V_CF, S_CF, S_CF + 3, S_OFF2), "CF")
        st.vmem("buffer_store_dwordx4 v[%d:%d], v%d, s[%d:%d], s%d offen offset:32" % (pk + 4, pk + 7, V_CF, S_CF, S_CF + 3, S_OFF2), "CF")
    a("s_branch L_ffn_join")
    vm_a = list(st.vm)
    a.label("L_ffn_noa1")
    st.vm, st.lg = vm_save, lg_save
    for grp in wd_groups(0) + wd_groups(1): emit_group(grp)
    for it in tail: emit_item(it)
    a.label("L_ffn_join")
    st.wait_all(vm=False, lg=True)
    st("s_barrier")
    for t in range(2):
        for ci in range(18):
            i = t * 18 + ci
            st.lds("ds_read_b128 a[%d:%d], v%d offset:%d" % (4 * i, 4 * i + 3, V_HR, i * 1024), ("H", i))
    st.wait_all(vm=False, lg=True)
    st("s_waitcnt vmcnt(4)")
    st("s_barrier")
    st.vm = [("D", 1)] * 4
    for grp in wd_groups(2): emit_group(grp)
    stamp(a, 1, 4)
    A2 = 176; ACC2 = [16, 48]; PK = 200
    def trread2(b, ci):
        gk = b * 18 + ci
        r = A2 + (gk % 4) * 4
        return [("lds", "ds_read_b64_tr_b16 v[%d:%d], v%d offset:%d" % (r + 2 * q, r + 2 * q + 1, V_TR2[b % 4], ci * 2048 + q * 1024), ("A2", gk)) for q in range(2)]
    def epi_items(b):
        items = []
        acc = ACC2[b % 2]
        for t in range(2):
            pk = PK + 8 * t
            for d in range(8):
                items.append("v_cvt_pk_bf16_f32 v%d, v%d, v%d" % (pk + d, acc + 16 * t + 2 * d, acc + 16 * t + 2 * d + 1))
            for q in range(2):
                items.append(["s_add_u32 s%d, s%d, %d" % (S_OFF2, S_PB, t * 18 * 2048 + b * 2 * 2048),
                              ("vm", "buffer_store_dwordx4 v[%d:%d], v%d, s[%d:%d], s%d offen offset:%d %s" % (pk + 4 * q, pk + 4 * q + 3, V_LANE16, S_P, S_P + 3, S_OFF2, q * 1024, OPT["stflags"]), ("P", b))])
        return items
    for ci in range(3):
        for it in trread2(0, ci): emit_item(it)
    pend = list(wd_groups(3))
    for b in range(9):
        eq = epi_items(b - 1) if b > 0 else []
        mi = 0
        since = 99
        for ci in range(18):
            gk = b * 18 + ci
            nb, nci = divmod(gk + 3, 18)
            reads = trread2(nb, nci) if nb < 9 else []
            st.wait(lg=[("A2", gk)])
            for t in range(2):
                d = ACC2[b % 2] + 16 * t
                ar = A2 + (gk % 4) * 4
                hr = (t * 18 + ci) * 4
                src = "0" if ci == 0 else "v[%d:%d]" % (d, d + 15)
                st("v_mfma_f32_32x32x16_bf16 v[%d:%d], v[%d:%d], a[%d:%d], %s" % (d, d + 15, ar, ar + 3, hr, hr + 3, src))
                mi += 1
                isbar = (t == 0 and ci == 15 and b + 1 < 9)
                if isbar:
                    emit_item(("bar", [("D", b + 1)]))
                    if b >= 1 and b + 3 <= 8:
                        pend.extend(wd_groups(b + 3))
                if reads: emit_item(reads[t])
                since += 1
                vm_done = False
                if pend and since >= 3 and not isbar:
                    emit_group(pend.pop(0)); since = 0; vm_done = True
                if mi > 4 and eq and not vm_done:
                    it = eq.pop(0)
                    if isinstance(it, list):
                        if since >= 2:
                            emit_item(it); since = 0
                        else: eq.insert(0, it)
                    else:
                        emit_item(it)
                        if eq and not isinstance(eq[0], list): emit_item(eq.pop(0))
        while eq: emit_item(eq.pop(0))
    assert not pend
    st("s_nop 15"); st("s_nop 3")
    for it in epi_items(8): emit_item(it)
    stamp(a, 1, 5)
    a.label("L_ffn_done")
    a("s_endpgm")
    return name, max(R * 8192 + 73728, 147456)

def k3(a):
    name = "fin_kernel"
    kernel_begin(a, name)
    a("s_cmp_ge_u32 s2, %d" % (N_FFT + N_RED)); a("s_cbranch_scc1 L_k3_done")
    load_ptrs(a)
    stamp(a, 2, 0)
    a("v_lshrrev_b32 v1, 6, v0")
    a("v_and_b32 v2, 63, v0")
    a("v_readfirstlane_b32 s48, v1")
    a("s_cmp_ge_u32 s2, %d" % N_FFT); a("s_cbranch_scc1 L_k3_red")
    a("s_lshl_b32 s49, s2, 2")
    a("s_add_u32 s49, s49, s48")
    a("s_cmp_gt_u32 s49, 288"); a("s_cbranch_scc1 L_k3_fft_sig")
    srd(a, 32, 26, CF_BYTES, WS_CF)
    srd(a, 36, 26, TAB_BYTES, WS_TAB)
    srd(a, 40, 26, YT_BYTES, WS_YT)
    a("v_lshrrev_b32 v3, 3, v2")
    a("v_lshlrev_b32 v3, 7, v3")
    a("v_bfe_u32 v4, v2, 4, 1")
    a("v_lshlrev_b32 v4, 1, v4")
    a("v_bfe_u32 v5, v2, 1, 2")
    a("v_xor_b32 v5, v5, v4")
    a("v_lshl_add_u32 v3, v5, 5, v3")
    a("v_and_b32 v5, 1, v2")
    a("v_lshl_add_u32 v3, v5, 4, v3")
    a("s_lshl_b32 s50, s49, 13")
    a("s_lshl_b32 s51, s48, 13")
    for i in range(8):
        a("s_add_u32 s52, s50, %d" % (i * 1024))
        a("s_add_u32 m0, s51, %d" % (i * 1024))
        a("s_nop 0")
        a("buffer_load_dwordx4 v3, s[32:35], s52 offen lds")
    a("v_lshlrev_b32 v6, 4, v2")
    for i in range(6):
        a("s_movk_i32 s52, %d" % (i * 1024))
        a("buffer_load_dwordx4 v[%d:%d], v6, s[36:39], s52 offen" % (64 + 4 * i, 67 + 4 * i))
    for i in range(16):
        a("s_movk_i32 s52, %d" % ((6 + i) * 1024))
        a("buffer_load_dwordx4 v[%d:%d], v6, s[36:39], s52 offen" % (96 + 4 * i, 99 + 4 * i))
    a("v_bfe_u32 v8, v2, 4, 1")
    a("v_bfe_u32 v9, v2, 5, 1")
    a("v_bfe_u32 v10, v2, 2, 2")
    a("v_and_b32 v11, 3, v2")
    a("v_lshl_add_u32 v12, v9, 3, v10")
    a("v_lshlrev_b32 v12, 7, v12")
    a("v_lshl_add_u32 v12, v11, 3, v12")
    a("v_add_u32 v12, s51, v12")
    a("v_and_b32 v13, 2, v10")
    a("v_xor_b32 v14, v8, v13")
    a("v_lshl_add_u32 v16, v14, 5, v12")
    a("v_xor_b32 v14, 2, v14")
    a("v_lshl_add_u32 v17, v14, 5, v12")
    a("s_waitcnt vmcnt(22)")
    for rt in range(2):
        for kk in range(4):
            p, h = kk >> 1, kk & 1
            for q in range(2):
                r = 160 + 16 * rt + 4 * kk + 2 * q
                a("ds_read_b64_tr_b16 v[%d:%d], v%d offset:%d" % (r, r + 1, 16 + rt, p * 4096 + h * 2048 + q * 512))
    a("s_waitcnt vmcnt(16) lgkmcnt(0)")
    C0, C1, S0, S1, N0, N1 = 64, 68, 72, 76, 80, 84
    for rt in range(2):
        ur, ui = 192 + 32 * rt, 208 + 32 * rt
        br = [C0, C1, S0, S1]; bi = [N0, N1, C0, C1]
        for kk in range(4):
            ar = 160 + 16 * rt + 4 * kk
            a("v_mfma_f32_32x32x16_bf16 v[%d:%d], v[%d:%d], v[%d:%d], %s" % (ur, ur + 15, ar, ar + 3, br[kk], br[kk] + 3, "0" if kk == 0 else "v[%d:%d]" % (ur, ur + 15)))
            a("v_mfma_f32_32x32x16_bf16 v[%d:%d], v[%d:%d], v[%d:%d], %s" % (ui, ui + 15, ar, ar + 3, bi[kk], bi[kk] + 3, "0" if kk == 0 else "v[%d:%d]" % (ui, ui + 15)))
    def t3reg(i): return (64 + 4 * i) if i < 8 else (160 + 4 * (i - 8))
    a("s_nop 7")
    for i in range(16):
        a("s_mov_b32 s52, %d" % ((22 + i) * 1024))
        a("buffer_load_dwordx4 v[%d:%d], v6, s[36:39], s52 offen" % (t3reg(i), t3reg(i) + 3))
    a("s_waitcnt vmcnt(16)")
    a("s_nop 7")
    for rt in range(2):
        ur, ui = 192 + 32 * rt, 208 + 32 * rt
        for u in range(8):
            tw = 96 + 4 * (rt * 8 + u)
            for i in range(2):
                r = 2 * u + i
                c, s_ = tw + 2 * i, tw + 2 * i + 1
                a("v_mul_f32 v%d, v%d, v%d" % (52 + i, ur + r, c))
                a("v_mul_f32 v%d, v%d, v%d" % (54 + i, ui + r, c))
                a("v_fma_f32 v%d, v%d, v%d, v%d" % (52 + i, ui + r, s_, 52 + i))
                a("v_fma_f32 v%d, -v%d, v%d, v%d" % (54 + i, ur + r, s_, 54 + i))
            half, dd = u >> 2, u & 3
            base = 20 + 8 * (rt * 2 + half)
            a("v_cvt_pk_bf16_f32 v%d, v52, v53" % (base + dd))
            a("v_cvt_pk_bf16_f32 v%d, v54, v55" % (base + 4 + dd))
    a("s_waitcnt vmcnt(0)")
    a("s_nop 1")
    for tt in range(2):
        y = 192 + 16 * tt
        n = 0
        for part in range(2):
            for rh in range(4):
                ac = t3reg(part * 8 + tt * 4 + rh)
                vb = 20 + 8 * rh + 4 * part
                a("v_mfma_f32_32x32x16_bf16 v[%d:%d], v[%d:%d], v[%d:%d], %s" % (y, y + 15, ac, ac + 3, vb, vb + 3, "0" if n == 0 else "v[%d:%d]" % (y, y + 15)))
                n += 1
    a("v_and_b32 v4, 31, v2")
    a("v_lshlrev_b32 v4, 2, v4")
    a("v_lshrrev_b32 v5, 5, v2")
    a("v_lshl_add_u32 v4, v5, 9, v4")
    a("s_nop 15"); a("s_nop 3")
    for tt in range(2):
        a("s_add_u32 s52, s50, %d" % (tt * 4096))
        for r in range(16):
            a("buffer_store_dword v%d, v4, s[40:43], s52 offen offset:%d sc1" % (192 + 16 * tt + r, (8 * (r >> 2) + (r & 3)) * 128))
    a.label("L_k3_fft_sig")
    a("s_waitcnt vmcnt(0)")
    a("s_barrier")
    a("v_cmp_eq_u32 vcc, 0, v0")
    a("s_and_saveexec_b64 s[54:55], vcc")
    a("s_cbranch_execz L_k3_done")
    a("v_mov_b32 v4, 0"); a("v_mov_b32 v5, 1")
    a("global_atomic_add v4, v5, s[24:25]")
    a("s_waitcnt vmcnt(0)")
    stamp(a, 3, 1)
    a("s_branch L_k3_done")
    a.label("L_k3_red")
    srd(a, 32, 26, PART_BYTES, WS_PART)
    srd(a, 36, 26, YT_BYTES, WS_YT)
    srd(a, 40, 4, S * D * 2)
    srd(a, 44, 22, S * D * 2)
    a("s_sub_u32 s49, s2, %d" % N_FFT)
    a("s_lshl_b32 s49, s49, 2")
    a("s_add_u32 s49, s49, s48")
    a("s_mul_hi_u32 s51, s49, %d" % (-(-(1 << 32) // 18)))
    a("s_mul_i32 s52, s51, 18")
    a("s_sub_u32 s52, s49, s52")
    a("v_lshlrev_b32 v3, 4, v2")
    a("s_lshl_b32 s53, s49, 11")
    for j in range(16):
        for q in range(2):
            r = 32 + (j * 2 + q) * 4
            a("buffer_load_dwordx4 v[%d:%d], v3, s[32:35], s53 offen offset:%d" % (r, r + 3, q * 1024))
        a("s_add_u32 s53, s53, %d" % (64 * 18 * 2048))
    a("v_and_b32 v4, 31, v2")
    a("v_lshrrev_b32 v5, 5, v2")
    a("s_lshl_b32 s55, s51, 5")
    a("v_add_u32 v7, s55, v4")
    a("v_mov_b32 v12, v7")
    a("s_movk_i32 s56, 1152")
    a("v_mul_lo_u32 v7, v7, s56")
    a("s_lshl_b32 s57, s52, 6")
    a("v_add_u32 v7, s57, v7")
    a("v_lshl_add_u32 v8, v5, 3, v7")
    for g in range(4):
        a("buffer_load_dwordx2 v[%d:%d], v8, s[40:43], 0 offen offset:%d" % (176 + 2 * g, 177 + 2 * g, g * 16))
    a("v_lshl_add_u32 v9, v5, 4, v7")
    n = 32 + 4
    for j in range(16):
        a("s_waitcnt vmcnt(%d)" % (n - 2 * (j + 1)))
        for q in range(2):
            for d in range(4):
                src = 32 + (j * 2 + q) * 4 + d
                e = 8 * q + 2 * d
                if j == 0:
                    a("v_lshlrev_b32 v%d, 16, v%d" % (16 + e, src))
                    a("v_and_b32 v%d, 0xffff0000, v%d" % (17 + e, src))
                else:
                    a("v_lshlrev_b32 v10, 16, v%d" % src)
                    a("v_and_b32 v11, 0xffff0000, v%d" % src)
                    a("v_add_f32 v%d, v%d, v10" % (16 + e, 16 + e))
                    a("v_add_f32 v%d, v%d, v11" % (17 + e, 17 + e))
    a("s_waitcnt vmcnt(0)")
    for g in range(4):
        for h in range(2):
            src = 176 + 2 * g + h
            e = 4 * g + 2 * h
            a("v_lshlrev_b32 v10, 16, v%d" % src)
            a("v_and_b32 v11, 0xffff0000, v%d" % src)
            a("v_add_f32 v%d, v%d, v10" % (16 + e, 16 + e))
            a("v_add_f32 v%d, v%d, v11" % (17 + e, 17 + e))
    a("s_cmp_le_u32 s52, 8"); a("s_cbranch_scc0 L_k3_mir")
    a("v_lshlrev_b32 v6, 15, v5")
    a("v_lshl_add_u32 v6, v12, 2, v6")
    a("s_lshl_b32 s54, s52, 18")
    a("s_movk_i32 s58, 8192")
    a("s_branch L_k3_yad")
    a.label("L_k3_mir")
    a("v_sub_u32 v6, 2048, v12")
    a("v_and_b32 v6, 2047, v6")
    a("v_lshlrev_b32 v6, 2, v6")
    a("v_xor_b32 v13, 1, v5")
    a("v_lshl_add_u32 v6, v13, 15, v6")
    a("s_lshl_b32 s54, s52, 5")
    a("s_sub_u32 s54, 572, s54")
    a("s_lshl_b32 s54, s54, 13")
    a("s_mov_b32 s58, %d" % (-8192 & 0xffffffff))
    a.label("L_k3_yad")
    a("s_mov_b32 s59, 0")
    a("v_mov_b32 v13, 0")
    a.label("L_k3_poll")
    a("global_load_dword v14, v13, s[24:25] sc1")
    a("s_waitcnt vmcnt(0)")
    a("v_readfirstlane_b32 s60, v14")
    a("s_cmp_ge_u32 s60, %d" % N_FFT); a("s_cbranch_scc1 L_k3_go")
    a("s_sleep 4")
    a("s_add_u32 s59, s59, 1")
    a("s_cmp_lt_u32 s59, 200000"); a("s_cbranch_scc1 L_k3_poll")
    a.label("L_k3_go")
    for r in range(16):
        off = 8 * (r >> 2) + (r & 3)
        a("s_mul_i32 s55, s58, %d" % off)
        a("s_add_u32 s55, s55, s54")
        a("buffer_load_dword v%d, v6, s[36:39], s55 offen sc1" % (160 + r))
    a("s_waitcnt vmcnt(0)")
    for r in range(16):
        a("v_add_f32 v%d, v%d, v%d" % (16 + r, 16 + r, 160 + r))
    if OPT["pert"]:
        pass
    for d in range(8):
        a("v_cvt_pk_bf16_f32 v%d, v%d, v%d" % (32 + d, 16 + 2 * d, 17 + 2 * d))
    a("s_nop 1")
    a("v_permlane32_swap_b32 v32, v34")
    a("v_permlane32_swap_b32 v33, v35")
    a("v_permlane32_swap_b32 v36, v38")
    a("v_permlane32_swap_b32 v37, v39")
    a("s_nop 1")
    a("buffer_store_dwordx4 v[32:35], v9, s[44:47], 0 offen")
    a("buffer_store_dwordx4 v[36:39], v9, s[44:47], 0 offen offset:32")
    stamp(a, 2, 1)
    a.label("L_k3_done")
    a("s_endpgm")
    return name

def main():
    out = sys.argv[1]
    for o in sys.argv[2:]:
        if o == "stamps": OPT["stamps"] = 1
        elif o.startswith("abl="): OPT["abl"].update(o[4:].split(","))
        elif "=" in o:
            k, v = o.split("=", 1)
            OPT[k] = int(v) if v.lstrip("-").isdigit() else v.replace("+", " ")
    lds = max(OPT["R"] * 8192 + 73728, 147456)
    a = Asm()
    a.raw(HEADER.rstrip("\n"))
    a.raw("; @launch kernel=prep_kernel grid=(%d,1,1) block=(256,1,1) lds=0" % (N_LN + N_DF + N_TAB))
    a.raw("; @launch kernel=ffn_kernel grid=(256,1,1) block=(256,1,1) lds=%d" % lds)
    a.raw("; @launch kernel=fin_kernel grid=(%d,1,1) block=(256,1,1) lds=32768" % (N_FFT + N_RED))
    a.raw('.amdgcn_target "amdgcn-amd-amdhsa--gfx950"')
    k1(a); k2(a); k3(a)
    kernel_desc(a, "prep_kernel", 256 if OPT["stamps"] else 128, 96, 256 if OPT["stamps"] else 128)
    kernel_desc(a, "ffn_kernel", 512, 96, 256)
    kernel_desc(a, "fin_kernel", 256, 96, 256)
    open(out, "w").write(a.text())
if __name__ == "__main__":
    main()
```

```python
import sys, math
from asmgen import *
from sched import *

S, D, F = 2048, 576, 4608
OPT = {"B": 2, "R": 9, "abl": set(), "gcap": 3, "stamps": 0, "pf": 2, "stflags": "sc1", "xahead": 6, "pert": 0.0}
WS_XNF   = 0
WS_CF    = 4 << 20
CF_BYTES = 289 * 8192
WS_DF    = 8 << 20
DF_BYTES = 18 * 36864
WS_TAB   = 9 << 20
TAB_BYTES = 38 * 1024
WS_YT    = 12 << 20
YT_BYTES = 289 * 8192
WS_FLAG  = 10 << 20
FLAG_BYTES = 289 * 4
WS_PART  = 24 << 20
PART_BYTES = 16 * S * D * 2
WS_STAMP = 128 << 20
N_LN, N_DF, N_TAB = 128, 162, 10
PF0 = 304
N_K1 = PF0 + 256
N_FFT, N_RED = 73, 288

def srd(a, sd, sp, nbytes, off=0):
    if off:
        a("s_add_u32 s%d, s%d, %d" % (sd, sp, off))
        a("s_addc_u32 s%d, s%d, 0" % (sd + 1, sp + 1))
    else:
        a("s_mov_b32 s%d, s%d" % (sd, sp))
        a("s_mov_b32 s%d, s%d" % (sd + 1, sp + 1))
    a("s_mov_b32 s%d, %d" % (sd + 2, nbytes))
    a("s_mov_b32 s%d, 0x00020000" % (sd + 3))

def load_ptrs(a):
    a("s_load_dwordx2 s[4:5], s[0:1], 0")
    a("s_load_dwordx4 s[8:11], s[0:1], 16")
    a("s_load_dwordx2 s[12:13], s[0:1], 32")
    a("s_load_dwordx8 s[16:23], s[0:1], 48")
    a("s_load_dwordx4 s[24:27], s[0:1], 80")
    a("s_waitcnt lgkmcnt(0)")

def stamp(a, kidx, slot, sreg=88, vb=251, tid=0):
    if not OPT["stamps"]: return
    lab = a.newlabel("L_st")
    a("s_memrealtime s[%d:%d]" % (sreg, sreg + 1))
    a("s_memtime s[%d:%d]" % (sreg + 6, sreg + 7))
    a("s_waitcnt lgkmcnt(0)")
    a("v_cmp_eq_u32 vcc, %d, v0" % tid if tid <= 64 else "v_mov_b32 v%d, %d\n    v_cmp_eq_u32 vcc, v%d, v0" % (vb, tid, vb))
    a("s_and_saveexec_b64 s[%d:%d], vcc" % (sreg + 2, sreg + 3))
    a("s_cbranch_execz %s" % lab)
    a("s_lshl_b32 s%d, s2, 7" % (sreg + 4))
    a("s_add_u32 s%d, s%d, %d" % (sreg + 4, sreg + 4, WS_STAMP + kidx * 65536 + slot * 8))
    a("s_add_u32 s%d, s26, s%d" % (sreg + 4, sreg + 4))
    a("s_addc_u32 s%d, s27, 0" % (sreg + 5))
    a("v_mov_b32 v%d, s%d" % (vb + 1, sreg)); a("v_mov_b32 v%d, s%d" % (vb + 2, sreg + 1))
    a("v_mov_b32 v%d, 0" % vb)
    a("global_store_dwordx2 v%d, v[%d:%d], s[%d:%d]" % (vb, vb + 1, vb + 2, sreg + 4, sreg + 5))
    a("s_nop 1")
    a("v_mov_b32 v%d, s%d" % (vb + 1, sreg + 6)); a("v_mov_b32 v%d, s%d" % (vb + 2, sreg + 7))
    a("s_nop 1")
    a("global_store_dwordx2 v%d, v[%d:%d], s[%d:%d] offset:64" % (vb, vb + 1, vb + 2, sreg + 4, sreg + 5))
    a.label(lab)
    a("s_mov_b64 exec, s[%d:%d]" % (sreg + 2, sreg + 3))

def prefetch_w(a, sM, sJ, sW, vl, sector, sa, sb, srdg, srdu, srdd, vdst, vt):
    t0, t1, t2, t3 = vt, vt + 1, vt + 2, vt + 3
    a("v_mul_u32_u24 v%d, 52, v%d" % (t0, vl))
    a("v_lshrrev_b32 v%d, 8, v%d" % (t0, t0))
    a("v_mul_u32_u24 v%d, 5, v%d" % (t1, t0))
    a("v_sub_u32 v%d, v%d, v%d" % (t1, vl, t1))
    a("s_lshl_b32 s%d, s%d, 2" % (sa, sM))
    a("s_add_u32 s%d, s%d, s%d" % (sa, sa, sW))
    a("s_mul_i32 s%d, s%d, 9" % (sa, sa))
    a("v_add_u32 v%d, s%d, v%d" % (t2, sa, t0))
    a("s_movk_i32 s%d, 9216" % sb)
    a("v_mul_lo_u32 v%d, v%d, s%d" % (t2, t2, sb))
    a("v_lshl_add_u32 v%d, v%d, 7, v%d" % (t2, t1, t2))
    a("v_cmp_gt_u32 vcc, 9, v%d" % t0)
    a("v_mov_b32 v%d, 0x7ff00000" % t3)
    a("s_nop 0")
    a("v_cndmask_b32 v%d, v%d, v%d, vcc" % (t2, t3, t2))
    a("s_mul_i32 s%d, s%d, 288" % (sa, sJ))
    a("s_and_b32 s%d, s%d, 1" % (sb, sJ))
    a("s_lshl_b32 s%d, s%d, 5" % (sb, sb))
    a("s_sub_u32 s%d, s%d, s%d" % (sa, sa, sb))
    a("s_lshl_b32 s%d, s%d, 1" % (sa, sa))
    n = 0
    for srd_ in (srdg, srdu):
        a("buffer_load_dword v%d, v%d, s[%d:%d], s%d offen" % (vdst, t2, srd_, srd_ + 3, sa)); n += 1
        if sector: a("buffer_load_dword v%d, v%d, s[%d:%d], s%d offen offset:64" % (vdst, t2, srd_, srd_ + 3, sa)); n += 1
    a("v_mul_u32_u24 v%d, 57, v0" % t0)
    a("v_lshrrev_b32 v%d, 9, v%d" % (t0, t0))
    a("v_mul_u32_u24 v%d, 9, v%d" % (t1, t0))
    a("v_sub_u32 v%d, v0, v%d" % (t1, t1))
    a("s_mul_i32 s%d, s%d, 288" % (sa, sJ))
    a("s_mul_i32 s%d, s%d, 18" % (sb, sM))
    a("s_add_u32 s%d, s%d, s%d" % (sa, sa, sb))
    a("v_add_u32 v%d, s%d, v%d" % (t2, sa, t0))
    a("s_movk_i32 s%d, 1152" % sb)
    a("v_mul_lo_u32 v%d, v%d, s%d" % (t2, t2, sb))
    a("v_lshl_add_u32 v%d, v%d, 7, v%d" % (t2, t1, t2))
    a("v_cmp_gt_u32 vcc, 18, v%d" % t0)
    a("s_nop 1")
    a("v_cndmask_b32 v%d, v%d, v%d, vcc" % (t2, t3, t2))
    a("buffer_load_dword v%d, v%d, s[%d:%d], 0 offen" % (vdst, t2, srdd, srdd + 3)); n += 1
    if sector: a("buffer_load_dword v%d, v%d, s[%d:%d], 0 offen offset:64" % (vdst, t2, srdd, srdd + 3)); n += 1
    return n

def mj_from_wg(a, sM, sJ, t0, t1):
    a("s_and_b32 s%d, s2, 7" % t0)
    a("s_lshr_b32 s%d, s2, 3" % t1)
    a("s_lshr_b32 s%d, s%d, 1" % (sM, t1))
    a("s_and_b32 s%d, s%d, 1" % (t1, t1))
    a("s_lshl_b32 s%d, s%d, 1" % (sJ, t0))
    a("s_add_u32 s%d, s%d, s%d" % (sJ, sJ, t1))

def k1(a):
    name = "prep_kernel"
    kernel_begin(a, name)
    NT = N_LN + N_DF + N_TAB
    a("s_cmp_ge_u32 s2, %d" % NT); a("s_cbranch_scc1 L_k1_done")
    load_ptrs(a)
    stamp(a, 0, 0)
    a("v_lshrrev_b32 v20, 6, v0")
    a("v_and_b32 v21, 63, v0")
    a("v_readfirstlane_b32 s48, v20")
    def do_prefetch(): pass
    def code_prefetch():
        lab = a.newlabel("L_nocpf")
        a("s_sub_u32 s60, s2, %d" % N_LN)
        a("s_lshr_b32 s60, s60, 3")
        a("s_cmp_ge_u32 s60, 4"); a("s_cbranch_scc1 %s" % lab)
        a("s_getpc_b64 s[56:57]")
        a.label("L_k1_pc")
        a("s_add_u32 s56, s56, ffn_kernel-L_k1_pc")
        a("s_addc_u32 s57, s57, 0")
        a("s_lshl_b32 s60, s60, 14")
        a("v_lshlrev_b32 v30, 6, v0")
        a("v_add_u32 v30, s60, v30")
        a("v_cmp_gt_u32 vcc, L_code_end-ffn_kernel, v30")
        a("s_and_saveexec_b64 s[58:59], vcc")
        a("s_cbranch_execz %s_r" % lab)
        a("global_load_dword v31, v30, s[56:57]")
        a.label("%s_r" % lab)
        a("s_mov_b64 exec, s[58:59]")
        a.label(lab)
    def w_prefetch():
        srd(a, 68, 16, D * F * 2); srd(a, 72, 18, D * F * 2); srd(a, 76, 20, D * F * 2)
        a("s_and_b32 s60, s2, 7"); a("s_lshr_b32 s61, s2, 3")
        a("v_mul_u32_u24 v90, 57, v21"); a("v_lshrrev_b32 v90, 9, v90")
        a("v_mul_u32_u24 v91, 9, v90"); a("v_sub_u32 v91, v21, v91")
        a("s_lshl_b32 s62, s61, 2"); a("s_add_u32 s62, s62, s48"); a("s_mul_i32 s62, s62, 9")
        a("v_add_u32 v91, s62, v91")
        a("s_movk_i32 s63, 9216")
        a("v_mul_lo_u32 v91, v91, s63")
        a("v_and_b32 v92, 1, v90")
        a("v_lshrrev_b32 v93, 1, v90")
        a("s_mul_i32 s63, s60, 576")
        a("v_mul_u32_u24 v94, 320, v93")
        a("v_add_u32 v94, s63, v94")
        a("v_lshl_add_u32 v95, v94, 1, v91")
        a("v_mul_u32_u24 v96, 640, v93")
        a("v_sub_u32 v96, 512, v96")
        a("v_add_u32 v96, v95, v96")
        a("v_cmp_gt_u32 vcc, 2, v93")
        a("v_mov_b32 v97, 0x7ff00000")
        a("v_cmp_eq_u32 s[64:65], 0, v92")
        a("s_nop 1")
        a("v_cndmask_b32 v95, v97, v95, vcc")
        a("v_cndmask_b32 v96, v97, v96, vcc")
        a("v_cndmask_b32 v98, v97, v95, s[64:65]")
        a("v_cndmask_b32 v99, v95, v97, s[64:65]")
        a("v_cndmask_b32 v100, v97, v96, s[64:65]")
        a("v_cndmask_b32 v101, v96, v97, s[64:65]")
        for stg in range(4):
            a("buffer_load_dword v102, v98, s[68:71], 0 offen offset:%d" % (128 * stg))
            a("buffer_load_dword v102, v99, s[72:75], 0 offen offset:%d" % (128 * stg))
        a("buffer_load_dword v102, v100, s[68:71], 0 offen")
        a("buffer_load_dword v102, v101, s[72:75], 0 offen")
        a("v_mul_u32_u24 v90, 57, v0"); a("v_lshrrev_b32 v90, 9, v90")
        a("v_mul_u32_u24 v91, 9, v90"); a("v_sub_u32 v91, v0, v91")
        a("s_mul_i32 s62, s61, 18"); a("s_mul_i32 s63, s60, 576"); a("s_add_u32 s62, s62, s63")
        a("v_add_u32 v92, s62, v90")
        a("s_movk_i32 s63, 1152")
        a("v_mul_lo_u32 v92, v92, s63")
        a("v_lshl_add_u32 v92, v91, 7, v92")
        a("v_cmp_gt_u32 vcc, 18, v90")
        a("s_nop 1")
        a("v_cndmask_b32 v92, v97, v92, vcc")
        a("buffer_load_dword v102, v92, s[76:79], 0 offen")
        a("s_mov_b32 s63, %d" % (288 * 1152))
        a("buffer_load_dword v102, v92, s[76:79], s63 offen")
    a("s_cmp_ge_u32 s2, %d" % (N_LN + N_DF + N_TAB)); a("s_cbranch_scc1 L_k1_done")
    a("s_cmp_ge_u32 s2, %d" % N_LN); a("s_cbranch_scc1 L_k1_df")
    srd(a, 32, 4, S * D * 2)
    srd(a, 36, 26, S * D * 2, WS_XNF)
    srd(a, 40, 26, CF_BYTES, WS_CF)
    a("v_lshrrev_b32 v1, 4, v0")
    a("v_and_b32 v2, 15, v0")
    a("s_lshl_b32 s3, s2, 4")
    a("v_add_u32 v1, s3, v1")
    a("s_movk_i32 s28, 1152")
    a("v_mul_lo_u32 v3, v1, s28")
    a("v_lshl_add_u32 v3, v2, 3, v3")
    for i in range(9):
        a("buffer_load_dwordx2 v[%d:%d], v3, s[32:35], 0 offen offset:%d" % (8 + 2 * i, 9 + 2 * i, i * 128))
    do_prefetch()
    a("v_lshrrev_b32 v4, 5, v1")
    a("s_mov_b32 s29, 36864")
    a("v_mul_lo_u32 v4, v4, s29")
    a("v_lshrrev_b32 v5, 2, v2")
    a("v_lshl_add_u32 v4, v5, 10, v4")
    a("v_bfe_u32 v5, v2, 1, 1")
    a("v_lshl_add_u32 v4, v5, 9, v4")
    a("v_and_b32 v5, 31, v1")
    a("v_lshl_add_u32 v4, v5, 4, v4")
    a("v_and_b32 v5, 1, v2")
    a("v_lshl_add_u32 v4, v5, 3, v4")
    npf = 0
    stamp(a, 4, 0)
    a("s_waitcnt vmcnt(%d)" % npf)
    stamp(a, 4, 1)
    if OPT["pf"]: w_prefetch()
    for i in range(18):
        a("v_lshlrev_b32 v%d, 16, v%d" % (32 + 2 * i, 8 + i))
        a("v_and_b32 v%d, 0xffff0000, v%d" % (33 + 2 * i, 8 + i))
    a("v_add_f32 v70, v32, v33")
    a("v_add_f32 v71, v34, v35")
    for i in range(4, 36, 2):
        a("v_add_f32 v70, v70, v%d" % (32 + i))
        a("v_add_f32 v71, v71, v%d" % (33 + i))
    a("v_add_f32 v70, v70, v71")
    def row_sum(r):
        for sh in (8, 4, 2, 1):
            a("s_nop 1")
            a("v_add_f32_dpp v%d, v%d, v%d row_ror:%d row_mask:0xf bank_mask:0xf" % (r, r, r, sh))
    row_sum(70)
    a("v_mul_f32 v70, 0x%08x, v70" % f2u(1.0 / 576))
    a("v_mov_b32 v72, 0"); a("v_mov_b32 v73, 0")
    for i in range(0, 36, 2):
        a("v_sub_f32 v74, v%d, v70" % (32 + i))
        a("v_sub_f32 v75, v%d, v70" % (33 + i))
        a("v_fmac_f32 v72, v74, v74")
        a("v_fmac_f32 v73, v75, v75")
    a("v_add_f32 v72, v72, v73")
    row_sum(72)
    a("v_mul_f32 v72, 0x%08x, v72" % f2u(1.0 / 576))
    a("v_cvt_pk_bf16_f32 v76, v70, v72")
    a("v_lshlrev_b32 v70, 16, v76")
    a("v_and_b32 v72, 0xffff0000, v76")
    a("v_add_f32 v72, 0x%08x, v72" % f2u(1e-5))
    a("v_cvt_pk_bf16_f32 v76, v72, v72")
    a("v_lshlrev_b32 v72, 16, v76")
    a("v_sqrt_f32 v72, v72")
    a("s_nop 0")
    a("v_cvt_pk_bf16_f32 v76, v72, v72")
    a("v_lshlrev_b32 v72, 16, v76")
    a("v_rcp_f32 v72, v72")
    a("v_mov_b32 v77, 0")
    for i in range(18):
        x0, x1 = 32 + 2 * i, 33 + 2 * i
        a("v_sub_f32 v%d, v%d, v70" % (x0, x0))
        a("v_sub_f32 v%d, v%d, v70" % (x1, x1))
        a("v_cvt_pk_bf16_f32 v76, v%d, v%d" % (x0, x1))
        a("v_lshlrev_b32 v%d, 16, v76" % x0)
        a("v_and_b32 v%d, 0xffff0000, v76" % x1)
        a("v_mul_f32 v%d, v%d, v72" % (x0, x0))
        a("v_mul_f32 v%d, v%d, v72" % (x1, x1))
        a("v_cvt_pk_bf16_f32 v%d, v%d, v%d" % (8 + i, x0, x1))
        a("v_lshlrev_b32 v%d, 16, v%d" % (x0, 8 + i))
        a("v_and_b32 v%d, 0xffff0000, v%d" % (x1, 8 + i))
        a("v_sub_f32 v%d, v%d, v%d" % (x0, x0, x1))
        a("v_add_f32 v77, v77, v%d" % x0)
    stamp(a, 4, 2)
    for i in range(9):
        a("s_mov_b32 s30, %d" % (i * 4096))
        a("buffer_store_dwordx2 v[%d:%d], v4, s[36:39], s30 offen %s" % (8 + 2 * i, 9 + 2 * i, OPT.get("k1st", "")))
    row_sum(77)
    a("v_cvt_pk_bf16_f32 v77, v77, v77")
    a("v_mov_b32 v78, 0")
    a("v_lshlrev_b32 v79, 1, v1")
    a("v_add_u32 v79, %d, v79" % (288 * 8192))
    a("v_cmp_eq_u32 vcc, 0, v2")
    a("v_mov_b32 v80, 0x7ff00000")
    a("s_nop 0")
    a("v_cndmask_b32 v79, v80, v79, vcc")
    a("buffer_store_short v77, v79, s[40:43], 0 offen")
    a("s_movk_i32 s30, 4096")
    a("buffer_store_short v78, v79, s[40:43], s30 offen")
    stamp(a, 0, 1)
    stamp(a, 4, 3)
    a("s_branch L_k1_done")
    a.label("L_k1_df")
    a("s_cmp_ge_u32 s2, %d" % (N_LN + N_DF)); a("s_cbranch_scc1 L_k1_tab")
    a("s_sub_u32 s28, s2, %d" % N_LN)
    a("s_lshl_b32 s28, s28, 2")
    a("s_add_u32 s28, s28, s48")
    a("s_mul_hi_u32 s29, s28, %d" % (-(-(1 << 32) // 36)))
    a("s_mul_i32 s30, s29, 36")
    a("s_sub_u32 s30, s28, s30")
    a("s_cmp_ge_u32 s29, 9")
    a("s_cselect_b32 s32, s12, s10")
    a("s_cselect_b32 s33, s13, s11")
    a("s_cselect_b32 s31, 9, 0")
    a("s_mov_b32 s34, %d" % (D * D * 2)); a("s_mov_b32 s35, 0x00020000")
    a("s_sub_u32 s29, s29, s31")
    srd(a, 36, 26, DF_BYTES, WS_DF)
    a("v_and_b32 v1, 31, v21")
    a("s_lshl_b32 s29, s29, 5")
    a("v_add_u32 v1, s29, v1")
    a("s_movk_i32 s31, 1152")
    a("v_mul_lo_u32 v1, v1, s31")
    a("v_lshrrev_b32 v2, 5, v21")
    a("v_lshl_add_u32 v1, v2, 4, v1")
    a("s_lshl_b32 s30, s30, 5")
    a("buffer_load_dwordx4 v[8:11], v1, s[32:35], s30 offen")
    if OPT.get("cpf", 1): code_prefetch()
    a("v_lshlrev_b32 v3, 4, v21")
    a("s_lshl_b32 s28, s28, 10")
    a("s_waitcnt vmcnt(0)")
    a("buffer_store_dwordx4 v[8:11], v3, s[36:39], s28 offen %s" % OPT.get("k1st", ""))
    stamp(a, 0, 2)
    a("s_branch L_k1_done")
    a.label("L_k1_tab")
    a("s_sub_u32 s28, s2, %d" % (N_LN + N_DF))
    a("s_lshl_b32 s28, s28, 2")
    a("s_add_u32 s28, s28, s48")
    a("s_cmp_eq_u32 s28, 38"); a("s_cbranch_scc0 L_k1_tab2")
    srd(a, 36, 26, 2048, WS_FLAG)
    a("v_lshlrev_b32 v3, 4, v21")
    a("v_mov_b32 v8, 0"); a("v_mov_b32 v9, 0"); a("v_mov_b32 v10, 0"); a("v_mov_b32 v11, 0")
    a("buffer_store_dwordx4 v[8:11], v3, s[36:39], 0 offen")
    a("buffer_store_dwordx4 v[8:11], v3, s[36:39], 0 offen offset:1024")
    a("s_branch L_k1_done")
    a.label("L_k1_tab2")
    a("s_cmp_ge_u32 s28, 38"); a("s_cbranch_scc1 L_k1_done")
    srd(a, 36, 26, TAB_BYTES, WS_TAB)
    a("v_and_b32 v1, 31, v21")
    a("v_lshrrev_b32 v2, 5, v21")
    a("v_lshlrev_b32 v3, 4, v21")
    a("s_lshl_b32 s29, s28, 10")
    a("s_cmp_ge_u32 s28, 22"); a("s_cbranch_scc1 L_k1_t3")
    a("s_cmp_ge_u32 s28, 6"); a("s_cbranch_scc1 L_k1_t2")
    a("s_and_b32 s30, s28, 1")
    a("s_lshl_b32 s30, s30, 4")
    a("v_lshl_add_u32 v4, v2, 3, s30")
    for j in range(8):
        a("v_add_u32 v5, %d, v4" % j)
        a("v_mul_u32_u24 v5, v5, v1")
        a("v_and_b32 v5, 31, v5")
        a("v_cvt_f32_u32 v5, v5")
        a("v_mul_f32 v5, 0x%08x, v5" % f2u(1.0 / 32))
        a("v_cos_f32 v%d, v5" % (8 + j))
        a("v_sin_f32 v%d, v5" % (16 + j))
    a("s_nop 0")
    a("s_cmp_lt_u32 s28, 2"); a("s_cbranch_scc1 L_k1_t1p")
    for j in range(8): a("v_mov_b32 v%d, v%d" % (8 + j, 16 + j))
    a("s_cmp_lt_u32 s28, 4"); a("s_cbranch_scc1 L_k1_t1p")
    for j in range(8): a("v_sub_f32 v%d, 0, v%d" % (8 + j, 16 + j))
    a.label("L_k1_t1p")
    for d in range(4): a("v_cvt_pk_bf16_f32 v%d, v%d, v%d" % (24 + d, 8 + 2 * d, 9 + 2 * d))
    a("buffer_store_dwordx4 v[24:27], v3, s[36:39], s29 offen")
    a("s_branch L_k1_done")
    a.label("L_k1_t2")
    a("s_sub_u32 s30, s28, 6")
    a("s_lshr_b32 s31, s30, 3")
    a("s_and_b32 s30, s30, 7")
    a("s_lshl_b32 s31, s31, 5")
    a("s_lshr_b32 s40, s30, 1"); a("s_lshl_b32 s40, s40, 3")
    a("s_add_u32 s31, s31, s40")
    a("s_and_b32 s40, s30, 1"); a("s_lshl_b32 s40, s40, 1")
    a("s_add_u32 s31, s31, s40")
    a("v_lshl_add_u32 v4, v2, 2, s31")
    for i in range(2):
        a("v_add_u32 v5, %d, v4" % i)
        a("v_mul_u32_u24 v5, v5, v1")
        a("v_cvt_f32_u32 v5, v5")
        a("v_mul_f32 v5, 0x%08x, v5" % f2u(1.0 / 2048))
        a("v_cos_f32 v%d, v5" % (24 + 2 * i))
        a("v_sin_f32 v%d, v5" % (25 + 2 * i))
    a("s_nop 1")
    a("buffer_store_dwordx4 v[24:27], v3, s[36:39], s29 offen")
    a("s_branch L_k1_done")
    a.label("L_k1_t3")
    a("s_sub_u32 s30, s28, 22")
    a("s_lshr_b32 s31, s30, 3")
    a("s_bfe_u32 s40, s30, 0x10002")
    a("s_and_b32 s30, s30, 3")
    a("s_lshl_b32 s40, s40, 5")
    a("v_add_u32 v1, s40, v1")
    a("s_lshl_b32 s30, s30, 4")
    a("v_lshl_add_u32 v4, v2, 2, s30")
    for j in range(8):
        a("v_add_u32 v5, %d, v4" % (j if j < 4 else 8 + j - 4))
        a("v_mul_u32_u24 v5, v5, v1")
        a("v_and_b32 v5, 63, v5")
        a("v_cvt_f32_u32 v5, v5")
        a("v_mul_f32 v5, 0x%08x, v5" % f2u(1.0 / 64))
        a("v_cos_f32 v%d, v5" % (8 + j))
        a("v_sin_f32 v%d, v5" % (16 + j))
    a("s_nop 0")
    a("s_cmp_eq_u32 s31, 0"); a("s_cbranch_scc1 L_k1_t3p")
    for j in range(8): a("v_mov_b32 v%d, v%d" % (8 + j, 16 + j))
    a.label("L_k1_t3p")
    for d in range(4): a("v_cvt_pk_bf16_f32 v%d, v%d, v%d" % (24 + d, 8 + 2 * d, 9 + 2 * d))
    a("buffer_store_dwordx4 v[24:27], v3, s[36:39], s29 offen")
    a.label("L_k1_done")
    a("s_endpgm")
    return name

ACC = [16, 80]
XOV = 144
AF = 176
GT = 200
HP = 216
V_LANE16 = 1
V_DM0, V_DM1 = 2, 3
V_DH0, V_DH1 = 4, 5
V_TR = [6, 7, 8, 9]
V_TRH = [10, 11]
V_H = 12
V_HH = 13
V_C0 = 14
V_D2 = 224
V_TR2 = [225, 226, 227, 228]
V_HR = 229
V_CF = 230
BR = 232
S_W = 32; S_X = 36; S_D = 40; S_P = 44
S_WAVE, S_TM, S_FH, S_M, S_J = 48, 49, 50, 51, 52
S_FB, S_FHB = 53, 54
S_LDSW = 55
S_COL = [56, 57, 58, 59, 60]
S_OFF = 61; S_T0 = 62; S_T1 = 63; S_C1 = 64
S_PB = 65; S_LDS2 = 66
S_WD0, S_WD1, S_OFF2 = 67, 68, 69
S_XB = 70
S_DF = 72
S_CF = 76
S_DFB = 80; S_CFB = 81
S_ROW = 4
S_ROT = 82; S_RB = 83

def xreg(ks, t):
    i = ks * 2 + t
    if i < 64: return "a[%d:%d]" % (4 * i, 4 * i + 3)
    r = XOV + 4 * (i - 64)
    return "v[%d:%d]" % (r, r + 3)

def gelu_items(accbase, tiles):
    items = []
    c1 = "s%d" % S_C1
    for n, (ti, off, areg) in enumerate(tiles):
        base = accbase + 16 * ti
        hp = HP + 4 * (n & 1)
        for pr in range(4):
            g0, g1 = base + 2 * pr, base + 2 * pr + 1
            u0, u1 = g0 + 8, g1 + 8
            t0, t1 = GT + 4 * (pr & 1), GT + 4 * (pr & 1) + 1
            m0, m1 = t0 + 2, t0 + 3
            items += [
                "v_mul_f32 v%d, v%d, v%d" % (t0, g0, g0),
                "v_mul_f32 v%d, v%d, v%d" % (t1, g1, g1),
                "v_fma_f32 v%d, v%d, %s, v%d" % (t0, t0, c1, V_C0),
                "v_fma_f32 v%d, v%d, %s, v%d" % (t1, t1, c1, V_C0),
                "v_mul_f32 v%d, v%d, v%d" % (t0, t0, g0),
                "v_mul_f32 v%d, v%d, v%d" % (t1, t1, g1),
                "v_exp_f32 v%d, v%d" % (t0, t0),
                "v_exp_f32 v%d, v%d" % (t1, t1),
                "v_mul_f32 v%d, v%d, v%d" % (m0, g0, u0),
                "v_mul_f32 v%d, v%d, v%d" % (m1, g1, u1),
                "v_add_f32 v%d, 1.0, v%d" % (t0, t0),
                "v_add_f32 v%d, 1.0, v%d" % (t1, t1),
                "v_rcp_f32 v%d, v%d" % (t0, t0),
                "v_rcp_f32 v%d, v%d" % (t1, t1),
                "v_mul_f32 v%d, v%d, v%d" % (m0, m0, t0),
                "v_mul_f32 v%d, v%d, v%d" % (m1, m1, t1),
                "v_cvt_pk_bf16_f32 v%d, v%d, v%d" % (hp + pr, m0, m1),
            ]
        items.append(("lds", "ds_write_b128 v%d, v[%d:%d] offset:%d" % (areg, hp, hp + 3, off), "hw"))
    return items

def k2(a):
    R = OPT["R"]; ABLS = OPT["abl"]
    HB = R * 8192
    name = "ffn_kernel"
    kernel_begin(a, name)
    a("s_cmp_ge_u32 s2, 256"); a("s_cbranch_scc1 L_ffn_done")
    load_ptrs(a)
    stamp(a, 1, 0)
    st = Stream(a)
    def emit_item(it):
        if isinstance(it, tuple):
            kind = it[0]
            if kind == "lds": st.lds(it[1], it[2])
            elif kind == "vm": st.vmem(it[1], it[2])
            elif kind == "bar":
                st.wait(vm=it[1])
                if "nobar" not in ABLS: st("s_barrier")
            else: raise ValueError(kind)
        elif isinstance(it, list):
            for x in it: emit_item(x)
        else:
            st(it)
    a("v_lshrrev_b32 v20, 6, v0")
    a("v_and_b32 v21, 63, v0")
    a("v_readfirstlane_b32 s%d, v20" % S_WAVE)
    mj_from_wg(a, S_M, S_J, S_T0, S_T1)
    a("s_lshr_b32 s%d, s%d, 1" % (S_TM, S_WAVE))
    a("s_and_b32 s%d, s%d, 1" % (S_FH, S_WAVE))
    a("s_mul_i32 s%d, s%d, 288" % (S_T0, S_J))
    a("s_lshl_b32 s%d, s%d, 5" % (S_FB, S_T1))
    a("s_add_u32 s%d, s%d, s%d" % (S_FB, S_FB, S_T0))
    a("s_cmp_eq_u32 s%d, 0" % S_T1)
    a("s_cselect_b32 s%d, 256, 0" % S_FHB)
    a("s_add_u32 s%d, s%d, s%d" % (S_FHB, S_FHB, S_T0))
    for s_ in range(4):
        a("s_add_u32 s%d, s%d, %d" % (S_COL[s_], S_FB, 64 * s_))
        a("s_lshl_b32 s%d, s%d, 1" % (S_COL[s_], S_COL[s_]))
    a("s_lshl_b32 s%d, s%d, 5" % (S_COL[4], S_T1))
    a("s_sub_u32 s%d, s%d, s%d" % (S_COL[4], S_FHB, S_COL[4]))
    a("s_lshl_b32 s%d, s%d, 1" % (S_COL[4], S_COL[4]))
    a("s_cmp_ge_u32 s%d, 2" % S_WAVE)
    a("s_cselect_b32 s%d, s18, s16" % S_W)
    a("s_cselect_b32 s%d, s19, s17" % (S_W + 1))
    a("s_mov_b32 s%d, %d" % (S_W + 2, D * F * 2)); a("s_mov_b32 s%d, 0x00020000" % (S_W + 3))
    srd(a, S_X, 26, S * D * 2, WS_XNF)
    a("s_lshl_b32 s%d, s%d, 11" % (S_LDSW, S_WAVE))
    a("v_lshlrev_b32 v%d, 4, v21" % V_LANE16)
    a("v_lshrrev_b32 v22, 3, v21")
    a("s_lshl_b32 s%d, s%d, 4" % (S_T0, S_FH))
    a("v_add_u32 v22, s%d, v22" % S_T0)
    a("s_movk_i32 s%d, 9216" % S_T0)
    a("v_mul_lo_u32 v22, v22, s%d" % S_T0)
    a("v_bfe_u32 v23, v21, 4, 1")
    a("s_lshl_b32 s%d, s%d, 1" % (S_T0, S_TM))
    a("v_or_b32 v23, s%d, v23" % S_T0)
    a("v_bfe_u32 v24, v21, 1, 2")
    a("v_xor_b32 v24, v24, v23")
    a("v_and_b32 v25, 1, v21")
    a("v_lshlrev_b32 v25, 4, v25")
    a("v_lshl_add_u32 v25, v24, 5, v25")
    a("v_add_u32 v%d, v22, v25" % V_DM0)
    a("v_add_u32 v%d, %d, v%d" % (V_DM1, 8 * 9216, V_DM0))
    a("s_lshl_b32 s%d, s%d, 2" % (S_T0, S_M))
    a("s_lshl_b32 s%d, s%d, 1" % (S_T1, S_TM))
    a("s_add_u32 s%d, s%d, s%d" % (S_T0, S_T0, S_T1))
    a("s_mul_i32 s%d, s%d, 36864" % (S_XB, S_T0))
    srd(a, S_D, 20, D * F * 2)
    if OPT.get("rot", 1):
        a("s_mul_i32 s%d, s%d, 18" % (S_ROT, S_M))
        a("s_lshr_b32 s%d, s%d, 4" % (S_ROT, S_ROT))
    else:
        a("s_mov_b32 s%d, 0" % S_ROT)
    for s_ in range(18):
        a("s_add_u32 s%d, s%d, %d" % (S_T0, S_ROT, s_))
        a("s_cmp_ge_u32 s%d, 18" % S_T0)
        a("s_cselect_b32 s%d, 18, 0" % S_T1)
        a("s_sub_u32 s%d, s%d, s%d" % (S_T0, S_T0, S_T1))
        a("s_mul_i32 s%d, s%d, %d" % (S_ROW + s_, S_T0, 32 * 9216))

    def dma_items(g):
        stg, s_ = divmod(g, 18)
        if stg > 4: return []
        if "nodma" in ABLS and g >= 8: return []
        slot = g % R
        v0_, v1_ = (V_DH0, V_DH1) if stg == 4 else (V_DM0, V_DM1)
        g0 = ["s_add_u32 s%d, s%d, s%d" % (S_OFF, S_COL[stg], S_ROW + s_),
              "s_add_u32 m0, s%d, %d" % (S_LDSW, slot * 8192),
              "NOPSLOT",
              ("vm", "buffer_load_dwordx4 v%d, s[%d:%d], s%d offen lds" % (v0_, S_W, S_W + 3, S_OFF), ("W", g))]
        g1 = ["s_add_u32 m0, s%d, %d" % (S_LDSW, slot * 8192 + 1024),
              "NOPSLOT",
              ("vm", "buffer_load_dwordx4 v%d, s[%d:%d], s%d offen lds" % (v1_, S_W, S_W + 3, S_OFF), ("W", g))]
        return [g0, g1]
    def emit_group(grp, filler=None):
        for it in grp:
            if it == "NOPSLOT":
                if not (filler and filler()): st("s_nop 0")
            else: emit_item(it)
    def xload_items(ks):
        out = []
        for t in range(2):
            sl = ks // 2
            out.append(["s_mul_hi_u32 s%d, s%d, %d" % (S_OFF2, S_ROW + sl, -(-(1 << 32) // 144)),
                        "s_add_u32 s%d, s%d, s%d" % (S_OFF2, S_OFF2, S_XB),
                        "s_add_u32 s%d, s%d, %d" % (S_OFF2, S_OFF2, t * 36864 + (ks & 1) * 1024),
                        ("vm", "buffer_load_dwordx4 %s, v%d, s[%d:%d], s%d offen" % (xreg(ks, t), V_LANE16, S_X, S_X + 3, S_OFF2), ("X", ks))])
        return out
    NPRE = R - 1
    XA = OPT["xahead"]
    for s_ in range(NPRE):
        for grp in dma_items(s_): emit_group(grp)
        for ks in (2 * s_, 2 * s_ + 1):
            if ks < XA:
                for it in xload_items(ks): emit_item(it)
    srd(a, S_P, 26, PART_BYTES, WS_PART)
    srd(a, S_DF, 26, DF_BYTES, WS_DF)
    srd(a, S_CF, 26, CF_BYTES, WS_CF)
    a("s_lshl_b32 s%d, s%d, 10" % (S_LDS2, S_WAVE))
    a("s_mov_b32 s%d, 0x%08x" % (S_C1, f2u(-2.0 * 0.7978845608028654 * 1.4426950408889634 * 0.044715)))
    a("v_mov_b32 v%d, 0x%08x" % (V_C0, f2u(-2.0 * 0.7978845608028654 * 1.4426950408889634)))
    a("v_lshrrev_b32 v24, 1, v24")
    a("s_and_b32 s%d, s%d, 1" % (S_T0, S_J))
    a("v_cmp_eq_u32 vcc, s%d, v24" % S_T0)
    a("v_mov_b32 v26, 0x7ff00000")
    a("s_nop 0")
    a("v_cndmask_b32 v%d, v26, v%d, vcc" % (V_DH0, V_DM0))
    a("v_cndmask_b32 v%d, v26, v%d, vcc" % (V_DH1, V_DM1))
    a("v_bfe_u32 v22, v21, 4, 1")
    a("v_bfe_u32 v23, v21, 5, 1")
    a("v_bfe_u32 v24, v21, 2, 2")
    a("v_and_b32 v25, 3, v21")
    a("v_lshlrev_b32 v26, 12, v22")
    a("v_lshl_add_u32 v27, v23, 3, v24")
    a("v_lshl_add_u32 v26, v27, 7, v26")
    a("v_lshl_add_u32 v26, v25, 3, v26")
    a("v_lshrrev_b32 v27, 1, v24")
    a("v_lshl_or_b32 v27, v22, 1, v27")
    a("s_lshl_b32 s%d, s%d, 1" % (S_T0, S_FH))
    a("v_xor_b32 v28, s%d, v27" % S_T0)
    a("v_lshl_add_u32 v%d, v28, 5, v26" % V_TR[0])
    a("v_xor_b32 v28, 1, v28")
    a("v_lshl_add_u32 v%d, v28, 5, v26" % V_TR[1])
    a("v_add_u32 v%d, 49152, v%d" % (V_TR[2], V_TR[0]))
    a("v_add_u32 v%d, 49152, v%d" % (V_TR[3], V_TR[1]))
    a("s_and_b32 s%d, s%d, 1" % (S_T0, S_J))
    a("s_lshl_b32 s%d, s%d, 1" % (S_T0, S_T0))
    a("s_add_u32 s%d, s%d, s%d" % (S_T0, S_T0, S_FH))
    a("v_xor_b32 v28, s%d, v27" % S_T0)
    a("v_lshl_add_u32 v%d, v28, 5, v26" % V_TRH[0])
    a("v_add_u32 v%d, 49152, v%d" % (V_TRH[1], V_TRH[0]))
    a("s_mul_i32 s%d, s%d, 36" % (S_T0, S_TM))
    a("s_lshl_b32 s%d, s%d, 1" % (S_T1, S_FH))
    a("s_add_u32 s%d, s%d, s%d" % (S_T1, S_T1, S_T0))
    a("s_lshl_b32 s%d, s%d, 10" % (S_T1, S_T1))
    a("s_add_u32 s%d, s%d, %d" % (S_T1, S_T1, HB))
    a("v_add_u32 v%d, s%d, v%d" % (V_H, S_T1, V_LANE16))
    a("s_add_u32 s%d, s%d, 16" % (S_T1, S_T0))
    a("s_add_u32 s%d, s%d, s%d" % (S_T1, S_T1, S_FH))
    a("s_lshl_b32 s%d, s%d, 10" % (S_T1, S_T1))
    a("s_add_u32 s%d, s%d, %d" % (S_T1, S_T1, HB))
    a("v_add_u32 v%d, s%d, v%d" % (V_HH, S_T1, V_LANE16))
    a("s_lshl_b32 s%d, s%d, 10" % (S_T1, S_T0))
    a("s_add_u32 s%d, s%d, %d" % (S_T1, S_T1, HB))
    a("v_add_u32 v%d, s%d, v%d" % (V_HR, S_T1, V_LANE16))
    a("v_lshrrev_b32 v22, 3, v21")
    a("s_lshl_b32 s%d, s%d, 3" % (S_T0, S_WAVE))
    a("v_add_u32 v22, s%d, v22" % S_T0)
    a("s_movk_i32 s%d, 1152" % S_T0)
    a("v_mul_lo_u32 v22, v22, s%d" % S_T0)
    a("v_bfe_u32 v23, v21, 4, 1")
    a("v_lshlrev_b32 v23, 1, v23")
    a("v_bfe_u32 v24, v21, 1, 2")
    a("v_xor_b32 v24, v24, v23")
    a("v_and_b32 v25, 1, v21")
    a("v_lshlrev_b32 v25, 4, v25")
    a("v_lshl_add_u32 v25, v24, 5, v25")
    a("v_add_u32 v%d, v22, v25" % V_D2)
    a("v_bfe_u32 v22, v21, 4, 1")
    a("v_bfe_u32 v23, v21, 5, 1")
    a("v_bfe_u32 v24, v21, 2, 2")
    a("v_and_b32 v25, 3, v21")
    a("v_lshl_add_u32 v26, v23, 2, v24")
    a("v_lshlrev_b32 v26, 7, v26")
    a("v_lshl_add_u32 v26, v25, 3, v26")
    a("v_and_b32 v27, 2, v24")
    a("s_lshl_b32 s%d, s%d, 1" % (S_T0, S_FH))
    a("v_or_b32 v28, s%d, v22" % S_T0)
    a("v_xor_b32 v28, v28, v27")
    a("v_lshl_add_u32 v%d, v28, 5, v26" % V_TR2[0])
    for b in range(1, 4):
        a("v_add_u32 v%d, %d, v%d" % (V_TR2[b], 36864 * b, V_TR2[0]))
    a("s_lshl_b32 s%d, s%d, 4" % (S_T0, S_J))
    a("s_add_u32 s%d, s%d, s%d" % (S_T0, S_T0, S_M))
    a("s_lshl_b32 s%d, s%d, 2" % (S_T0, S_T0))
    a("s_lshl_b32 s%d, s%d, 1" % (S_T1, S_TM))
    a("s_add_u32 s%d, s%d, s%d" % (S_T0, S_T0, S_T1))
    a("s_mul_i32 s%d, s%d, %d" % (S_PB, S_T0, 18 * 2048))
    a("s_lshl_b32 s%d, s%d, 11" % (S_T1, S_FH))
    a("s_add_u32 s%d, s%d, s%d" % (S_PB, S_PB, S_T1))
    a("s_mul_i32 s%d, s%d, 1152" % (S_WD0, S_FB))
    a("s_mul_i32 s%d, s%d, 1152" % (S_WD1, S_FHB))
    if OPT.get("rot", 1):
        a("s_mul_i32 s%d, s%d, 9" % (S_RB, S_M))
        a("s_lshr_b32 s%d, s%d, 4" % (S_RB, S_RB))
    else:
        a("s_mov_b32 s%d, 0" % S_RB)
    a("s_lshl_b32 s%d, s%d, 1" % (S_T0, S_J))
    a("s_add_u32 s%d, s%d, s%d" % (S_T0, S_T0, S_FH))
    a("s_mul_i32 s%d, s%d, 36864" % (S_DFB, S_T0))
    a("s_cmp_ge_u32 s%d, 9" % S_T0)
    a("s_cselect_b32 s%d, 9, 0" % S_T1)
    a("s_sub_u32 s%d, s%d, s%d" % (S_T0, S_T0, S_T1))
    a("s_lshl_b32 s%d, s%d, 18" % (S_CFB, S_T0))
    a("s_cselect_b32 s%d, 4096, 0" % S_T1)
    a("s_lshl_b32 s%d, s%d, 1" % (S_T0, S_J))
    a("s_add_u32 s%d, s%d, s%d" % (S_T0, S_T0, S_FH))
    a("s_cmp_ge_u32 s%d, 9" % S_T0)
    a("s_cselect_b32 s%d, 4096, 0" % S_T1)
    a("s_add_u32 s%d, s%d, s%d" % (S_CFB, S_CFB, S_T1))
    a("s_lshl_b32 s%d, s%d, 8" % (S_T0, S_M))
    a("s_add_u32 s%d, s%d, s%d" % (S_CFB, S_CFB, S_T0))
    a("s_lshl_b32 s%d, s%d, 7" % (S_T0, S_TM))
    a("s_add_u32 s%d, s%d, s%d" % (S_CFB, S_CFB, S_T0))
    a("v_and_b32 v22, 31, v21")
    a("v_lshlrev_b32 v22, 13, v22")
    a("v_lshrrev_b32 v23, 5, v21")
    a("v_lshl_add_u32 v%d, v23, 4, v22" % V_CF)
    if OPT.get("dfpf", 1):
        a("v_lshlrev_b32 v22, 7, v21")
        for i in range(5):
            st("s_add_u32 s%d, s%d, %d" % (S_T0, S_DFB, i * 8192))
            st.vmem("buffer_load_dword v%d, v22, s[%d:%d], s%d offen" % (BR, S_DF, S_DF + 3, S_T0), "PF")
    stamp(a, 1, 1)

    HI = 49152
    def trread(g, kk, half):
        slot = g % R
        gks = g * 2 + kk
        buf = gks % 3
        out = []
        ncs = 1 if half else 2
        for c in range(ncs):
            for q in range(2):
                off = slot * 8192 + kk * 2048 + q * 512
                hi = off >= HI
                if half: areg = V_TRH[1 if hi else 0]
                else: areg = V_TR[c + (2 if hi else 0)]
                if hi: off -= HI
                r = AF + (buf * 2 + c) * 4 + q * 2
                out.append(("lds", "ds_read_b64_tr_b16 v[%d:%d], v%d offset:%d" % (r, r + 1, areg, off), ("A", gks)))
        return out
    B = OPT["B"]
    NG = 5 * 18
    st.wait(vm=[("W", i) for i in range(B)])
    st("s_barrier")
    for kk in range(2):
        for it in trread(0, kk, False): emit_item(it)
    next_dma = [NPRE]
    dma_pending = []
    def stage(stg, accset, gelu_q):
        half = stg == 4
        ncs = 1 if half else 2
        gq = list(gelu_q) if "nogelu" not in ABLS else []
        nm_total = 36 * ncs * 2
        per = len(gq) / float(nm_total - 6)
        state = {"acc": 0.0, "em": 0}
        def pop_gelu():
            if gq:
                emit_item(gq.pop(0)); state["em"] += 1
                return True
            return False
        mi = 0
        since_dma = 99
        xq = []
        for ks in range(36):
            g = stg * 18 + ks // 2
            gks = stg * 36 + ks
            buf = gks % 3
            g2, kk2 = divmod(gks + 2, 2)
            bar = None
            if kk2 == 0 and g2 % B == 0 and g2 < NG:
                bar = [("W", i) for i in range(g2, min(g2 + B, NG))]
            reads = trread(g2, kk2, g2 // 18 == 4) if (g2 < NG and "notr" not in ABLS) else []
            if stg == 0 and ks + XA < 36: xq.extend(xload_items(ks + XA))
            st.wait(vm=[("X", ks)] if stg == 0 else [], lg=[("A", gks)])
            ng = ncs * 2
            k = 0
            for c in range(ncs):
                for t in range(2):
                    ti = c * 2 + t
                    d = ACC[accset] + 16 * ti
                    ar = AF + (buf * 2 + c) * 4
                    src = "0" if ks == 0 else "v[%d:%d]" % (d, d + 15)
                    st("v_mfma_f32_32x32x16_bf16 v[%d:%d], v[%d:%d], %s, %s" % (d, d + 15, ar, ar + 3, xreg(ks, t), src))
                    mi += 1
                    if k == 0 and bar is not None:
                        emit_item(("bar", bar))
                        while next_dma[0] < NG and next_dma[0] - R <= g2 - 2:
                            dma_pending.extend(dma_items(next_dma[0])); next_dma[0] += 1
                    lo = k * len(reads) // ng; hi_ = (k + 1) * len(reads) // ng
                    for it in reads[lo:hi_]: emit_item(it)
                    since_dma += 1
                    did = False
                    if xq and k in (1, 3):
                        emit_item(xq.pop(0)); did = True
                    elif dma_pending and since_dma >= OPT.get("dmagap", 4 if not half else 2) and not (k == 0 and bar is not None):
                        emit_group(dma_pending.pop(0), pop_gelu if mi > 6 else None)
                        since_dma = 0; did = True
                    if mi > 6:
                        state["acc"] += per
                        n = 0
                        cap = OPT["gcap"] - (2 if did else 0)
                        while gq and state["em"] < state["acc"] and n < cap:
                            pop_gelu(); n += 1
                    k += 1
        assert not xq
        while gq: pop_gelu()

    def full_tiles(stg):
        return [(c * 2 + t, (t * 18 + c) * 1024 + stg * 4096, V_H) for c in range(2) for t in range(2)]
    stage(0, 0, [])
    stamp(a, 1, 2)
    stage(1, 1, gelu_items(ACC[0], full_tiles(0)))
    stage(2, 0, gelu_items(ACC[1], full_tiles(1)))
    stage(3, 1, gelu_items(ACC[0], full_tiles(2)))
    stage(4, 0, gelu_items(ACC[1], full_tiles(3)))
    assert not dma_pending
    stamp(a, 1, 3)
    S_BC = 84
    def blk_items(dst, b, mul):
        return ["s_add_u32 s%d, s%d, %d" % (dst, S_RB, b),
                "s_cmp_ge_u32 s%d, 9" % dst,
                "s_cselect_b32 s%d, 9, 0" % S_T0,
                "s_sub_u32 s%d, s%d, s%d" % (dst, dst, S_T0),
                "s_mul_i32 s%d, s%d, %d" % (dst, dst, mul)]
    def wd_groups(b):
        buf = b % 4
        out = []
        for i in range(9):
            base = S_WD0 if i < 8 else S_WD1
            off = (32 * i * 1152 if i < 8 else 0)
            pre = blk_items(S_BC, b, 128) if i == 0 else []
            out.append(pre + ["s_add_u32 s%d, s%d, s%d" % (S_OFF, base, S_BC),
                        "s_add_u32 s%d, s%d, %d" % (S_OFF, S_OFF, off),
                        "s_add_u32 m0, s%d, %d" % (S_LDS2, buf * 36864 + i * 4096),
                        "NOPSLOT",
                        ("vm", "buffer_load_dwordx4 v%d, s[%d:%d], s%d offen lds" % (V_D2, S_D, S_D + 3, S_OFF), ("D", b))])
        return out
    st.wait_all(vm=False, lg=True)
    st("s_barrier")
    tail = gelu_items(ACC[0], [(t, t * 18 * 1024, V_HH) for t in range(2)])
    a("s_cmp_ge_u32 s%d, 9" % S_J)
    a("s_cbranch_scc1 L_ffn_noa1")
    vm_save, lg_save = list(st.vm), list(st.lg)
    NB = 18
    def breg(ks):
        i = ks % NB
        r = (AF + 4 * i) if i < 6 else (BR + 4 * (i - 6)) if i < 10 else (112 + 4 * (i - 10))
        return r
    def bload(ks):
        r = breg(ks)
        return ["s_mul_hi_u32 s%d, s%d, %d" % (S_OFF2, S_ROW + ks // 2, -(-(1 << 32) // 144)),
                "s_add_u32 s%d, s%d, s%d" % (S_OFF2, S_OFF2, S_DFB),
                "s_add_u32 s%d, s%d, %d" % (S_OFF2, S_OFF2, (ks & 1) * 1024),
                ("vm", "buffer_load_dwordx4 v[%d:%d], v%d, s[%d:%d], s%d offen" % (r, r + 3, V_LANE16, S_DF, S_DF + 3, S_OFF2), ("B", ks))]
    for ks in range(NB - 1): emit_item(bload(ks))
    wdq = wd_groups(0) + wd_groups(1)
    for _ in range(4): emit_group(wdq.pop(0))
    A1ACC = ACC[1]
    tq = list(tail)
    for ks in range(36):
        st.wait(vm=[("B", ks)])
        for t in range(2):
            d = A1ACC + 16 * t
            br = breg(ks)
            src = "0" if ks == 0 else "v[%d:%d]" % (d, d + 15)
            st("v_mfma_f32_32x32x16_bf16 v[%d:%d], %s, v[%d:%d], %s" % (d, d + 15, xreg(ks, t), br, br + 3, src))
            if t == 0 and ks + NB - 1 < 36:
                emit_item(bload(ks + NB - 1))
            elif t == 1 and wdq and ks % 2 == 1:
                emit_group(wdq.pop(0))
            if ks >= 2:
                for _ in range(3):
                    if tq: emit_item(tq.pop(0))
    assert not tq and not wdq, (len(tq), len(wdq))
    st("s_nop 15"); st("s_nop 3")
    for t in range(2):
        pk = GT + 8 * 0 if t == 0 else HP
        for dd in range(8):
            st("v_cvt_pk_bf16_f32 v%d, v%d, v%d" % (pk + dd, A1ACC + 16 * t + 2 * dd, A1ACC + 16 * t + 2 * dd + 1))
        st("s_nop 1")
        st("v_permlane32_swap_b32 v%d, v%d" % (pk + 0, pk + 2))
        st("v_permlane32_swap_b32 v%d, v%d" % (pk + 1, pk + 3))
        st("v_permlane32_swap_b32 v%d, v%d" % (pk + 4, pk + 6))
        st("v_permlane32_swap_b32 v%d, v%d" % (pk + 5, pk + 7))
        st("s_add_u32 s%d, s%d, %d" % (S_OFF2, S_CFB, t * 64))
        st("s_nop 0")
        st.vmem("buffer_store_dwordx4 v[%d:%d], v%d, s[%d:%d], s%d offen" % (pk, pk + 3, V_CF, S_CF, S_CF + 3, S_OFF2), "CF")
        st.vmem("buffer_store_dwordx4 v[%d:%d], v%d, s[%d:%d], s%d offen offset:32" % (pk + 4, pk + 7, V_CF, S_CF, S_CF + 3, S_OFF2), "CF")
    a("s_branch L_ffn_join")
    vm_a = list(st.vm)
    a.label("L_ffn_noa1")
    st.vm, st.lg = vm_save, lg_save
    for grp in wd_groups(0) + wd_groups(1): emit_group(grp)
    for it in tail: emit_item(it)
    a.label("L_ffn_join")
    st.wait_all(vm=False, lg=True)
    st("s_barrier")
    for t in range(2):
        for ci in range(18):
            i = t * 18 + ci
            st.lds("ds_read_b128 a[%d:%d], v%d offset:%d" % (4 * i, 4 * i + 3, V_HR, i * 1024), ("H", i))
    st.wait_all(vm=False, lg=True)
    st("s_waitcnt vmcnt(4)")
    st("s_barrier")
    st.vm = [("D", 1)] * 4
    for grp in wd_groups(2): emit_group(grp)
    stamp(a, 1, 4)
    A2 = 176; ACC2 = [16, 48]; PK = 200
    def trread2(b, ci):
        gk = b * 18 + ci
        r = A2 + (gk % 4) * 4
        return [("lds", "ds_read_b64_tr_b16 v[%d:%d], v%d offset:%d" % (r + 2 * q, r + 2 * q + 1, V_TR2[b % 4], ci * 2048 + q * 1024), ("A2", gk)) for q in range(2)]
    def epi_items(b):
        items = []
        acc = ACC2[b % 2]
        for t in range(2):
            pk = PK + 8 * t
            for d in range(8):
                items.append("v_cvt_pk_bf16_f32 v%d, v%d, v%d" % (pk + d, acc + 16 * t + 2 * d, acc + 16 * t + 2 * d + 1))
            for q in range(2):
                pre = blk_items(S_BC + 1, b, 4096) if (t == 0 and q == 0) else []
                items.append(pre + ["s_add_u32 s%d, s%d, s%d" % (S_OFF2, S_PB, S_BC + 1),
                              "s_add_u32 s%d, s%d, %d" % (S_OFF2, S_OFF2, t * 18 * 2048),
                              ("vm", "buffer_store_dwordx4 v[%d:%d], v%d, s[%d:%d], s%d offen offset:%d %s" % (pk + 4 * q, pk + 4 * q + 3, V_LANE16, S_P, S_P + 3, S_OFF2, q * 1024, OPT["stflags"]), ("P", b))])
        return items
    for ci in range(3):
        for it in trread2(0, ci): emit_item(it)
    pend = list(wd_groups(3))
    for b in range(9):
        eq = epi_items(b - 1) if b > 0 else []
        mi = 0
        since = 99
        for ci in range(18):
            gk = b * 18 + ci
            nb, nci = divmod(gk + 3, 18)
            reads = trread2(nb, nci) if nb < 9 else []
            st.wait(lg=[("A2", gk)])
            for t in range(2):
                d = ACC2[b % 2] + 16 * t
                ar = A2 + (gk % 4) * 4
                hr = (t * 18 + ci) * 4
                src = "0" if ci == 0 else "v[%d:%d]" % (d, d + 15)
                st("v_mfma_f32_32x32x16_bf16 v[%d:%d], v[%d:%d], a[%d:%d], %s" % (d, d + 15, ar, ar + 3, hr, hr + 3, src))
                mi += 1
                isbar = (t == 0 and ci == 15 and b + 1 < 9)
                if isbar:
                    emit_item(("bar", [("D", b + 1)]))
                    if b >= 1 and b + 3 <= 8:
                        pend.extend(wd_groups(b + 3))
                if reads: emit_item(reads[t])
                since += 1
                vm_done = False
                if pend and since >= 3 and not isbar:
                    emit_group(pend.pop(0)); since = 0; vm_done = True
                if mi > 4 and eq and not vm_done:
                    it = eq.pop(0)
                    if isinstance(it, list):
                        if since >= 2:
                            emit_item(it); since = 0
                        else: eq.insert(0, it)
                    else:
                        emit_item(it)
                        if eq and not isinstance(eq[0], list): emit_item(eq.pop(0))
        while eq: emit_item(eq.pop(0))
    assert not pend
    st("s_nop 15"); st("s_nop 3")
    for it in epi_items(8): emit_item(it)
    stamp(a, 1, 5)
    a.label("L_ffn_done")
    a("s_endpgm")
    return name, max(R * 8192 + 73728, 147456)

K3_WAVES = 11
K3_LDS_COL = 0
K3_LDS_TAB = 16384
K3_LDS = 16384 + 22 * 1024
def k3(a):
    name = "fin_kernel"
    kernel_begin(a, name)
    a("s_cmp_ge_u32 s2, 256"); a("s_cbranch_scc1 L_k3_done")
    load_ptrs(a)
    stamp(a, 2, 0, vb=151)
    a("v_lshrrev_b32 v1, 6, v0")
    a("v_and_b32 v2, 63, v0")
    a("v_readfirstlane_b32 s48, v1")
    a("s_cmp_ge_u32 s48, 2"); a("s_cbranch_scc1 L_k3_red")
    a("s_mov_b32 s47, s48")
    a("s_lshl_b32 s49, s47, 8")
    a("s_add_u32 s49, s49, s2")
    a("s_cmp_gt_u32 s49, 288"); a("s_cbranch_scc1 L_k3_done")
    srd(a, 32, 26, CF_BYTES, WS_CF)
    srd(a, 36, 26, TAB_BYTES, WS_TAB)
    srd(a, 40, 26, YT_BYTES, WS_YT)
    a("v_lshrrev_b32 v3, 3, v2")
    a("v_lshlrev_b32 v3, 7, v3")
    a("v_bfe_u32 v4, v2, 4, 1")
    a("v_lshlrev_b32 v4, 1, v4")
    a("v_bfe_u32 v5, v2, 1, 2")
    a("v_xor_b32 v5, v5, v4")
    a("v_lshl_add_u32 v3, v5, 5, v3")
    a("v_and_b32 v5, 1, v2")
    a("v_lshl_add_u32 v3, v5, 4, v3")
    a("s_lshl_b32 s50, s49, 13")
    a("s_lshl_b32 s51, s47, 13")
    for i in range(8):
        a("s_add_u32 s52, s50, %d" % (i * 1024))
        a("s_add_u32 m0, s51, %d" % (i * 1024))
        a("s_nop 0")
        a("buffer_load_dwordx4 v3, s[32:35], s52 offen lds")
    a("v_lshlrev_b32 v6, 4, v2")
    for i in range(6):
        a("s_movk_i32 s52, %d" % (i * 1024))
        a("buffer_load_dwordx4 v[%d:%d], v6, s[36:39], s52 offen" % (64 + 4 * i, 67 + 4 * i))
    a("v_bfe_u32 v8, v2, 4, 1")
    a("v_bfe_u32 v9, v2, 5, 1")
    a("v_bfe_u32 v10, v2, 2, 2")
    a("v_and_b32 v11, 3, v2")
    a("v_lshl_add_u32 v12, v9, 3, v10")
    a("v_lshlrev_b32 v12, 7, v12")
    a("v_lshl_add_u32 v12, v11, 3, v12")
    a("v_add_u32 v12, s51, v12")
    a("v_and_b32 v13, 2, v10")
    a("v_xor_b32 v14, v8, v13")
    a("v_lshl_add_u32 v16, v14, 5, v12")
    a("v_xor_b32 v14, 2, v14")
    a("v_lshl_add_u32 v17, v14, 5, v12")
    a("v_and_b32 v18, 31, v2")
    a("v_cvt_f32_u32 v18, v18")
    a("v_mul_f32 v18, 0x%08x, v18" % f2u(1.0 / 2048))
    a("v_cvt_f32_u32 v19, v9")
    a("v_mul_f32 v19, 4.0, v19")
    a("v_mul_f32 v19, v19, v18")
    stamp(a, 5, 0, vb=61, tid=0)
    a("s_waitcnt vmcnt(6)")
    C0, C1, S0, S1, N0, N1 = 64, 68, 72, 76, 80, 84
    for rt in range(2):
        for kk in range(4):
            p, h = kk >> 1, kk & 1
            for q in range(2):
                r = 88 + 4 * kk + 2 * q
                a("ds_read_b64_tr_b16 v[%d:%d], v%d offset:%d" % (r, r + 1, 16 + rt, p * 4096 + h * 2048 + q * 512))
        a("s_waitcnt vmcnt(0) lgkmcnt(0)" if rt == 0 else "s_waitcnt lgkmcnt(0)")
        if rt == 0: stamp(a, 5, 1, vb=61, tid=0)
        ur, ui = 104, 120
        br = [C0, C1, S0, S1]; bi = [N0, N1, C0, C1]
        for kk in range(4):
            ar = 88 + 4 * kk
            a("v_mfma_f32_32x32x16_bf16 v[%d:%d], v[%d:%d], v[%d:%d], %s" % (ur, ur + 15, ar, ar + 3, br[kk], br[kk] + 3, "0" if kk == 0 else "v[%d:%d]" % (ur, ur + 15)))
            a("v_mfma_f32_32x32x16_bf16 v[%d:%d], v[%d:%d], v[%d:%d], %s" % (ui, ui + 15, ar, ar + 3, bi[kk], bi[kk] + 3, "0" if kk == 0 else "v[%d:%d]" % (ui, ui + 15)))
        if rt == 1:
            pass
        a("s_nop 15"); a("s_nop 3")
        for r in range(0, 16, 2):
            for i in range(2):
                rr = r + i
                s2c = 32 * rt + 8 * (rr >> 2) + (rr & 3)
                a("v_fmamk_f32 v%d, v18, 0x%08x, v19" % (52 + i, f2u(float(s2c))))
            a("v_cos_f32 v54, v52"); a("v_sin_f32 v56, v52")
            a("v_cos_f32 v55, v53"); a("v_sin_f32 v57, v53")
            for i in range(2):
                rr = r + i
                a("v_mul_f32 v%d, v%d, v%d" % (58 + i, ur + rr, 54 + i))
                a("v_mul_f32 v%d, v%d, v%d" % (62 + i, ui + rr, 54 + i))
            for i in range(2):
                rr = r + i
                a("v_fma_f32 v%d, v%d, v%d, v%d" % (58 + i, ui + rr, 56 + i, 58 + i))
                a("v_fma_f32 v%d, -v%d, v%d, v%d" % (62 + i, ur + rr, 56 + i, 62 + i))
            half, dd = r >> 3, (r >> 1) & 3
            base = 20 + 8 * (rt * 2 + half)
            a("v_cvt_pk_bf16_f32 v%d, v58, v59" % (base + dd))
            a("v_cvt_pk_bf16_f32 v%d, v62, v63" % (base + 4 + dd))
        if rt == 0:
            for i in range(8):
                a("s_mov_b32 s52, %d" % ((22 + i) * 1024))
                a("buffer_load_dwordx4 v[%d:%d], v6, s[36:39], s52 offen" % (136 + 4 * i, 139 + 4 * i))
    stamp(a, 5, 2, vb=61, tid=0)
    for i in range(8, 16):
        a("s_mov_b32 s52, %d" % ((22 + i) * 1024))
        a("buffer_load_dwordx4 v[%d:%d], v6, s[36:39], s52 offen" % (64 + 4 * (i - 8), 67 + 4 * (i - 8)))
    def t3reg(i): return (136 + 4 * i) if i < 8 else (64 + 4 * (i - 8))
    a("s_waitcnt vmcnt(8)")
    a("s_nop 1")
    for part in range(2):
        if part == 1: a("s_waitcnt vmcnt(0)")
        for tt in range(2):
            y = 96 + 16 * tt
            for rh in range(4):
                ac = t3reg(part * 8 + tt * 4 + rh)
                vb = 20 + 8 * rh + 4 * part
                a("v_mfma_f32_32x32x16_bf16 v[%d:%d], v[%d:%d], v[%d:%d], %s" % (y, y + 15, ac, ac + 3, vb, vb + 3, "0" if (part == 0 and rh == 0) else "v[%d:%d]" % (y, y + 15)))
    stamp(a, 5, 3, vb=61, tid=0)
    a("v_and_b32 v4, 31, v2")
    a("v_lshlrev_b32 v4, 2, v4")
    a("v_lshrrev_b32 v5, 5, v2")
    a("v_lshl_add_u32 v4, v5, 9, v4")
    a("v_add_u32 v4, s51, v4")
    a("v_add_u32 v7, s51, v6")
    a("s_nop 15"); a("s_nop 3")
    for tt in range(2):
        for r in range(16):
            a("ds_write_b32 v4, v%d offset:%d" % (96 + 16 * tt + r, tt * 4096 + (8 * (r >> 2) + (r & 3)) * 128))
    a("s_waitcnt lgkmcnt(0)")
    for i in range(8):
        a("ds_read_b128 v[%d:%d], v7 offset:%d" % (128 + 4 * i, 131 + 4 * i, i * 1024))
    for i in range(8):
        a("s_waitcnt lgkmcnt(%d)" % (7 - i))
        a("s_add_u32 s52, s50, %d" % (i * 1024))
        a("buffer_store_dwordx4 v[%d:%d], v6, s[40:43], s52 offen sc1" % (128 + 4 * i, 131 + 4 * i))
    stamp(a, 5, 4, vb=61, tid=0)
    a("s_waitcnt vmcnt(0)")
    stamp(a, 5, 5, vb=61, tid=0)
    srd(a, 44, 26, FLAG_BYTES, WS_FLAG)
    a("v_cmp_eq_u32 vcc, 0, v2")
    a("v_mov_b32 v4, 0x7ff00000")
    a("s_lshl_b32 s52, s49, 2")
    a("v_mov_b32 v5, s52")
    a("v_cndmask_b32 v4, v4, v5, vcc")
    a("v_mov_b32 v5, 1")
    a("buffer_store_dword v5, v4, s[44:47], 0 offen sc1")
    a("s_branch L_k3_done")
    a.label("L_k3_red")
    a("s_sub_u32 s48, s48, 2")
    srd(a, 32, 26, PART_BYTES, WS_PART)
    srd(a, 36, 26, YT_BYTES, WS_YT)
    srd(a, 40, 4, S * D * 2)
    srd(a, 44, 22, S * D * 2)
    a("s_mul_i32 s49, s2, 9")
    a("s_add_u32 s49, s49, s48")
    a("v_lshlrev_b32 v3, 4, v2")
    a("s_lshl_b32 s53, s49, 10")
    for j in range(16):
        r = 32 + j * 4
        a("buffer_load_dwordx4 v[%d:%d], v3, s[32:35], s53 offen" % (r, r + 3))
        if j < 15: a("s_add_u32 s53, s53, %d" % (64 * 18 * 2048))
    a("s_mul_hi_u32 s51, s49, %d" % (-(-(1 << 32) // 36)))
    a("s_mul_i32 s52, s51, 36")
    a("s_sub_u32 s52, s49, s52")
    a("s_and_b32 s50, s52, 1")
    a("s_lshr_b32 s52, s52, 1")
    a("v_and_b32 v4, 31, v2")
    a("v_lshrrev_b32 v5, 5, v2")
    a("s_lshl_b32 s55, s51, 5")
    a("v_add_u32 v12, s55, v4")
    a("s_movk_i32 s56, 1152")
    a("v_mul_lo_u32 v7, v12, s56")
    a("s_lshl_b32 s57, s52, 6")
    a("s_lshl_b32 s58, s50, 5")
    a("s_add_u32 s57, s57, s58")
    a("v_add_u32 v7, s57, v7")
    a("v_lshl_add_u32 v8, v5, 3, v7")
    for g in range(2):
        a("buffer_load_dwordx2 v[%d:%d], v8, s[40:43], 0 offen offset:%d" % (100 + 2 * g, 101 + 2 * g, g * 16))
    a("v_lshl_add_u32 v9, v5, 4, v7")
    a("s_lshl_b32 s59, s52, 5")
    a("s_lshl_b32 s58, s50, 4")
    a("s_add_u32 s59, s59, s58")
    a("s_cmp_le_u32 s52, 8"); a("s_cbranch_scc0 L_k3_mir")
    a("v_lshlrev_b32 v6, 15, v5")
    a("v_lshl_add_u32 v6, v12, 2, v6")
    a("s_lshl_b32 s54, s59, 13")
    a("s_movk_i32 s58, 8192")
    a("s_branch L_k3_yad")
    a.label("L_k3_mir")
    a("v_sub_u32 v6, 2048, v12")
    a("v_and_b32 v6, 2047, v6")
    a("v_lshlrev_b32 v6, 2, v6")
    a("v_xor_b32 v13, 1, v5")
    a("v_lshl_add_u32 v6, v13, 15, v6")
    a("s_sub_u32 s54, 572, s59")
    a("s_lshl_b32 s54, s54, 13")
    a("s_mov_b32 s58, %d" % (-8192 & 0xffffffff))
    a.label("L_k3_yad")
    n = 16 + 2
    for j in range(16):
        a("s_waitcnt vmcnt(%d)" % (n - (j + 1)))
        for d in range(4):
            src = 32 + j * 4 + d
            e = 2 * d
            if j == 0:
                a("v_lshlrev_b32 v%d, 16, v%d" % (16 + e, src))
                a("v_and_b32 v%d, 0xffff0000, v%d" % (17 + e, src))
            else:
                a("v_lshlrev_b32 v10, 16, v%d" % src)
                a("v_and_b32 v11, 0xffff0000, v%d" % src)
                a("v_add_f32 v%d, v%d, v10" % (16 + e, 16 + e))
                a("v_add_f32 v%d, v%d, v11" % (17 + e, 17 + e))
    a("s_waitcnt vmcnt(0)")
    for g in range(2):
        for h in range(2):
            src = 100 + 2 * g + h
            e = 4 * g + 2 * h
            a("v_lshlrev_b32 v10, 16, v%d" % src)
            a("v_and_b32 v11, 0xffff0000, v%d" % src)
            a("v_add_f32 v%d, v%d, v10" % (16 + e, 16 + e))
            a("v_add_f32 v%d, v%d, v11" % (17 + e, 17 + e))
    stamp(a, 2, 1, vb=151, tid=128)
    a("s_cmp_lg_u32 s48, 0"); a("s_cbranch_scc1 L_k3_go")
    srd(a, 60, 26, FLAG_BYTES, WS_FLAG)
    a("s_mov_b32 s64, 0")
    a("v_lshlrev_b32 v13, 2, v2")
    a("v_cmp_gt_u32 s[66:67], 33, v2")
    a.label("L_k3_poll")
    for k in range(5):
        a("buffer_load_dword v%d, v13, s[60:63], 0 offen offset:%d sc1" % (112 + k, 256 * k))
    a("s_waitcnt vmcnt(0)")
    a("v_cndmask_b32 v116, 1, v116, s[66:67]")
    a("v_and_b32 v112, v112, v113")
    a("v_and_b32 v114, v114, v115")
    a("v_and_b32 v112, v112, v114")
    a("v_and_b32 v112, v112, v116")
    a("v_cmp_eq_u32 vcc, 1, v112")
    a("s_nop 1")
    a("s_cmp_eq_u64 vcc, exec"); a("s_cbranch_scc1 L_k3_go")
    a("s_sleep 8")
    a("s_add_u32 s64, s64, 1")
    a("s_cmp_lt_u32 s64, 100000"); a("s_cbranch_scc1 L_k3_poll")
    a.label("L_k3_go")
    a("s_barrier")
    stamp(a, 2, 2, vb=151, tid=128)
    for r in range(8):
        off = 8 * (r >> 2) + (r & 3)
        a("s_mul_i32 s55, s58, %d" % off)
        a("s_add_u32 s55, s55, s54")
        a("buffer_load_dword v%d, v6, s[36:39], s55 offen sc1" % (104 + r))
    a("s_waitcnt vmcnt(0)")
    for r in range(8):
        a("v_add_f32 v%d, v%d, v%d" % (16 + r, 16 + r, 104 + r))
    for d in range(4):
        a("v_cvt_pk_bf16_f32 v%d, v%d, v%d" % (32 + d, 16 + 2 * d, 17 + 2 * d))
    a("s_nop 1")
    a("v_permlane32_swap_b32 v32, v34")
    a("v_permlane32_swap_b32 v33, v35")
    a("s_nop 1")
    a("buffer_store_dwordx4 v[32:35], v9, s[44:47], 0 offen")
    stamp(a, 2, 3, vb=151, tid=128)
    a.label("L_k3_done")
    a("s_endpgm")
    return name

def main():
    out = sys.argv[1]
    for o in sys.argv[2:]:
        if o == "stamps": OPT["stamps"] = 1
        elif o.startswith("abl="): OPT["abl"].update(o[4:].split(","))
        elif "=" in o:
            k, v = o.split("=", 1)
            OPT[k] = int(v) if v.lstrip("-").isdigit() else v.replace("+", " ")
    lds = max(OPT["R"] * 8192 + 73728, 147456)
    a = Asm()
    a.raw(HEADER.rstrip("\n"))
    a.raw("; @launch kernel=prep_kernel grid=(%d,1,1) block=(256,1,1) lds=0" % (N_LN + N_DF + N_TAB))
    a.raw("; @launch kernel=ffn_kernel grid=(256,1,1) block=(256,1,1) lds=%d" % lds)
    a.raw("; @launch kernel=fin_kernel grid=(256,1,1) block=(%d,1,1) lds=16384" % (64 * K3_WAVES))
    a.raw('.amdgcn_target "amdgcn-amd-amdhsa--gfx950"')
    k1(a); k2(a); k3(a)
    a.label("L_code_end")
    kernel_desc(a, "prep_kernel", 256 if OPT["stamps"] else 128, 96, 256 if OPT["stamps"] else 128)
    kernel_desc(a, "ffn_kernel", 512, 96, 256)
    kernel_desc(a, "fin_kernel", 168, 96, 168)
    open(out, "w").write(a.text())
if __name__ == "__main__":
    main()
```

```python
import sys, math
from asmgen import *
from sched import *

S, D, F = 2048, 576, 4608
OPT = {"B": 2, "R": 9, "abl": set(), "gcap": 3, "stamps": 0, "pf": 2, "stflags": "sc1", "xahead": 6, "pert": 0.0}
WS_XNF   = 0
WS_CF    = 4 << 20
CF_BYTES = 289 * 8192
WS_DF    = 8 << 20
DF_BYTES = 18 * 36864
WS_TAB   = 9 << 20
TAB_BYTES = 38 * 1024
WS_YT    = 12 << 20
YT_BYTES = 289 * 8192
WS_FLAG  = 10 << 20
FLAG_BYTES = 289 * 4
WS_PART  = 24 << 20
PART_BYTES = 16 * S * D * 2
WS_STAMP = 128 << 20
N_LN, N_DF, N_TAB = 128, 162, 10
PF0 = 304
N_K1 = PF0 + 256
N_FFT, N_RED = 73, 288

def srd(a, sd, sp, nbytes, off=0):
    if off:
        a("s_add_u32 s%d, s%d, %d" % (sd, sp, off))
        a("s_addc_u32 s%d, s%d, 0" % (sd + 1, sp + 1))
    else:
        a("s_mov_b32 s%d, s%d" % (sd, sp))
        a("s_mov_b32 s%d, s%d" % (sd + 1, sp + 1))
    a("s_mov_b32 s%d, %d" % (sd + 2, nbytes))
    a("s_mov_b32 s%d, 0x00020000" % (sd + 3))

def load_ptrs(a):
    a("s_load_dwordx2 s[4:5], s[0:1], 0")
    a("s_load_dwordx4 s[8:11], s[0:1], 16")
    a("s_load_dwordx2 s[12:13], s[0:1], 32")
    a("s_load_dwordx8 s[16:23], s[0:1], 48")
    a("s_load_dwordx4 s[24:27], s[0:1], 80")
    a("s_waitcnt lgkmcnt(0)")

def stamp(a, kidx, slot, sreg=88, vb=251, tid=0):
    if not OPT["stamps"]: return
    lab = a.newlabel("L_st")
    a("s_memrealtime s[%d:%d]" % (sreg, sreg + 1))
    a("s_memtime s[%d:%d]" % (sreg + 6, sreg + 7))
    a("s_waitcnt lgkmcnt(0)")
    a("v_cmp_eq_u32 vcc, %d, v0" % tid if tid <= 64 else "v_mov_b32 v%d, %d\n    v_cmp_eq_u32 vcc, v%d, v0" % (vb, tid, vb))
    a("s_and_saveexec_b64 s[%d:%d], vcc" % (sreg + 2, sreg + 3))
    a("s_cbranch_execz %s" % lab)
    a("s_lshl_b32 s%d, s2, 7" % (sreg + 4))
    a("s_add_u32 s%d, s%d, %d" % (sreg + 4, sreg + 4, WS_STAMP + kidx * 65536 + slot * 8))
    a("s_add_u32 s%d, s26, s%d" % (sreg + 4, sreg + 4))
    a("s_addc_u32 s%d, s27, 0" % (sreg + 5))
    a("v_mov_b32 v%d, s%d" % (vb + 1, sreg)); a("v_mov_b32 v%d, s%d" % (vb + 2, sreg + 1))
    a("v_mov_b32 v%d, 0" % vb)
    a("global_store_dwordx2 v%d, v[%d:%d], s[%d:%d]" % (vb, vb + 1, vb + 2, sreg + 4, sreg + 5))
    a("s_nop 1")
    a("v_mov_b32 v%d, s%d" % (vb + 1, sreg + 6)); a("v_mov_b32 v%d, s%d" % (vb + 2, sreg + 7))
    a("s_nop 1")
    a("global_store_dwordx2 v%d, v[%d:%d], s[%d:%d] offset:64" % (vb, vb + 1, vb + 2, sreg + 4, sreg + 5))
    a.label(lab)
    a("s_mov_b64 exec, s[%d:%d]" % (sreg + 2, sreg + 3))

def dstamp(a, kl, word, mn=False, sreg=88, vb=251, tid=0, mask=31):
    if not OPT.get("dbgst"): return
    lab = a.newlabel("L_ds")
    a("s_and_b32 s%d, s2, %d" % (sreg, mask))
    a("s_cmp_lg_u32 s%d, 0" % sreg)
    a("s_cbranch_scc1 %s" % lab)
    a("s_memrealtime s[%d:%d]" % (sreg, sreg + 1))
    a("s_waitcnt lgkmcnt(0)")
    if mn: a("s_not_b32 s%d, s%d" % (sreg, sreg))
    if tid <= 64: a("v_cmp_eq_u32 vcc, %d, v0" % tid)
    else:
        a("v_mov_b32 v%d, %d" % (vb, tid)); a("v_cmp_eq_u32 vcc, v%d, v0" % vb)
    a("s_and_saveexec_b64 s[%d:%d], vcc" % (sreg + 2, sreg + 3))
    a("s_cbranch_execz %s_r" % lab)
    a("s_add_u32 s%d, s24, %d" % (sreg + 4, (2 - kl) * 512))
    a("s_addc_u32 s%d, s25, 0" % (sreg + 5))
    a("v_mov_b32 v%d, %d" % (vb, word * 4))
    a("v_mov_b32 v%d, s%d" % (vb + 1, sreg))
    a("global_atomic_umax v%d, v%d, s[%d:%d]" % (vb, vb + 1, sreg + 4, sreg + 5))
    a.label("%s_r" % lab)
    a("s_mov_b64 exec, s[%d:%d]" % (sreg + 2, sreg + 3))
    a.label(lab)

def prefetch_w(a, sM, sJ, sW, vl, sector, sa, sb, srdg, srdu, srdd, vdst, vt):
    t0, t1, t2, t3 = vt, vt + 1, vt + 2, vt + 3
    a("v_mul_u32_u24 v%d, 52, v%d" % (t0, vl))
    a("v_lshrrev_b32 v%d, 8, v%d" % (t0, t0))
    a("v_mul_u32_u24 v%d, 5, v%d" % (t1, t0))
    a("v_sub_u32 v%d, v%d, v%d" % (t1, vl, t1))
    a("s_lshl_b32 s%d, s%d, 2" % (sa, sM))
    a("s_add_u32 s%d, s%d, s%d" % (sa, sa, sW))
    a("s_mul_i32 s%d, s%d, 9" % (sa, sa))
    a("v_add_u32 v%d, s%d, v%d" % (t2, sa, t0))
    a("s_movk_i32 s%d, 9216" % sb)
    a("v_mul_lo_u32 v%d, v%d, s%d" % (t2, t2, sb))
    a("v_lshl_add_u32 v%d, v%d, 7, v%d" % (t2, t1, t2))
    a("v_cmp_gt_u32 vcc, 9, v%d" % t0)
    a("v_mov_b32 v%d, 0x7ff00000" % t3)
    a("s_nop 0")
    a("v_cndmask_b32 v%d, v%d, v%d, vcc" % (t2, t3, t2))
    a("s_mul_i32 s%d, s%d, 288" % (sa, sJ))
    a("s_and_b32 s%d, s%d, 1" % (sb, sJ))
    a("s_lshl_b32 s%d, s%d, 5" % (sb, sb))
    a("s_sub_u32 s%d, s%d, s%d" % (sa, sa, sb))
    a("s_lshl_b32 s%d, s%d, 1" % (sa, sa))
    n = 0
    for srd_ in (srdg, srdu):
        a("buffer_load_dword v%d, v%d, s[%d:%d], s%d offen" % (vdst, t2, srd_, srd_ + 3, sa)); n += 1
        if sector: a("buffer_load_dword v%d, v%d, s[%d:%d], s%d offen offset:64" % (vdst, t2, srd_, srd_ + 3, sa)); n += 1
    a("v_mul_u32_u24 v%d, 57, v0" % t0)
    a("v_lshrrev_b32 v%d, 9, v%d" % (t0, t0))
    a("v_mul_u32_u24 v%d, 9, v%d" % (t1, t0))
    a("v_sub_u32 v%d, v0, v%d" % (t1, t1))
    a("s_mul_i32 s%d, s%d, 288" % (sa, sJ))
    a("s_mul_i32 s%d, s%d, 18" % (sb, sM))
    a("s_add_u32 s%d, s%d, s%d" % (sa, sa, sb))
    a("v_add_u32 v%d, s%d, v%d" % (t2, sa, t0))
    a("s_movk_i32 s%d, 1152" % sb)
    a("v_mul_lo_u32 v%d, v%d, s%d" % (t2, t2, sb))
    a("v_lshl_add_u32 v%d, v%d, 7, v%d" % (t2, t1, t2))
    a("v_cmp_gt_u32 vcc, 18, v%d" % t0)
    a("s_nop 1")
    a("v_cndmask_b32 v%d, v%d, v%d, vcc" % (t2, t3, t2))
    a("buffer_load_dword v%d, v%d, s[%d:%d], 0 offen" % (vdst, t2, srdd, srdd + 3)); n += 1
    if sector: a("buffer_load_dword v%d, v%d, s[%d:%d], 0 offen offset:64" % (vdst, t2, srdd, srdd + 3)); n += 1
    return n

def mj_from_wg(a, sM, sJ, t0, t1):
    a("s_and_b32 s%d, s2, 7" % t0)
    a("s_lshr_b32 s%d, s2, 3" % t1)
    a("s_lshr_b32 s%d, s%d, 1" % (sM, t1))
    a("s_and_b32 s%d, s%d, 1" % (t1, t1))
    a("s_lshl_b32 s%d, s%d, 1" % (sJ, t0))
    a("s_add_u32 s%d, s%d, s%d" % (sJ, sJ, t1))

def k1(a):
    name = "prep_kernel"
    kernel_begin(a, name)
    NT = N_LN + N_DF + N_TAB
    a("s_cmp_ge_u32 s2, %d" % NT); a("s_cbranch_scc1 L_k1_done")
    load_ptrs(a)
    stamp(a, 0, 0)
    dstamp(a, 0, 0, mn=True)
    a("v_lshrrev_b32 v20, 6, v0")
    a("v_and_b32 v21, 63, v0")
    a("v_readfirstlane_b32 s48, v20")
    def do_prefetch(): pass
    def code_prefetch():
        lab = a.newlabel("L_nocpf")
        a("s_sub_u32 s60, s2, %d" % N_LN)
        a("s_lshr_b32 s60, s60, 3")
        a("s_cmp_ge_u32 s60, 4"); a("s_cbranch_scc1 %s" % lab)
        a("s_getpc_b64 s[56:57]")
        a.label("L_k1_pc")
        a("s_add_u32 s56, s56, ffn_kernel-L_k1_pc")
        a("s_addc_u32 s57, s57, 0")
        a("s_lshl_b32 s60, s60, 14")
        a("v_lshlrev_b32 v30, 6, v0")
        a("v_add_u32 v30, s60, v30")
        a("v_cmp_gt_u32 vcc, L_code_end-ffn_kernel, v30")
        a("s_and_saveexec_b64 s[58:59], vcc")
        a("s_cbranch_execz %s_r" % lab)
        a("global_load_dword v31, v30, s[56:57]")
        a.label("%s_r" % lab)
        a("s_mov_b64 exec, s[58:59]")
        a.label(lab)
    def w_prefetch():
        srd(a, 68, 16, D * F * 2); srd(a, 72, 18, D * F * 2); srd(a, 76, 20, D * F * 2)
        a("s_and_b32 s60, s2, 7"); a("s_lshr_b32 s61, s2, 3")
        a("v_mul_u32_u24 v90, 57, v21"); a("v_lshrrev_b32 v90, 9, v90")
        a("v_mul_u32_u24 v91, 9, v90"); a("v_sub_u32 v91, v21, v91")
        a("s_lshl_b32 s62, s61, 2"); a("s_add_u32 s62, s62, s48"); a("s_mul_i32 s62, s62, 9")
        a("v_add_u32 v91, s62, v91")
        a("s_movk_i32 s63, 9216")
        a("v_mul_lo_u32 v91, v91, s63")
        a("v_and_b32 v92, 1, v90")
        a("v_lshrrev_b32 v93, 1, v90")
        a("s_mul_i32 s63, s60, 576")
        a("v_mul_u32_u24 v94, 320, v93")
        a("v_add_u32 v94, s63, v94")
        a("v_lshl_add_u32 v95, v94, 1, v91")
        a("v_mul_u32_u24 v96, 640, v93")
        a("v_sub_u32 v96, 512, v96")
        a("v_add_u32 v96, v95, v96")
        a("v_cmp_gt_u32 vcc, 2, v93")
        a("v_mov_b32 v97, 0x7ff00000")
        a("v_cmp_eq_u32 s[64:65], 0, v92")
        a("s_nop 1")
        a("v_cndmask_b32 v95, v97, v95, vcc")
        a("v_cndmask_b32 v96, v97, v96, vcc")
        a("v_cndmask_b32 v98, v97, v95, s[64:65]")
        a("v_cndmask_b32 v99, v95, v97, s[64:65]")
        a("v_cndmask_b32 v100, v97, v96, s[64:65]")
        a("v_cndmask_b32 v101, v96, v97, s[64:65]")
        for stg in range(4):
            a("buffer_load_dword v102, v98, s[68:71], 0 offen offset:%d" % (128 * stg))
            a("buffer_load_dword v102, v99, s[72:75], 0 offen offset:%d" % (128 * stg))
        a("buffer_load_dword v102, v100, s[68:71], 0 offen")
        a("buffer_load_dword v102, v101, s[72:75], 0 offen")
        a("v_mul_u32_u24 v90, 57, v0"); a("v_lshrrev_b32 v90, 9, v90")
        a("v_mul_u32_u24 v91, 9, v90"); a("v_sub_u32 v91, v0, v91")
        a("s_mul_i32 s62, s61, 18"); a("s_mul_i32 s63, s60, 576"); a("s_add_u32 s62, s62, s63")
        a("v_add_u32 v92, s62, v90")
        a("s_movk_i32 s63, 1152")
        a("v_mul_lo_u32 v92, v92, s63")
        a("v_lshl_add_u32 v92, v91, 7, v92")
        a("v_cmp_gt_u32 vcc, 18, v90")
        a("s_nop 1")
        a("v_cndmask_b32 v92, v97, v92, vcc")
        a("buffer_load_dword v102, v92, s[76:79], 0 offen")
        a("s_mov_b32 s63, %d" % (288 * 1152))
        a("buffer_load_dword v102, v92, s[76:79], s63 offen")
    a("s_cmp_ge_u32 s2, %d" % (N_LN + N_DF + N_TAB)); a("s_cbranch_scc1 L_k1_done")
    a("s_cmp_ge_u32 s2, %d" % N_LN); a("s_cbranch_scc1 L_k1_df")
    srd(a, 32, 4, S * D * 2)
    srd(a, 36, 26, S * D * 2, WS_XNF)
    srd(a, 40, 26, CF_BYTES, WS_CF)
    a("v_lshrrev_b32 v1, 4, v0")
    a("v_and_b32 v2, 15, v0")
    a("s_lshl_b32 s3, s2, 4")
    a("v_add_u32 v1, s3, v1")
    a("s_movk_i32 s28, 1152")
    a("v_mul_lo_u32 v3, v1, s28")
    a("v_lshl_add_u32 v3, v2, 3, v3")
    for i in range(9):
        a("buffer_load_dwordx2 v[%d:%d], v3, s[32:35], 0 offen offset:%d" % (8 + 2 * i, 9 + 2 * i, i * 128))
    do_prefetch()
    a("v_lshrrev_b32 v4, 5, v1")
    a("s_mov_b32 s29, 36864")
    a("v_mul_lo_u32 v4, v4, s29")
    a("v_lshrrev_b32 v5, 2, v2")
    a("v_lshl_add_u32 v4, v5, 10, v4")
    a("v_bfe_u32 v5, v2, 1, 1")
    a("v_lshl_add_u32 v4, v5, 9, v4")
    a("v_and_b32 v5, 31, v1")
    a("v_lshl_add_u32 v4, v5, 4, v4")
    a("v_and_b32 v5, 1, v2")
    a("v_lshl_add_u32 v4, v5, 3, v4")
    npf = 0
    stamp(a, 4, 0)
    a("s_waitcnt vmcnt(%d)" % npf)
    stamp(a, 4, 1)
    if OPT["pf"]: w_prefetch()
    for i in range(18):
        a("v_lshlrev_b32 v%d, 16, v%d" % (32 + 2 * i, 8 + i))
        a("v_and_b32 v%d, 0xffff0000, v%d" % (33 + 2 * i, 8 + i))
    a("v_add_f32 v70, v32, v33")
    a("v_add_f32 v71, v34, v35")
    for i in range(4, 36, 2):
        a("v_add_f32 v70, v70, v%d" % (32 + i))
        a("v_add_f32 v71, v71, v%d" % (33 + i))
    a("v_add_f32 v70, v70, v71")
    def row_sum(r):
        for sh in (8, 4, 2, 1):
            a("s_nop 1")
            a("v_add_f32_dpp v%d, v%d, v%d row_ror:%d row_mask:0xf bank_mask:0xf" % (r, r, r, sh))
    row_sum(70)
    a("v_mul_f32 v70, 0x%08x, v70" % f2u(1.0 / 576))
    a("v_mov_b32 v72, 0"); a("v_mov_b32 v73, 0")
    for i in range(0, 36, 2):
        a("v_sub_f32 v74, v%d, v70" % (32 + i))
        a("v_sub_f32 v75, v%d, v70" % (33 + i))
        a("v_fmac_f32 v72, v74, v74")
        a("v_fmac_f32 v73, v75, v75")
    a("v_add_f32 v72, v72, v73")
    row_sum(72)
    a("v_mul_f32 v72, 0x%08x, v72" % f2u(1.0 / 576))
    a("v_cvt_pk_bf16_f32 v76, v70, v72")
    a("v_lshlrev_b32 v70, 16, v76")
    a("v_and_b32 v72, 0xffff0000, v76")
    a("v_add_f32 v72, 0x%08x, v72" % f2u(1e-5))
    a("v_cvt_pk_bf16_f32 v76, v72, v72")
    a("v_lshlrev_b32 v72, 16, v76")
    a("v_sqrt_f32 v72, v72")
    a("s_nop 0")
    a("v_cvt_pk_bf16_f32 v76, v72, v72")
    a("v_lshlrev_b32 v72, 16, v76")
    a("v_rcp_f32 v72, v72")
    a("v_mov_b32 v77, 0")
    for i in range(18):
        x0, x1 = 32 + 2 * i, 33 + 2 * i
        a("v_sub_f32 v%d, v%d, v70" % (x0, x0))
        a("v_sub_f32 v%d, v%d, v70" % (x1, x1))
        a("v_cvt_pk_bf16_f32 v76, v%d, v%d" % (x0, x1))
        a("v_lshlrev_b32 v%d, 16, v76" % x0)
        a("v_and_b32 v%d, 0xffff0000, v76" % x1)
        a("v_mul_f32 v%d, v%d, v72" % (x0, x0))
        a("v_mul_f32 v%d, v%d, v72" % (x1, x1))
        a("v_cvt_pk_bf16_f32 v%d, v%d, v%d" % (8 + i, x0, x1))
        a("v_lshlrev_b32 v%d, 16, v%d" % (x0, 8 + i))
        a("v_and_b32 v%d, 0xffff0000, v%d" % (x1, 8 + i))
        a("v_sub_f32 v%d, v%d, v%d" % (x0, x0, x1))
        a("v_add_f32 v77, v77, v%d" % x0)
    stamp(a, 4, 2)
    for i in range(9):
        a("s_mov_b32 s30, %d" % (i * 4096))
        a("buffer_store_dwordx2 v[%d:%d], v4, s[36:39], s30 offen %s" % (8 + 2 * i, 9 + 2 * i, OPT.get("k1st", "")))
    row_sum(77)
    a("v_cvt_pk_bf16_f32 v77, v77, v77")
    a("v_mov_b32 v78, 0")
    a("v_lshlrev_b32 v79, 1, v1")
    a("v_add_u32 v79, %d, v79" % (288 * 8192))
    a("v_cmp_eq_u32 vcc, 0, v2")
    a("v_mov_b32 v80, 0x7ff00000")
    a("s_nop 0")
    a("v_cndmask_b32 v79, v80, v79, vcc")
    a("buffer_store_short v77, v79, s[40:43], 0 offen")
    a("s_movk_i32 s30, 4096")
    a("buffer_store_short v78, v79, s[40:43], s30 offen")
    stamp(a, 0, 1)
    dstamp(a, 0, 1)
    stamp(a, 4, 3)
    a("s_branch L_k1_done")
    a.label("L_k1_df")
    a("s_cmp_ge_u32 s2, %d" % (N_LN + N_DF)); a("s_cbranch_scc1 L_k1_tab")
    a("s_sub_u32 s28, s2, %d" % N_LN)
    a("s_lshl_b32 s28, s28, 2")
    a("s_add_u32 s28, s28, s48")
    a("s_mul_hi_u32 s29, s28, %d" % (-(-(1 << 32) // 36)))
    a("s_mul_i32 s30, s29, 36")
    a("s_sub_u32 s30, s28, s30")
    a("s_cmp_ge_u32 s29, 9")
    a("s_cselect_b32 s32, s12, s10")
    a("s_cselect_b32 s33, s13, s11")
    a("s_cselect_b32 s31, 9, 0")
    a("s_mov_b32 s34, %d" % (D * D * 2)); a("s_mov_b32 s35, 0x00020000")
    a("s_sub_u32 s29, s29, s31")
    srd(a, 36, 26, DF_BYTES, WS_DF)
    a("v_and_b32 v1, 31, v21")
    a("s_lshl_b32 s29, s29, 5")
    a("v_add_u32 v1, s29, v1")
    a("s_movk_i32 s31, 1152")
    a("v_mul_lo_u32 v1, v1, s31")
    a("v_lshrrev_b32 v2, 5, v21")
    a("v_lshl_add_u32 v1, v2, 4, v1")
    a("s_lshl_b32 s30, s30, 5")
    a("buffer_load_dwordx4 v[8:11], v1, s[32:35], s30 offen")
    if OPT.get("cpf", 1): code_prefetch()
    a("v_lshlrev_b32 v3, 4, v21")
    a("s_lshl_b32 s28, s28, 10")
    a("s_waitcnt vmcnt(0)")
    a("buffer_store_dwordx4 v[8:11], v3, s[36:39], s28 offen %s" % OPT.get("k1st", ""))
    stamp(a, 0, 2)
    a("s_branch L_k1_done")
    a.label("L_k1_tab")
    a("s_sub_u32 s28, s2, %d" % (N_LN + N_DF))
    a("s_lshl_b32 s28, s28, 2")
    a("s_add_u32 s28, s28, s48")
    a("s_cmp_eq_u32 s28, 38"); a("s_cbranch_scc0 L_k1_tab2")
    srd(a, 36, 26, 2048, WS_FLAG)
    a("v_lshlrev_b32 v3, 4, v21")
    a("v_mov_b32 v8, 0"); a("v_mov_b32 v9, 0"); a("v_mov_b32 v10, 0"); a("v_mov_b32 v11, 0")
    a("buffer_store_dwordx4 v[8:11], v3, s[36:39], 0 offen")
    a("buffer_store_dwordx4 v[8:11], v3, s[36:39], 0 offen offset:1024")
    a("s_branch L_k1_done")
    a.label("L_k1_tab2")
    a("s_cmp_ge_u32 s28, 38"); a("s_cbranch_scc1 L_k1_done")
    srd(a, 36, 26, TAB_BYTES, WS_TAB)
    a("v_and_b32 v1, 31, v21")
    a("v_lshrrev_b32 v2, 5, v21")
    a("v_lshlrev_b32 v3, 4, v21")
    a("s_lshl_b32 s29, s28, 10")
    a("s_cmp_ge_u32 s28, 22"); a("s_cbranch_scc1 L_k1_t3")
    a("s_cmp_ge_u32 s28, 6"); a("s_cbranch_scc1 L_k1_t2")
    a("s_and_b32 s30, s28, 1")
    a("s_lshl_b32 s30, s30, 4")
    a("v_lshl_add_u32 v4, v2, 3, s30")
    for j in range(8):
        a("v_add_u32 v5, %d, v4" % j)
        a("v_mul_u32_u24 v5, v5, v1")
        a("v_and_b32 v5, 31, v5")
        a("v_cvt_f32_u32 v5, v5")
        a("v_mul_f32 v5, 0x%08x, v5" % f2u(1.0 / 32))
        a("v_cos_f32 v%d, v5" % (8 + j))
        a("v_sin_f32 v%d, v5" % (16 + j))
    a("s_nop 0")
    a("s_cmp_lt_u32 s28, 2"); a("s_cbranch_scc1 L_k1_t1p")
    for j in range(8): a("v_mov_b32 v%d, v%d" % (8 + j, 16 + j))
    a("s_cmp_lt_u32 s28, 4"); a("s_cbranch_scc1 L_k1_t1p")
    for j in range(8): a("v_sub_f32 v%d, 0, v%d" % (8 + j, 16 + j))
    a.label("L_k1_t1p")
    for d in range(4): a("v_cvt_pk_bf16_f32 v%d, v%d, v%d" % (24 + d, 8 + 2 * d, 9 + 2 * d))
    a("buffer_store_dwordx4 v[24:27], v3, s[36:39], s29 offen")
    a("s_branch L_k1_done")
    a.label("L_k1_t2")
    a("s_sub_u32 s30, s28, 6")
    a("s_lshr_b32 s31, s30, 3")
    a("s_and_b32 s30, s30, 7")
    a("s_lshl_b32 s31, s31, 5")
    a("s_lshr_b32 s40, s30, 1"); a("s_lshl_b32 s40, s40, 3")
    a("s_add_u32 s31, s31, s40")
    a("s_and_b32 s40, s30, 1"); a("s_lshl_b32 s40, s40, 1")
    a("s_add_u32 s31, s31, s40")
    a("v_lshl_add_u32 v4, v2, 2, s31")
    for i in range(2):
        a("v_add_u32 v5, %d, v4" % i)
        a("v_mul_u32_u24 v5, v5, v1")
        a("v_cvt_f32_u32 v5, v5")
        a("v_mul_f32 v5, 0x%08x, v5" % f2u(1.0 / 2048))
        a("v_cos_f32 v%d, v5" % (24 + 2 * i))
        a("v_sin_f32 v%d, v5" % (25 + 2 * i))
    a("s_nop 1")
    a("buffer_store_dwordx4 v[24:27], v3, s[36:39], s29 offen")
    a("s_branch L_k1_done")
    a.label("L_k1_t3")
    a("s_sub_u32 s30, s28, 22")
    a("s_lshr_b32 s31, s30, 3")
    a("s_bfe_u32 s40, s30, 0x10002")
    a("s_and_b32 s30, s30, 3")
    a("s_lshl_b32 s40, s40, 5")
    a("v_add_u32 v1, s40, v1")
    a("s_lshl_b32 s30, s30, 4")
    a("v_lshl_add_u32 v4, v2, 2, s30")
    for j in range(8):
        a("v_add_u32 v5, %d, v4" % (j if j < 4 else 8 + j - 4))
        a("v_mul_u32_u24 v5, v5, v1")
        a("v_and_b32 v5, 63, v5")
        a("v_cvt_f32_u32 v5, v5")
        a("v_mul_f32 v5, 0x%08x, v5" % f2u(1.0 / 64))
        a("v_cos_f32 v%d, v5" % (8 + j))
        a("v_sin_f32 v%d, v5" % (16 + j))
    a("s_nop 0")
    a("s_cmp_eq_u32 s31, 0"); a("s_cbranch_scc1 L_k1_t3p")
    for j in range(8): a("v_mov_b32 v%d, v%d" % (8 + j, 16 + j))
    a.label("L_k1_t3p")
    for d in range(4): a("v_cvt_pk_bf16_f32 v%d, v%d, v%d" % (24 + d, 8 + 2 * d, 9 + 2 * d))
    a("buffer_store_dwordx4 v[24:27], v3, s[36:39], s29 offen")
    a.label("L_k1_done")
    a("s_endpgm")
    return name

ACC = [16, 80]
XOV = 144
AF = 176
GT = 200
HP = 216
V_LANE16 = 1
V_DM0, V_DM1 = 2, 3
V_DH0, V_DH1 = 4, 5
V_TR = [6, 7, 8, 9]
V_TRH = [10, 11]
V_H = 12
V_HH = 13
V_C0 = 14
V_D2 = 224
V_TR2 = [225, 226, 227, 228]
V_HR = 229
V_CF = 230
BR = 232
S_W = 32; S_X = 36; S_D = 40; S_P = 44
S_WAVE, S_TM, S_FH, S_M, S_J = 48, 49, 50, 51, 52
S_FB, S_FHB = 53, 54
S_LDSW = 55
S_COL = [56, 57, 58, 59, 60]
S_OFF = 61; S_T0 = 62; S_T1 = 63; S_C1 = 64
S_PB = 65; S_LDS2 = 66
S_WD0, S_WD1, S_OFF2 = 67, 68, 69
S_XB = 70
S_DF = 72
S_CF = 76
S_DFB = 80; S_CFB = 81
S_ROW = 4
S_ROT = 82; S_RB = 83

def xreg(ks, t):
    i = ks * 2 + t
    if i < 64: return "a[%d:%d]" % (4 * i, 4 * i + 3)
    r = XOV + 4 * (i - 64)
    return "v[%d:%d]" % (r, r + 3)

def gelu_items(accbase, tiles):
    items = []
    c1 = "s%d" % S_C1
    for n, (ti, off, areg) in enumerate(tiles):
        base = accbase + 16 * ti
        hp = HP + 4 * (n & 1)
        for pr in range(4):
            g0, g1 = base + 2 * pr, base + 2 * pr + 1
            u0, u1 = g0 + 8, g1 + 8
            t0, t1 = GT + 4 * (pr & 1), GT + 4 * (pr & 1) + 1
            m0, m1 = t0 + 2, t0 + 3
            items += [
                "v_mul_f32 v%d, v%d, v%d" % (t0, g0, g0),
                "v_mul_f32 v%d, v%d, v%d" % (t1, g1, g1),
                "v_fma_f32 v%d, v%d, %s, v%d" % (t0, t0, c1, V_C0),
                "v_fma_f32 v%d, v%d, %s, v%d" % (t1, t1, c1, V_C0),
                "v_mul_f32 v%d, v%d, v%d" % (t0, t0, g0),
                "v_mul_f32 v%d, v%d, v%d" % (t1, t1, g1),
                "v_exp_f32 v%d, v%d" % (t0, t0),
                "v_exp_f32 v%d, v%d" % (t1, t1),
                "v_mul_f32 v%d, v%d, v%d" % (m0, g0, u0),
                "v_mul_f32 v%d, v%d, v%d" % (m1, g1, u1),
                "v_add_f32 v%d, 1.0, v%d" % (t0, t0),
                "v_add_f32 v%d, 1.0, v%d" % (t1, t1),
                "v_rcp_f32 v%d, v%d" % (t0, t0),
                "v_rcp_f32 v%d, v%d" % (t1, t1),
                "v_mul_f32 v%d, v%d, v%d" % (m0, m0, t0),
                "v_mul_f32 v%d, v%d, v%d" % (m1, m1, t1),
                "v_cvt_pk_bf16_f32 v%d, v%d, v%d" % (hp + pr, m0, m1),
            ]
        items.append(("lds", "ds_write_b128 v%d, v[%d:%d] offset:%d" % (areg, hp, hp + 3, off), "hw"))
    return items

def k2(a):
    R = OPT["R"]; ABLS = OPT["abl"]
    HB = R * 8192
    name = "ffn_kernel"
    kernel_begin(a, name)
    a("s_cmp_ge_u32 s2, 256"); a("s_cbranch_scc1 L_ffn_done")
    load_ptrs(a)
    stamp(a, 1, 0)
    dstamp(a, 1, 2, mn=True)
    st = Stream(a)
    def emit_item(it):
        if isinstance(it, tuple):
            kind = it[0]
            if kind == "lds": st.lds(it[1], it[2])
            elif kind == "vm": st.vmem(it[1], it[2])
            elif kind == "bar":
                st.wait(vm=it[1])
                if "nobar" not in ABLS: st("s_barrier")
            else: raise ValueError(kind)
        elif isinstance(it, list):
            for x in it: emit_item(x)
        else:
            st(it)
    a("v_lshrrev_b32 v20, 6, v0")
    a("v_and_b32 v21, 63, v0")
    a("v_readfirstlane_b32 s%d, v20" % S_WAVE)
    mj_from_wg(a, S_M, S_J, S_T0, S_T1)
    a("s_lshr_b32 s%d, s%d, 1" % (S_TM, S_WAVE))
    a("s_and_b32 s%d, s%d, 1" % (S_FH, S_WAVE))
    a("s_mul_i32 s%d, s%d, 288" % (S_T0, S_J))
    a("s_lshl_b32 s%d, s%d, 5" % (S_FB, S_T1))
    a("s_add_u32 s%d, s%d, s%d" % (S_FB, S_FB, S_T0))
    a("s_cmp_eq_u32 s%d, 0" % S_T1)
    a("s_cselect_b32 s%d, 256, 0" % S_FHB)
    a("s_add_u32 s%d, s%d, s%d" % (S_FHB, S_FHB, S_T0))
    for s_ in range(4):
        a("s_add_u32 s%d, s%d, %d" % (S_COL[s_], S_FB, 64 * s_))
        a("s_lshl_b32 s%d, s%d, 1" % (S_COL[s_], S_COL[s_]))
    a("s_lshl_b32 s%d, s%d, 5" % (S_COL[4], S_T1))
    a("s_sub_u32 s%d, s%d, s%d" % (S_COL[4], S_FHB, S_COL[4]))
    a("s_lshl_b32 s%d, s%d, 1" % (S_COL[4], S_COL[4]))
    a("s_cmp_ge_u32 s%d, 2" % S_WAVE)
    a("s_cselect_b32 s%d, s18, s16" % S_W)
    a("s_cselect_b32 s%d, s19, s17" % (S_W + 1))
    a("s_mov_b32 s%d, %d" % (S_W + 2, D * F * 2)); a("s_mov_b32 s%d, 0x00020000" % (S_W + 3))
    srd(a, S_X, 26, S * D * 2, WS_XNF)
    a("s_lshl_b32 s%d, s%d, 11" % (S_LDSW, S_WAVE))
    a("v_lshlrev_b32 v%d, 4, v21" % V_LANE16)
    a("v_lshrrev_b32 v22, 3, v21")
    a("s_lshl_b32 s%d, s%d, 4" % (S_T0, S_FH))
    a("v_add_u32 v22, s%d, v22" % S_T0)
    a("s_movk_i32 s%d, 9216" % S_T0)
    a("v_mul_lo_u32 v22, v22, s%d" % S_T0)
    a("v_bfe_u32 v23, v21, 4, 1")
    a("s_lshl_b32 s%d, s%d, 1" % (S_T0, S_TM))
    a("v_or_b32 v23, s%d, v23" % S_T0)
    a("v_bfe_u32 v24, v21, 1, 2")
    a("v_xor_b32 v24, v24, v23")
    a("v_and_b32 v25, 1, v21")
    a("v_lshlrev_b32 v25, 4, v25")
    a("v_lshl_add_u32 v25, v24, 5, v25")
    a("v_add_u32 v%d, v22, v25" % V_DM0)
    a("v_add_u32 v%d, %d, v%d" % (V_DM1, 8 * 9216, V_DM0))
    a("s_lshl_b32 s%d, s%d, 2" % (S_T0, S_M))
    a("s_lshl_b32 s%d, s%d, 1" % (S_T1, S_TM))
    a("s_add_u32 s%d, s%d, s%d" % (S_T0, S_T0, S_T1))
    a("s_mul_i32 s%d, s%d, 36864" % (S_XB, S_T0))
    srd(a, S_D, 20, D * F * 2)
    if OPT.get("rot", 1):
        a("s_mul_i32 s%d, s%d, 18" % (S_ROT, S_M))
        a("s_lshr_b32 s%d, s%d, 4" % (S_ROT, S_ROT))
    else:
        a("s_mov_b32 s%d, 0" % S_ROT)
    for s_ in range(18):
        a("s_add_u32 s%d, s%d, %d" % (S_T0, S_ROT, s_))
        a("s_cmp_ge_u32 s%d, 18" % S_T0)
        a("s_cselect_b32 s%d, 18, 0" % S_T1)
        a("s_sub_u32 s%d, s%d, s%d" % (S_T0, S_T0, S_T1))
        a("s_mul_i32 s%d, s%d, %d" % (S_ROW + s_, S_T0, 32 * 9216))

    def dma_items(g):
        stg, s_ = divmod(g, 18)
        if stg > 4: return []
        if "nodma" in ABLS and g >= 8: return []
        slot = g % R
        v0_, v1_ = (V_DH0, V_DH1) if stg == 4 else (V_DM0, V_DM1)
        g0 = ["s_add_u32 s%d, s%d, s%d" % (S_OFF, S_COL[stg], S_ROW + s_),
              "s_add_u32 m0, s%d, %d" % (S_LDSW, slot * 8192),
              "NOPSLOT",
              ("vm", "buffer_load_dwordx4 v%d, s[%d:%d], s%d offen lds" % (v0_, S_W, S_W + 3, S_OFF), ("W", g))]
        g1 = ["s_add_u32 m0, s%d, %d" % (S_LDSW, slot * 8192 + 1024),
              "NOPSLOT",
              ("vm", "buffer_load_dwordx4 v%d, s[%d:%d], s%d offen lds" % (v1_, S_W, S_W + 3, S_OFF), ("W", g))]
        return [g0, g1]
    def emit_group(grp, filler=None):
        for it in grp:
            if it == "NOPSLOT":
                if not (filler and filler()): st("s_nop 0")
            else: emit_item(it)
    def xload_items(ks):
        out = []
        for t in range(2):
            sl = ks // 2
            out.append(["s_mul_hi_u32 s%d, s%d, %d" % (S_OFF2, S_ROW + sl, -(-(1 << 32) // 144)),
                        "s_add_u32 s%d, s%d, s%d" % (S_OFF2, S_OFF2, S_XB),
                        "s_add_u32 s%d, s%d, %d" % (S_OFF2, S_OFF2, t * 36864 + (ks & 1) * 1024),
                        ("vm", "buffer_load_dwordx4 %s, v%d, s[%d:%d], s%d offen" % (xreg(ks, t), V_LANE16, S_X, S_X + 3, S_OFF2), ("X", ks))])
        return out
    NPRE = R - 1
    XA = OPT["xahead"]
    for s_ in range(NPRE):
        for grp in dma_items(s_): emit_group(grp)
        for ks in (2 * s_, 2 * s_ + 1):
            if ks < XA:
                for it in xload_items(ks): emit_item(it)
    srd(a, S_P, 26, PART_BYTES, WS_PART)
    srd(a, S_DF, 26, DF_BYTES, WS_DF)
    srd(a, S_CF, 26, CF_BYTES, WS_CF)
    a("s_lshl_b32 s%d, s%d, 10" % (S_LDS2, S_WAVE))
    a("s_mov_b32 s%d, 0x%08x" % (S_C1, f2u(-2.0 * 0.7978845608028654 * 1.4426950408889634 * 0.044715)))
    a("v_mov_b32 v%d, 0x%08x" % (V_C0, f2u(-2.0 * 0.7978845608028654 * 1.4426950408889634)))
    a("v_lshrrev_b32 v24, 1, v24")
    a("s_and_b32 s%d, s%d, 1" % (S_T0, S_J))
    a("v_cmp_eq_u32 vcc, s%d, v24" % S_T0)
    a("v_mov_b32 v26, 0x7ff00000")
    a("s_nop 0")
    a("v_cndmask_b32 v%d, v26, v%d, vcc" % (V_DH0, V_DM0))
    a("v_cndmask_b32 v%d, v26, v%d, vcc" % (V_DH1, V_DM1))
    a("v_bfe_u32 v22, v21, 4, 1")
    a("v_bfe_u32 v23, v21, 5, 1")
    a("v_bfe_u32 v24, v21, 2, 2")
    a("v_and_b32 v25, 3, v21")
    a("v_lshlrev_b32 v26, 12, v22")
    a("v_lshl_add_u32 v27, v23, 3, v24")
    a("v_lshl_add_u32 v26, v27, 7, v26")
    a("v_lshl_add_u32 v26, v25, 3, v26")
    a("v_lshrrev_b32 v27, 1, v24")
    a("v_lshl_or_b32 v27, v22, 1, v27")
    a("s_lshl_b32 s%d, s%d, 1" % (S_T0, S_FH))
    a("v_xor_b32 v28, s%d, v27" % S_T0)
    a("v_lshl_add_u32 v%d, v28, 5, v26" % V_TR[0])
    a("v_xor_b32 v28, 1, v28")
    a("v_lshl_add_u32 v%d, v28, 5, v26" % V_TR[1])
    a("v_add_u32 v%d, 49152, v%d" % (V_TR[2], V_TR[0]))
    a("v_add_u32 v%d, 49152, v%d" % (V_TR[3], V_TR[1]))
    a("s_and_b32 s%d, s%d, 1" % (S_T0, S_J))
    a("s_lshl_b32 s%d, s%d, 1" % (S_T0, S_T0))
    a("s_add_u32 s%d, s%d, s%d" % (S_T0, S_T0, S_FH))
    a("v_xor_b32 v28, s%d, v27" % S_T0)
    a("v_lshl_add_u32 v%d, v28, 5, v26" % V_TRH[0])
    a("v_add_u32 v%d, 49152, v%d" % (V_TRH[1], V_TRH[0]))
    a("s_mul_i32 s%d, s%d, 36" % (S_T0, S_TM))
    a("s_lshl_b32 s%d, s%d, 1" % (S_T1, S_FH))
    a("s_add_u32 s%d, s%d, s%d" % (S_T1, S_T1, S_T0))
    a("s_lshl_b32 s%d, s%d, 10" % (S_T1, S_T1))
    a("s_add_u32 s%d, s%d, %d" % (S_T1, S_T1, HB))
    a("v_add_u32 v%d, s%d, v%d" % (V_H, S_T1, V_LANE16))
    a("s_add_u32 s%d, s%d, 16" % (S_T1, S_T0))
    a("s_add_u32 s%d, s%d, s%d" % (S_T1, S_T1, S_FH))
    a("s_lshl_b32 s%d, s%d, 10" % (S_T1, S_T1))
    a("s_add_u32 s%d, s%d, %d" % (S_T1, S_T1, HB))
    a("v_add_u32 v%d, s%d, v%d" % (V_HH, S_T1, V_LANE16))
    a("s_lshl_b32 s%d, s%d, 10" % (S_T1, S_T0))
    a("s_add_u32 s%d, s%d, %d" % (S_T1, S_T1, HB))
    a("v_add_u32 v%d, s%d, v%d" % (V_HR, S_T1, V_LANE16))
    a("v_lshrrev_b32 v22, 3, v21")
    a("s_lshl_b32 s%d, s%d, 3" % (S_T0, S_WAVE))
    a("v_add_u32 v22, s%d, v22" % S_T0)
    a("s_movk_i32 s%d, 1152" % S_T0)
    a("v_mul_lo_u32 v22, v22, s%d" % S_T0)
    a("v_bfe_u32 v23, v21, 4, 1")
    a("v_lshlrev_b32 v23, 1, v23")
    a("v_bfe_u32 v24, v21, 1, 2")
    a("v_xor_b32 v24, v24, v23")
    a("v_and_b32 v25, 1, v21")
    a("v_lshlrev_b32 v25, 4, v25")
    a("v_lshl_add_u32 v25, v24, 5, v25")
    a("v_add_u32 v%d, v22, v25" % V_D2)
    a("v_bfe_u32 v22, v21, 4, 1")
    a("v_bfe_u32 v23, v21, 5, 1")
    a("v_bfe_u32 v24, v21, 2, 2")
    a("v_and_b32 v25, 3, v21")
    a("v_lshl_add_u32 v26, v23, 2, v24")
    a("v_lshlrev_b32 v26, 7, v26")
    a("v_lshl_add_u32 v26, v25, 3, v26")
    a("v_and_b32 v27, 2, v24")
    a("s_lshl_b32 s%d, s%d, 1" % (S_T0, S_FH))
    a("v_or_b32 v28, s%d, v22" % S_T0)
    a("v_xor_b32 v28, v28, v27")
    a("v_lshl_add_u32 v%d, v28, 5, v26" % V_TR2[0])
    for b in range(1, 4):
        a("v_add_u32 v%d, %d, v%d" % (V_TR2[b], 36864 * b, V_TR2[0]))
    a("s_lshl_b32 s%d, s%d, 4" % (S_T0, S_J))
    a("s_add_u32 s%d, s%d, s%d" % (S_T0, S_T0, S_M))
    a("s_lshl_b32 s%d, s%d, 2" % (S_T0, S_T0))
    a("s_lshl_b32 s%d, s%d, 1" % (S_T1, S_TM))
    a("s_add_u32 s%d, s%d, s%d" % (S_T0, S_T0, S_T1))
    a("s_mul_i32 s%d, s%d, %d" % (S_PB, S_T0, 18 * 2048))
    a("s_lshl_b32 s%d, s%d, 11" % (S_T1, S_FH))
    a("s_add_u32 s%d, s%d, s%d" % (S_PB, S_PB, S_T1))
    a("s_mul_i32 s%d, s%d, 1152" % (S_WD0, S_FB))
    a("s_mul_i32 s%d, s%d, 1152" % (S_WD1, S_FHB))
    if OPT.get("rot", 1):
        a("s_mul_i32 s%d, s%d, 9" % (S_RB, S_M))
        a("s_lshr_b32 s%d, s%d, 4" % (S_RB, S_RB))
    else:
        a("s_mov_b32 s%d, 0" % S_RB)
    a("s_lshl_b32 s%d, s%d, 1" % (S_T0, S_J))
    a("s_add_u32 s%d, s%d, s%d" % (S_T0, S_T0, S_FH))
    a("s_mul_i32 s%d, s%d, 36864" % (S_DFB, S_T0))
    a("s_cmp_ge_u32 s%d, 9" % S_T0)
    a("s_cselect_b32 s%d, 9, 0" % S_T1)
    a("s_sub_u32 s%d, s%d, s%d" % (S_T0, S_T0, S_T1))
    a("s_lshl_b32 s%d, s%d, 18" % (S_CFB, S_T0))
    a("s_cselect_b32 s%d, 4096, 0" % S_T1)
    a("s_lshl_b32 s%d, s%d, 1" % (S_T0, S_J))
    a("s_add_u32 s%d, s%d, s%d" % (S_T0, S_T0, S_FH))
    a("s_cmp_ge_u32 s%d, 9" % S_T0)
    a("s_cselect_b32 s%d, 4096, 0" % S_T1)
    a("s_add_u32 s%d, s%d, s%d" % (S_CFB, S_CFB, S_T1))
    a("s_lshl_b32 s%d, s%d, 8" % (S_T0, S_M))
    a("s_add_u32 s%d, s%d, s%d" % (S_CFB, S_CFB, S_T0))
    a("s_lshl_b32 s%d, s%d, 7" % (S_T0, S_TM))
    a("s_add_u32 s%d, s%d, s%d" % (S_CFB, S_CFB, S_T0))
    a("v_and_b32 v22, 31, v21")
    a("v_lshlrev_b32 v22, 13, v22")
    a("v_lshrrev_b32 v23, 5, v21")
    a("v_lshl_add_u32 v%d, v23, 4, v22" % V_CF)
    if OPT.get("dfpf", 1):
        a("v_lshlrev_b32 v22, 7, v21")
        for i in range(5):
            st("s_add_u32 s%d, s%d, %d" % (S_T0, S_DFB, i * 8192))
            st.vmem("buffer_load_dword v%d, v22, s[%d:%d], s%d offen" % (BR, S_DF, S_DF + 3, S_T0), "PF")
    stamp(a, 1, 1)
    dstamp(a, 1, 3)

    HI = 49152
    def trread(g, kk, half):
        slot = g % R
        gks = g * 2 + kk
        buf = gks % 3
        out = []
        ncs = 1 if half else 2
        for c in range(ncs):
            for q in range(2):
                off = slot * 8192 + kk * 2048 + q * 512
                hi = off >= HI
                if half: areg = V_TRH[1 if hi else 0]
                else: areg = V_TR[c + (2 if hi else 0)]
                if hi: off -= HI
                r = AF + (buf * 2 + c) * 4 + q * 2
                out.append(("lds", "ds_read_b64_tr_b16 v[%d:%d], v%d offset:%d" % (r, r + 1, areg, off), ("A", gks)))
        return out
    B = OPT["B"]
    NG = 5 * 18
    st.wait(vm=[("W", i) for i in range(B)])
    st("s_barrier")
    for kk in range(2):
        for it in trread(0, kk, False): emit_item(it)
    next_dma = [NPRE]
    dma_pending = []
    def stage(stg, accset, gelu_q):
        half = stg == 4
        ncs = 1 if half else 2
        gq = list(gelu_q) if "nogelu" not in ABLS else []
        nm_total = 36 * ncs * 2
        per = len(gq) / float(nm_total - 6)
        state = {"acc": 0.0, "em": 0}
        def pop_gelu():
            if gq:
                emit_item(gq.pop(0)); state["em"] += 1
                return True
            return False
        mi = 0
        since_dma = 99
        xq = []
        for ks in range(36):
            g = stg * 18 + ks // 2
            gks = stg * 36 + ks
            buf = gks % 3
            g2, kk2 = divmod(gks + 2, 2)
            bar = None
            if kk2 == 0 and g2 % B == 0 and g2 < NG:
                bar = [("W", i) for i in range(g2, min(g2 + B, NG))]
            reads = trread(g2, kk2, g2 // 18 == 4) if (g2 < NG and "notr" not in ABLS) else []
            if stg == 0 and ks + XA < 36: xq.extend(xload_items(ks + XA))
            st.wait(vm=[("X", ks)] if stg == 0 else [], lg=[("A", gks)])
            ng = ncs * 2
            k = 0
            for c in range(ncs):
                for t in range(2):
                    ti = c * 2 + t
                    d = ACC[accset] + 16 * ti
                    ar = AF + (buf * 2 + c) * 4
                    src = "0" if ks == 0 else "v[%d:%d]" % (d, d + 15)
                    st("v_mfma_f32_32x32x16_bf16 v[%d:%d], v[%d:%d], %s, %s" % (d, d + 15, ar, ar + 3, xreg(ks, t), src))
                    mi += 1
                    if k == 0 and bar is not None:
                        emit_item(("bar", bar))
                        while next_dma[0] < NG and next_dma[0] - R <= g2 - 2:
                            dma_pending.extend(dma_items(next_dma[0])); next_dma[0] += 1
                    lo = k * len(reads) // ng; hi_ = (k + 1) * len(reads) // ng
                    for it in reads[lo:hi_]: emit_item(it)
                    since_dma += 1
                    did = False
                    if xq and k in (1, 3):
                        emit_item(xq.pop(0)); did = True
                    elif dma_pending and since_dma >= OPT.get("dmagap", 4 if not half else 2) and not (k == 0 and bar is not None):
                        emit_group(dma_pending.pop(0), pop_gelu if mi > 6 else None)
                        since_dma = 0; did = True
                    if mi > 6:
                        state["acc"] += per
                        n = 0
                        cap = OPT["gcap"] - (2 if did else 0)
                        while gq and state["em"] < state["acc"] and n < cap:
                            pop_gelu(); n += 1
                    k += 1
        assert not xq
        while gq: pop_gelu()

    def full_tiles(stg):
        return [(c * 2 + t, (t * 18 + c) * 1024 + stg * 4096, V_H) for c in range(2) for t in range(2)]
    stage(0, 0, [])
    stamp(a, 1, 2)
    dstamp(a, 1, 4)
    stage(1, 1, gelu_items(ACC[0], full_tiles(0)))
    stage(2, 0, gelu_items(ACC[1], full_tiles(1)))
    stage(3, 1, gelu_items(ACC[0], full_tiles(2)))
    stage(4, 0, gelu_items(ACC[1], full_tiles(3)))
    assert not dma_pending
    stamp(a, 1, 3)
    dstamp(a, 1, 5)
    S_BC = 84
    def blk_items(dst, b, mul):
        return ["s_add_u32 s%d, s%d, %d" % (dst, S_RB, b),
                "s_cmp_ge_u32 s%d, 9" % dst,
                "s_cselect_b32 s%d, 9, 0" % S_T0,
                "s_sub_u32 s%d, s%d, s%d" % (dst, dst, S_T0),
                "s_mul_i32 s%d, s%d, %d" % (dst, dst, mul)]
    def wd_groups(b):
        buf = b % 4
        out = []
        for i in range(9):
            base = S_WD0 if i < 8 else S_WD1
            off = (32 * i * 1152 if i < 8 else 0)
            pre = blk_items(S_BC, b, 128) if i == 0 else []
            out.append(pre + ["s_add_u32 s%d, s%d, s%d" % (S_OFF, base, S_BC),
                        "s_add_u32 s%d, s%d, %d" % (S_OFF, S_OFF, off),
                        "s_add_u32 m0, s%d, %d" % (S_LDS2, buf * 36864 + i * 4096),
                        "NOPSLOT",
                        ("vm", "buffer_load_dwordx4 v%d, s[%d:%d], s%d offen lds" % (V_D2, S_D, S_D + 3, S_OFF), ("D", b))])
        return out
    st.wait_all(vm=False, lg=True)
    st("s_barrier")
    tail = gelu_items(ACC[0], [(t, t * 18 * 1024, V_HH) for t in range(2)])
    a("s_cmp_ge_u32 s%d, 9" % S_J)
    a("s_cbranch_scc1 L_ffn_noa1")
    vm_save, lg_save = list(st.vm), list(st.lg)
    NB = 18
    def breg(ks):
        i = ks % NB
        r = (AF + 4 * i) if i < 6 else (BR + 4 * (i - 6)) if i < 10 else (112 + 4 * (i - 10))
        return r
    def bload(ks):
        r = breg(ks)
        return ["s_mul_hi_u32 s%d, s%d, %d" % (S_OFF2, S_ROW + ks // 2, -(-(1 << 32) // 144)),
                "s_add_u32 s%d, s%d, s%d" % (S_OFF2, S_OFF2, S_DFB),
                "s_add_u32 s%d, s%d, %d" % (S_OFF2, S_OFF2, (ks & 1) * 1024),
                ("vm", "buffer_load_dwordx4 v[%d:%d], v%d, s[%d:%d], s%d offen" % (r, r + 3, V_LANE16, S_DF, S_DF + 3, S_OFF2), ("B", ks))]
    for ks in range(NB - 1): emit_item(bload(ks))
    wdq = wd_groups(0) + wd_groups(1)
    for _ in range(4): emit_group(wdq.pop(0))
    A1ACC = ACC[1]
    tq = list(tail)
    for ks in range(36):
        st.wait(vm=[("B", ks)])
        for t in range(2):
            d = A1ACC + 16 * t
            br = breg(ks)
            src = "0" if ks == 0 else "v[%d:%d]" % (d, d + 15)
            st("v_mfma_f32_32x32x16_bf16 v[%d:%d], %s, v[%d:%d], %s" % (d, d + 15, xreg(ks, t), br, br + 3, src))
            if t == 0 and ks + NB - 1 < 36:
                emit_item(bload(ks + NB - 1))
            elif t == 1 and wdq and ks % 2 == 1:
                emit_group(wdq.pop(0))
            if ks >= 2:
                for _ in range(3):
                    if tq: emit_item(tq.pop(0))
    assert not tq and not wdq, (len(tq), len(wdq))
    st("s_nop 15"); st("s_nop 3")
    for t in range(2):
        pk = GT + 8 * 0 if t == 0 else HP
        for dd in range(8):
            st("v_cvt_pk_bf16_f32 v%d, v%d, v%d" % (pk + dd, A1ACC + 16 * t + 2 * dd, A1ACC + 16 * t + 2 * dd + 1))
        st("s_nop 1")
        st("v_permlane32_swap_b32 v%d, v%d" % (pk + 0, pk + 2))
        st("v_permlane32_swap_b32 v%d, v%d" % (pk + 1, pk + 3))
        st("v_permlane32_swap_b32 v%d, v%d" % (pk + 4, pk + 6))
        st("v_permlane32_swap_b32 v%d, v%d" % (pk + 5, pk + 7))
        st("s_add_u32 s%d, s%d, %d" % (S_OFF2, S_CFB, t * 64))
        st("s_nop 0")
        st.vmem("buffer_store_dwordx4 v[%d:%d], v%d, s[%d:%d], s%d offen" % (pk, pk + 3, V_CF, S_CF, S_CF + 3, S_OFF2), "CF")
        st.vmem("buffer_store_dwordx4 v[%d:%d], v%d, s[%d:%d], s%d offen offset:32" % (pk + 4, pk + 7, V_CF, S_CF, S_CF + 3, S_OFF2), "CF")
    a("s_branch L_ffn_join")
    vm_a = list(st.vm)
    a.label("L_ffn_noa1")
    st.vm, st.lg = vm_save, lg_save
    for grp in wd_groups(0) + wd_groups(1): emit_group(grp)
    for it in tail: emit_item(it)
    a.label("L_ffn_join")
    st.wait_all(vm=False, lg=True)
    st("s_barrier")
    for t in range(2):
        for ci in range(18):
            i = t * 18 + ci
            st.lds("ds_read_b128 a[%d:%d], v%d offset:%d" % (4 * i, 4 * i + 3, V_HR, i * 1024), ("H", i))
    st.wait_all(vm=False, lg=True)
    st("s_waitcnt vmcnt(4)")
    st("s_barrier")
    st.vm = [("D", 1)] * 4
    for grp in wd_groups(2): emit_group(grp)
    stamp(a, 1, 4)
    dstamp(a, 1, 6)
    A2 = 176; ACC2 = [16, 48]; PK = 200
    def trread2(b, ci):
        gk = b * 18 + ci
        r = A2 + (gk % 4) * 4
        return [("lds", "ds_read_b64_tr_b16 v[%d:%d], v%d offset:%d" % (r + 2 * q, r + 2 * q + 1, V_TR2[b % 4], ci * 2048 + q * 1024), ("A2", gk)) for q in range(2)]
    def epi_items(b):
        items = []
        acc = ACC2[b % 2]
        for t in range(2):
            pk = PK + 8 * t
            for d in range(8):
                items.append("v_cvt_pk_bf16_f32 v%d, v%d, v%d" % (pk + d, acc + 16 * t + 2 * d, acc + 16 * t + 2 * d + 1))
            for q in range(2):
                pre = blk_items(S_BC + 1, b, 4096) if (t == 0 and q == 0) else []
                items.append(pre + ["s_add_u32 s%d, s%d, s%d" % (S_OFF2, S_PB, S_BC + 1),
                              "s_add_u32 s%d, s%d, %d" % (S_OFF2, S_OFF2, t * 18 * 2048),
                              ("vm", "buffer_store_dwordx4 v[%d:%d], v%d, s[%d:%d], s%d offen offset:%d %s" % (pk + 4 * q, pk + 4 * q + 3, V_LANE16, S_P, S_P + 3, S_OFF2, q * 1024, OPT["stflags"]), ("P", b))])
        return items
    for ci in range(3):
        for it in trread2(0, ci): emit_item(it)
    pend = list(wd_groups(3))
    for b in range(9):
        eq = epi_items(b - 1) if b > 0 else []
        mi = 0
        since = 99
        for ci in range(18):
            gk = b * 18 + ci
            nb, nci = divmod(gk + 3, 18)
            reads = trread2(nb, nci) if nb < 9 else []
            st.wait(lg=[("A2", gk)])
            for t in range(2):
                d = ACC2[b % 2] + 16 * t
                ar = A2 + (gk % 4) * 4
                hr = (t * 18 + ci) * 4
                src = "0" if ci == 0 else "v[%d:%d]" % (d, d + 15)
                st("v_mfma_f32_32x32x16_bf16 v[%d:%d], v[%d:%d], a[%d:%d], %s" % (d, d + 15, ar, ar + 3, hr, hr + 3, src))
                mi += 1
                isbar = (t == 0 and ci == 15 and b + 1 < 9)
                if isbar:
                    emit_item(("bar", [("D", b + 1)]))
                    if b >= 1 and b + 3 <= 8:
                        pend.extend(wd_groups(b + 3))
                if reads: emit_item(reads[t])
                since += 1
                vm_done = False
                if pend and since >= 3 and not isbar:
                    emit_group(pend.pop(0)); since = 0; vm_done = True
                if mi > 4 and eq and not vm_done:
                    it = eq.pop(0)
                    if isinstance(it, list):
                        if since >= 2:
                            emit_item(it); since = 0
                        else: eq.insert(0, it)
                    else:
                        emit_item(it)
                        if eq and not isinstance(eq[0], list): emit_item(eq.pop(0))
        while eq: emit_item(eq.pop(0))
    assert not pend
    st("s_nop 15"); st("s_nop 3")
    for it in epi_items(8): emit_item(it)
    stamp(a, 1, 5)
    dstamp(a, 1, 7)
    a.label("L_ffn_done")
    a("s_endpgm")
    return name, max(R * 8192 + 73728, 147456)

K3_WAVES = 11
K3_LDS_COL = 0
K3_LDS_TAB = 16384
K3_LDS = 16384 + 22 * 1024
def k3(a):
    name = "fin_kernel"
    kernel_begin(a, name)
    a("s_cmp_ge_u32 s2, 256"); a("s_cbranch_scc1 L_k3_done")
    load_ptrs(a)
    stamp(a, 2, 0, vb=151)
    dstamp(a, 2, 8, mn=True, vb=151)
    a("v_lshrrev_b32 v1, 6, v0")
    a("v_and_b32 v2, 63, v0")
    a("v_readfirstlane_b32 s48, v1")
    a("s_cmp_ge_u32 s48, 2"); a("s_cbranch_scc1 L_k3_red")
    a("s_mov_b32 s47, s48")
    a("s_lshl_b32 s49, s47, 8")
    a("s_add_u32 s49, s49, s2")
    a("s_cmp_gt_u32 s49, 288"); a("s_cbranch_scc1 L_k3_done")
    srd(a, 32, 26, CF_BYTES, WS_CF)
    srd(a, 36, 26, TAB_BYTES, WS_TAB)
    srd(a, 40, 26, YT_BYTES, WS_YT)
    a("v_lshrrev_b32 v3, 3, v2")
    a("v_lshlrev_b32 v3, 7, v3")
    a("v_bfe_u32 v4, v2, 4, 1")
    a("v_lshlrev_b32 v4, 1, v4")
    a("v_bfe_u32 v5, v2, 1, 2")
    a("v_xor_b32 v5, v5, v4")
    a("v_lshl_add_u32 v3, v5, 5, v3")
    a("v_and_b32 v5, 1, v2")
    a("v_lshl_add_u32 v3, v5, 4, v3")
    a("s_lshl_b32 s50, s49, 13")
    a("s_lshl_b32 s51, s47, 13")
    for i in range(8):
        a("s_add_u32 s52, s50, %d" % (i * 1024))
        a("s_add_u32 m0, s51, %d" % (i * 1024))
        a("s_nop 0")
        a("buffer_load_dwordx4 v3, s[32:35], s52 offen lds")
    a("v_lshlrev_b32 v6, 4, v2")
    for i in range(6):
        a("s_movk_i32 s52, %d" % (i * 1024))
        a("buffer_load_dwordx4 v[%d:%d], v6, s[36:39], s52 offen" % (64 + 4 * i, 67 + 4 * i))
    a("v_bfe_u32 v8, v2, 4, 1")
    a("v_bfe_u32 v9, v2, 5, 1")
    a("v_bfe_u32 v10, v2, 2, 2")
    a("v_and_b32 v11, 3, v2")
    a("v_lshl_add_u32 v12, v9, 3, v10")
    a("v_lshlrev_b32 v12, 7, v12")
    a("v_lshl_add_u32 v12, v11, 3, v12")
    a("v_add_u32 v12, s51, v12")
    a("v_and_b32 v13, 2, v10")
    a("v_xor_b32 v14, v8, v13")
    a("v_lshl_add_u32 v16, v14, 5, v12")
    a("v_xor_b32 v14, 2, v14")
    a("v_lshl_add_u32 v17, v14, 5, v12")
    a("v_and_b32 v18, 31, v2")
    a("v_cvt_f32_u32 v18, v18")
    a("v_mul_f32 v18, 0x%08x, v18" % f2u(1.0 / 2048))
    a("v_cvt_f32_u32 v19, v9")
    a("v_mul_f32 v19, 4.0, v19")
    a("v_mul_f32 v19, v19, v18")
    stamp(a, 5, 0, vb=61, tid=0)
    a("s_waitcnt vmcnt(6)")
    C0, C1, S0, S1, N0, N1 = 64, 68, 72, 76, 80, 84
    for rt in range(2):
        for kk in range(4):
            p, h = kk >> 1, kk & 1
            for q in range(2):
                r = 88 + 4 * kk + 2 * q
                a("ds_read_b64_tr_b16 v[%d:%d], v%d offset:%d" % (r, r + 1, 16 + rt, p * 4096 + h * 2048 + q * 512))
        a("s_waitcnt vmcnt(0) lgkmcnt(0)" if rt == 0 else "s_waitcnt lgkmcnt(0)")
        if rt == 0:
            stamp(a, 5, 1, vb=61, tid=0)
            dstamp(a, 2, 12, vb=61)
        ur, ui = 104, 120
        br = [C0, C1, S0, S1]; bi = [N0, N1, C0, C1]
        for kk in range(4):
            ar = 88 + 4 * kk
            a("v_mfma_f32_32x32x16_bf16 v[%d:%d], v[%d:%d], v[%d:%d], %s" % (ur, ur + 15, ar, ar + 3, br[kk], br[kk] + 3, "0" if kk == 0 else "v[%d:%d]" % (ur, ur + 15)))
            a("v_mfma_f32_32x32x16_bf16 v[%d:%d], v[%d:%d], v[%d:%d], %s" % (ui, ui + 15, ar, ar + 3, bi[kk], bi[kk] + 3, "0" if kk == 0 else "v[%d:%d]" % (ui, ui + 15)))
        if rt == 1:
            pass
        a("s_nop 15"); a("s_nop 3")
        for r in range(0, 16, 2):
            for i in range(2):
                rr = r + i
                s2c = 32 * rt + 8 * (rr >> 2) + (rr & 3)
                a("v_fmamk_f32 v%d, v18, 0x%08x, v19" % (52 + i, f2u(float(s2c))))
            a("v_cos_f32 v54, v52"); a("v_sin_f32 v56, v52")
            a("v_cos_f32 v55, v53"); a("v_sin_f32 v57, v53")
            for i in range(2):
                rr = r + i
                a("v_mul_f32 v%d, v%d, v%d" % (58 + i, ur + rr, 54 + i))
                a("v_mul_f32 v%d, v%d, v%d" % (62 + i, ui + rr, 54 + i))
            for i in range(2):
                rr = r + i
                a("v_fma_f32 v%d, v%d, v%d, v%d" % (58 + i, ui + rr, 56 + i, 58 + i))
                a("v_fma_f32 v%d, -v%d, v%d, v%d" % (62 + i, ur + rr, 56 + i, 62 + i))
            half, dd = r >> 3, (r >> 1) & 3
            base = 20 + 8 * (rt * 2 + half)
            a("v_cvt_pk_bf16_f32 v%d, v58, v59" % (base + dd))
            a("v_cvt_pk_bf16_f32 v%d, v62, v63" % (base + 4 + dd))
        if rt == 0:
            for i in range(8):
                a("s_mov_b32 s52, %d" % ((22 + i) * 1024))
                a("buffer_load_dwordx4 v[%d:%d], v6, s[36:39], s52 offen" % (136 + 4 * i, 139 + 4 * i))
    stamp(a, 5, 2, vb=61, tid=0)
    for i in range(8, 16):
        a("s_mov_b32 s52, %d" % ((22 + i) * 1024))
        a("buffer_load_dwordx4 v[%d:%d], v6, s[36:39], s52 offen" % (64 + 4 * (i - 8), 67 + 4 * (i - 8)))
    def t3reg(i): return (136 + 4 * i) if i < 8 else (64 + 4 * (i - 8))
    a("s_waitcnt vmcnt(8)")
    a("s_nop 1")
    for part in range(2):
        if part == 1: a("s_waitcnt vmcnt(0)")
        for tt in range(2):
            y = 96 + 16 * tt
            for rh in range(4):
                ac = t3reg(part * 8 + tt * 4 + rh)
                vb = 20 + 8 * rh + 4 * part
                a("v_mfma_f32_32x32x16_bf16 v[%d:%d], v[%d:%d], v[%d:%d], %s" % (y, y + 15, ac, ac + 3, vb, vb + 3, "0" if (part == 0 and rh == 0) else "v[%d:%d]" % (y, y + 15)))
    stamp(a, 5, 3, vb=61, tid=0)
    a("v_and_b32 v4, 31, v2")
    a("v_lshlrev_b32 v4, 2, v4")
    a("v_lshrrev_b32 v5, 5, v2")
    a("v_lshl_add_u32 v4, v5, 9, v4")
    a("v_add_u32 v4, s51, v4")
    a("v_add_u32 v7, s51, v6")
    a("s_nop 15"); a("s_nop 3")
    for tt in range(2):
        for r in range(16):
            a("ds_write_b32 v4, v%d offset:%d" % (96 + 16 * tt + r, tt * 4096 + (8 * (r >> 2) + (r & 3)) * 128))
    a("s_waitcnt lgkmcnt(0)")
    for i in range(8):
        a("ds_read_b128 v[%d:%d], v7 offset:%d" % (128 + 4 * i, 131 + 4 * i, i * 1024))
    for i in range(8):
        a("s_waitcnt lgkmcnt(%d)" % (7 - i))
        a("s_add_u32 s52, s50, %d" % (i * 1024))
        a("buffer_store_dwordx4 v[%d:%d], v6, s[40:43], s52 offen sc1" % (128 + 4 * i, 131 + 4 * i))
    stamp(a, 5, 4, vb=61, tid=0)
    a("s_waitcnt vmcnt(0)")
    stamp(a, 5, 5, vb=61, tid=0)
    dstamp(a, 2, 13, vb=61)
    srd(a, 44, 26, FLAG_BYTES, WS_FLAG)
    a("v_cmp_eq_u32 vcc, 0, v2")
    a("v_mov_b32 v4, 0x7ff00000")
    a("s_lshl_b32 s52, s49, 2")
    a("v_mov_b32 v5, s52")
    a("v_cndmask_b32 v4, v4, v5, vcc")
    a("v_mov_b32 v5, 1")
    a("buffer_store_dword v5, v4, s[44:47], 0 offen sc1")
    a("s_branch L_k3_done")
    a.label("L_k3_red")
    a("s_sub_u32 s48, s48, 2")
    srd(a, 32, 26, PART_BYTES, WS_PART)
    srd(a, 36, 26, YT_BYTES, WS_YT)
    srd(a, 40, 4, S * D * 2)
    srd(a, 44, 22, S * D * 2)
    a("s_mul_i32 s49, s2, 9")
    a("s_add_u32 s49, s49, s48")
    a("v_lshlrev_b32 v3, 4, v2")
    a("s_lshl_b32 s53, s49, 10")
    for j in range(16):
        r = 32 + j * 4
        a("buffer_load_dwordx4 v[%d:%d], v3, s[32:35], s53 offen" % (r, r + 3))
        if j < 15: a("s_add_u32 s53, s53, %d" % (64 * 18 * 2048))
    a("s_mul_hi_u32 s51, s49, %d" % (-(-(1 << 32) // 36)))
    a("s_mul_i32 s52, s51, 36")
    a("s_sub_u32 s52, s49, s52")
    a("s_and_b32 s50, s52, 1")
    a("s_lshr_b32 s52, s52, 1")
    a("v_and_b32 v4, 31, v2")
    a("v_lshrrev_b32 v5, 5, v2")
    a("s_lshl_b32 s55, s51, 5")
    a("v_add_u32 v12, s55, v4")
    a("s_movk_i32 s56, 1152")
    a("v_mul_lo_u32 v7, v12, s56")
    a("s_lshl_b32 s57, s52, 6")
    a("s_lshl_b32 s58, s50, 5")
    a("s_add_u32 s57, s57, s58")
    a("v_add_u32 v7, s57, v7")
    a("v_lshl_add_u32 v8, v5, 3, v7")
    for g in range(2):
        a("buffer_load_dwordx2 v[%d:%d], v8, s[40:43], 0 offen offset:%d" % (100 + 2 * g, 101 + 2 * g, g * 16))
    a("v_lshl_add_u32 v9, v5, 4, v7")
    a("s_lshl_b32 s59, s52, 5")
    a("s_lshl_b32 s58, s50, 4")
    a("s_add_u32 s59, s59, s58")
    a("s_cmp_le_u32 s52, 8"); a("s_cbranch_scc0 L_k3_mir")
    a("v_lshlrev_b32 v6, 15, v5")
    a("v_lshl_add_u32 v6, v12, 2, v6")
    a("s_lshl_b32 s54, s59, 13")
    a("s_movk_i32 s58, 8192")
    a("s_branch L_k3_yad")
    a.label("L_k3_mir")
    a("v_sub_u32 v6, 2048, v12")
    a("v_and_b32 v6, 2047, v6")
    a("v_lshlrev_b32 v6, 2, v6")
    a("v_xor_b32 v13, 1, v5")
    a("v_lshl_add_u32 v6, v13, 15, v6")
    a("s_sub_u32 s54, 572, s59")
    a("s_lshl_b32 s54, s54, 13")
    a("s_mov_b32 s58, %d" % (-8192 & 0xffffffff))
    a.label("L_k3_yad")
    n = 16 + 2
    for j in range(16):
        a("s_waitcnt vmcnt(%d)" % (n - (j + 1)))
        for d in range(4):
            src = 32 + j * 4 + d
            e = 2 * d
            if j == 0:
                a("v_lshlrev_b32 v%d, 16, v%d" % (16 + e, src))
                a("v_and_b32 v%d, 0xffff0000, v%d" % (17 + e, src))
            else:
                a("v_lshlrev_b32 v10, 16, v%d" % src)
                a("v_and_b32 v11, 0xffff0000, v%d" % src)
                a("v_add_f32 v%d, v%d, v10" % (16 + e, 16 + e))
                a("v_add_f32 v%d, v%d, v11" % (17 + e, 17 + e))
    a("s_waitcnt vmcnt(0)")
    for g in range(2):
        for h in range(2):
            src = 100 + 2 * g + h
            e = 4 * g + 2 * h
            a("v_lshlrev_b32 v10, 16, v%d" % src)
            a("v_and_b32 v11, 0xffff0000, v%d" % src)
            a("v_add_f32 v%d, v%d, v10" % (16 + e, 16 + e))
            a("v_add_f32 v%d, v%d, v11" % (17 + e, 17 + e))
    stamp(a, 2, 1, vb=151, tid=128)
    dstamp(a, 2, 9, vb=151, tid=128)
    a("s_cmp_lg_u32 s48, 0"); a("s_cbranch_scc1 L_k3_go")
    srd(a, 60, 26, FLAG_BYTES, WS_FLAG)
    a("s_mov_b32 s64, 0")
    a("v_lshlrev_b32 v13, 2, v2")
    a("v_cmp_gt_u32 s[66:67], 33, v2")
    a.label("L_k3_poll")
    for k in range(5):
        a("buffer_load_dword v%d, v13, s[60:63], 0 offen offset:%d sc1" % (112 + k, 256 * k))
    a("s_waitcnt vmcnt(0)")
    a("v_cndmask_b32 v116, 1, v116, s[66:67]")
    a("v_and_b32 v112, v112, v113")
    a("v_and_b32 v114, v114, v115")
    a("v_and_b32 v112, v112, v114")
    a("v_and_b32 v112, v112, v116")
    a("v_cmp_eq_u32 vcc, 1, v112")
    a("s_nop 1")
    a("s_cmp_eq_u64 vcc, exec"); a("s_cbranch_scc1 L_k3_go")
    a("s_sleep 8")
    a("s_add_u32 s64, s64, 1")
    a("s_cmp_lt_u32 s64, 100000"); a("s_cbranch_scc1 L_k3_poll")
    a.label("L_k3_go")
    a("s_barrier")
    stamp(a, 2, 2, vb=151, tid=128)
    dstamp(a, 2, 10, vb=151, tid=128)
    for r in range(8):
        off = 8 * (r >> 2) + (r & 3)
        a("s_mul_i32 s55, s58, %d" % off)
        a("s_add_u32 s55, s55, s54")
        a("buffer_load_dword v%d, v6, s[36:39], s55 offen sc1" % (104 + r))
    a("s_waitcnt vmcnt(0)")
    for r in range(8):
        a("v_add_f32 v%d, v%d, v%d" % (16 + r, 16 + r, 104 + r))
    for d in range(4):
        a("v_cvt_pk_bf16_f32 v%d, v%d, v%d" % (32 + d, 16 + 2 * d, 17 + 2 * d))
    a("s_nop 1")
    a("v_permlane32_swap_b32 v32, v34")
    a("v_permlane32_swap_b32 v33, v35")
    a("s_nop 1")
    a("buffer_store_dwordx4 v[32:35], v9, s[44:47], 0 offen")
    stamp(a, 2, 3, vb=151, tid=128)
    dstamp(a, 2, 11, vb=151, tid=128)
    a.label("L_k3_done")
    a("s_endpgm")
    return name

def main():
    out = sys.argv[1]
    for o in sys.argv[2:]:
        if o == "stamps": OPT["stamps"] = 1
        elif o.startswith("abl="): OPT["abl"].update(o[4:].split(","))
        elif "=" in o:
            k, v = o.split("=", 1)
            OPT[k] = int(v) if v.lstrip("-").isdigit() else v.replace("+", " ")
    lds = max(OPT["R"] * 8192 + 73728, 147456)
    a = Asm()
    a.raw(HEADER.rstrip("\n"))
    a.raw("; @launch kernel=prep_kernel grid=(%d,1,1) block=(256,1,1) lds=0" % (N_LN + N_DF + N_TAB))
    a.raw("; @launch kernel=ffn_kernel grid=(256,1,1) block=(256,1,1) lds=%d" % lds)
    a.raw("; @launch kernel=fin_kernel grid=(256,1,1) block=(%d,1,1) lds=16384" % (64 * K3_WAVES))
    a.raw('.amdgcn_target "amdgcn-amd-amdhsa--gfx950"')
    k1(a); k2(a); k3(a)
    a.label("L_code_end")
    big = OPT["stamps"] or OPT.get("dbgst")
    kernel_desc(a, "prep_kernel", 256 if big else 128, 96, 256 if big else 128)
    kernel_desc(a, "ffn_kernel", 512, 96, 256)
    kernel_desc(a, "fin_kernel", 168, 96, 168)
    open(out, "w").write(a.text())
if __name__ == "__main__":
    main()
```

```python
import sys, math
from asmgen import *
from sched import *

S, D, F = 2048, 576, 4608
OPT = {"B": 2, "R": 9, "abl": set(), "gcap": 3, "stamps": 0, "pf": 2, "stflags": "sc1", "xahead": 6, "pert": 0.0}
WS_XNF   = 0
WS_CF    = 4 << 20
CF_BYTES = 289 * 8192
WS_DF    = 8 << 20
DF_BYTES = 18 * 36864
WS_TAB   = 9 << 20
TAB_BYTES = 38 * 1024
WS_YT    = 12 << 20
YT_BYTES = 289 * 8192
WS_FLAG  = 10 << 20
FLAG_BYTES = 289 * 4
WS_PART  = 24 << 20
PART_BYTES = 16 * S * D * 2
WS_STAMP = 128 << 20
N_LN, N_DF, N_TAB = 128, 162, 10
PF0 = 304
N_K1 = PF0 + 256
N_FFT, N_RED = 73, 288

def srd(a, sd, sp, nbytes, off=0):
    if off:
        a("s_add_u32 s%d, s%d, %d" % (sd, sp, off))
        a("s_addc_u32 s%d, s%d, 0" % (sd + 1, sp + 1))
    else:
        a("s_mov_b32 s%d, s%d" % (sd, sp))
        a("s_mov_b32 s%d, s%d" % (sd + 1, sp + 1))
    a("s_mov_b32 s%d, %d" % (sd + 2, nbytes))
    a("s_mov_b32 s%d, 0x00020000" % (sd + 3))

def load_ptrs(a):
    a("s_load_dwordx2 s[4:5], s[0:1], 0")
    a("s_load_dwordx4 s[8:11], s[0:1], 16")
    a("s_load_dwordx2 s[12:13], s[0:1], 32")
    a("s_load_dwordx8 s[16:23], s[0:1], 48")
    a("s_load_dwordx4 s[24:27], s[0:1], 80")
    a("s_waitcnt lgkmcnt(0)")

def stamp(a, kidx, slot, sreg=88, vb=251, tid=0):
    if not OPT["stamps"]: return
    lab = a.newlabel("L_st")
    a("s_memrealtime s[%d:%d]" % (sreg, sreg + 1))
    a("s_memtime s[%d:%d]" % (sreg + 6, sreg + 7))
    a("s_waitcnt lgkmcnt(0)")
    a("v_cmp_eq_u32 vcc, %d, v0" % tid if tid <= 64 else "v_mov_b32 v%d, %d\n    v_cmp_eq_u32 vcc, v%d, v0" % (vb, tid, vb))
    a("s_and_saveexec_b64 s[%d:%d], vcc" % (sreg + 2, sreg + 3))
    a("s_cbranch_execz %s" % lab)
    a("s_lshl_b32 s%d, s2, 7" % (sreg + 4))
    a("s_add_u32 s%d, s%d, %d" % (sreg + 4, sreg + 4, WS_STAMP + kidx * 65536 + slot * 8))
    a("s_add_u32 s%d, s26, s%d" % (sreg + 4, sreg + 4))
    a("s_addc_u32 s%d, s27, 0" % (sreg + 5))
    a("v_mov_b32 v%d, s%d" % (vb + 1, sreg)); a("v_mov_b32 v%d, s%d" % (vb + 2, sreg + 1))
    a("v_mov_b32 v%d, 0" % vb)
    a("global_store_dwordx2 v%d, v[%d:%d], s[%d:%d]" % (vb, vb + 1, vb + 2, sreg + 4, sreg + 5))
    a("s_nop 1")
    a("v_mov_b32 v%d, s%d" % (vb + 1, sreg + 6)); a("v_mov_b32 v%d, s%d" % (vb + 2, sreg + 7))
    a("s_nop 1")
    a("global_store_dwordx2 v%d, v[%d:%d], s[%d:%d] offset:64" % (vb, vb + 1, vb + 2, sreg + 4, sreg + 5))
    a.label(lab)
    a("s_mov_b64 exec, s[%d:%d]" % (sreg + 2, sreg + 3))

def dstamp(a, kl, word, mn=False, sreg=88, vb=251, tid=0, mask=31):
    if not OPT.get("dbgst"): return
    lab = a.newlabel("L_ds")
    a("s_and_b32 s%d, s2, %d" % (sreg, mask))
    a("s_cmp_lg_u32 s%d, 0" % sreg)
    a("s_cbranch_scc1 %s" % lab)
    a("s_memrealtime s[%d:%d]" % (sreg, sreg + 1))
    a("s_waitcnt lgkmcnt(0)")
    if mn: a("s_not_b32 s%d, s%d" % (sreg, sreg))
    if tid <= 64: a("v_cmp_eq_u32 vcc, %d, v0" % tid)
    else:
        a("v_mov_b32 v%d, %d" % (vb, tid)); a("v_cmp_eq_u32 vcc, v%d, v0" % vb)
    a("s_and_saveexec_b64 s[%d:%d], vcc" % (sreg + 2, sreg + 3))
    a("s_cbranch_execz %s_r" % lab)
    a("s_add_u32 s%d, s24, %d" % (sreg + 4, (2 - kl) * 512))
    a("s_addc_u32 s%d, s25, 0" % (sreg + 5))
    a("v_mov_b32 v%d, %d" % (vb, word * 4))
    a("v_mov_b32 v%d, s%d" % (vb + 1, sreg))
    a("global_atomic_umax v%d, v%d, s[%d:%d]" % (vb, vb + 1, sreg + 4, sreg + 5))
    a.label("%s_r" % lab)
    a("s_mov_b64 exec, s[%d:%d]" % (sreg + 2, sreg + 3))
    a.label(lab)

def prefetch_w(a, sM, sJ, sW, vl, sector, sa, sb, srdg, srdu, srdd, vdst, vt):
    t0, t1, t2, t3 = vt, vt + 1, vt + 2, vt + 3
    a("v_mul_u32_u24 v%d, 52, v%d" % (t0, vl))
    a("v_lshrrev_b32 v%d, 8, v%d" % (t0, t0))
    a("v_mul_u32_u24 v%d, 5, v%d" % (t1, t0))
    a("v_sub_u32 v%d, v%d, v%d" % (t1, vl, t1))
    a("s_lshl_b32 s%d, s%d, 2" % (sa, sM))
    a("s_add_u32 s%d, s%d, s%d" % (sa, sa, sW))
    a("s_mul_i32 s%d, s%d, 9" % (sa, sa))
    a("v_add_u32 v%d, s%d, v%d" % (t2, sa, t0))
    a("s_movk_i32 s%d, 9216" % sb)
    a("v_mul_lo_u32 v%d, v%d, s%d" % (t2, t2, sb))
    a("v_lshl_add_u32 v%d, v%d, 7, v%d" % (t2, t1, t2))
    a("v_cmp_gt_u32 vcc, 9, v%d" % t0)
    a("v_mov_b32 v%d, 0x7ff00000" % t3)
    a("s_nop 0")
    a("v_cndmask_b32 v%d, v%d, v%d, vcc" % (t2, t3, t2))
    a("s_mul_i32 s%d, s%d, 288" % (sa, sJ))
    a("s_and_b32 s%d, s%d, 1" % (sb, sJ))
    a("s_lshl_b32 s%d, s%d, 5" % (sb, sb))
    a("s_sub_u32 s%d, s%d, s%d" % (sa, sa, sb))
    a("s_lshl_b32 s%d, s%d, 1" % (sa, sa))
    n = 0
    for srd_ in (srdg, srdu):
        a("buffer_load_dword v%d, v%d, s[%d:%d], s%d offen" % (vdst, t2, srd_, srd_ + 3, sa)); n += 1
        if sector: a("buffer_load_dword v%d, v%d, s[%d:%d], s%d offen offset:64" % (vdst, t2, srd_, srd_ + 3, sa)); n += 1
    a("v_mul_u32_u24 v%d, 57, v0" % t0)
    a("v_lshrrev_b32 v%d, 9, v%d" % (t0, t0))
    a("v_mul_u32_u24 v%d, 9, v%d" % (t1, t0))
    a("v_sub_u32 v%d, v0, v%d" % (t1, t1))
    a("s_mul_i32 s%d, s%d, 288" % (sa, sJ))
    a("s_mul_i32 s%d, s%d, 18" % (sb, sM))
    a("s_add_u32 s%d, s%d, s%d" % (sa, sa, sb))
    a("v_add_u32 v%d, s%d, v%d" % (t2, sa, t0))
    a("s_movk_i32 s%d, 1152" % sb)
    a("v_mul_lo_u32 v%d, v%d, s%d" % (t2, t2, sb))
    a("v_lshl_add_u32 v%d, v%d, 7, v%d" % (t2, t1, t2))
    a("v_cmp_gt_u32 vcc, 18, v%d" % t0)
    a("s_nop 1")
    a("v_cndmask_b32 v%d, v%d, v%d, vcc" % (t2, t3, t2))
    a("buffer_load_dword v%d, v%d, s[%d:%d], 0 offen" % (vdst, t2, srdd, srdd + 3)); n += 1
    if sector: a("buffer_load_dword v%d, v%d, s[%d:%d], 0 offen offset:64" % (vdst, t2, srdd, srdd + 3)); n += 1
    return n

def mj_from_wg(a, sM, sJ, t0, t1):
    a("s_and_b32 s%d, s2, 7" % t0)
    a("s_lshr_b32 s%d, s2, 3" % t1)
    a("s_lshr_b32 s%d, s%d, 1" % (sM, t1))
    a("s_and_b32 s%d, s%d, 1" % (t1, t1))
    a("s_lshl_b32 s%d, s%d, 1" % (sJ, t0))
    a("s_add_u32 s%d, s%d, s%d" % (sJ, sJ, t1))

def k1(a):
    name = "prep_kernel"
    kernel_begin(a, name)
    NT = N_LN + N_DF + N_TAB
    a("s_cmp_ge_u32 s2, %d" % NT); a("s_cbranch_scc1 L_k1_done")
    load_ptrs(a)
    stamp(a, 0, 0)
    dstamp(a, 0, 0, mn=True)
    a("v_lshrrev_b32 v20, 6, v0")
    a("v_and_b32 v21, 63, v0")
    a("v_readfirstlane_b32 s48, v20")
    def do_prefetch(): pass
    def code_prefetch():
        lab = a.newlabel("L_nocpf")
        a("s_sub_u32 s60, s2, %d" % N_LN)
        a("s_lshr_b32 s60, s60, 3")
        a("s_cmp_ge_u32 s60, 4"); a("s_cbranch_scc1 %s" % lab)
        a("s_getpc_b64 s[56:57]")
        a.label("L_k1_pc")
        a("s_add_u32 s56, s56, ffn_kernel-L_k1_pc")
        a("s_addc_u32 s57, s57, 0")
        a("s_lshl_b32 s60, s60, 14")
        a("v_lshlrev_b32 v30, 6, v0")
        a("v_add_u32 v30, s60, v30")
        a("v_cmp_gt_u32 vcc, L_code_end-ffn_kernel, v30")
        a("s_and_saveexec_b64 s[58:59], vcc")
        a("s_cbranch_execz %s_r" % lab)
        a("global_load_dword v31, v30, s[56:57]")
        a.label("%s_r" % lab)
        a("s_mov_b64 exec, s[58:59]")
        a.label(lab)
    def w_prefetch():
        srd(a, 68, 16, D * F * 2); srd(a, 72, 18, D * F * 2); srd(a, 76, 20, D * F * 2)
        a("s_and_b32 s60, s2, 7"); a("s_lshr_b32 s61, s2, 3")
        a("v_mul_u32_u24 v90, 57, v21"); a("v_lshrrev_b32 v90, 9, v90")
        a("v_mul_u32_u24 v91, 9, v90"); a("v_sub_u32 v91, v21, v91")
        a("s_lshl_b32 s62, s61, 2"); a("s_add_u32 s62, s62, s48"); a("s_mul_i32 s62, s62, 9")
        a("v_add_u32 v91, s62, v91")
        a("s_movk_i32 s63, 9216")
        a("v_mul_lo_u32 v91, v91, s63")
        a("v_and_b32 v92, 1, v90")
        a("v_lshrrev_b32 v93, 1, v90")
        a("s_mul_i32 s63, s60, 576")
        a("v_mul_u32_u24 v94, 320, v93")
        a("v_add_u32 v94, s63, v94")
        a("v_lshl_add_u32 v95, v94, 1, v91")
        a("v_mul_u32_u24 v96, 640, v93")
        a("v_sub_u32 v96, 512, v96")
        a("v_add_u32 v96, v95, v96")
        a("v_cmp_gt_u32 vcc, 2, v93")
        a("v_mov_b32 v97, 0x7ff00000")
        a("v_cmp_eq_u32 s[64:65], 0, v92")
        a("s_nop 1")
        a("v_cndmask_b32 v95, v97, v95, vcc")
        a("v_cndmask_b32 v96, v97, v96, vcc")
        a("v_cndmask_b32 v98, v97, v95, s[64:65]")
        a("v_cndmask_b32 v99, v95, v97, s[64:65]")
        a("v_cndmask_b32 v100, v97, v96, s[64:65]")
        a("v_cndmask_b32 v101, v96, v97, s[64:65]")
        for stg in range(4):
            a("buffer_load_dword v102, v98, s[68:71], 0 offen offset:%d" % (128 * stg))
            a("buffer_load_dword v102, v99, s[72:75], 0 offen offset:%d" % (128 * stg))
        a("buffer_load_dword v102, v100, s[68:71], 0 offen")
        a("buffer_load_dword v102, v101, s[72:75], 0 offen")
        a("v_mul_u32_u24 v90, 57, v0"); a("v_lshrrev_b32 v90, 9, v90")
        a("v_mul_u32_u24 v91, 9, v90"); a("v_sub_u32 v91, v0, v91")
        a("s_mul_i32 s62, s61, 18"); a("s_mul_i32 s63, s60, 576"); a("s_add_u32 s62, s62, s63")
        a("v_add_u32 v92, s62, v90")
        a("s_movk_i32 s63, 1152")
        a("v_mul_lo_u32 v92, v92, s63")
        a("v_lshl_add_u32 v92, v91, 7, v92")
        a("v_cmp_gt_u32 vcc, 18, v90")
        a("s_nop 1")
        a("v_cndmask_b32 v92, v97, v92, vcc")
        a("buffer_load_dword v102, v92, s[76:79], 0 offen")
        a("s_mov_b32 s63, %d" % (288 * 1152))
        a("buffer_load_dword v102, v92, s[76:79], s63 offen")
    a("s_cmp_ge_u32 s2, %d" % (N_LN + N_DF + N_TAB)); a("s_cbranch_scc1 L_k1_done")
    a("s_cmp_ge_u32 s2, %d" % N_LN); a("s_cbranch_scc1 L_k1_df")
    srd(a, 32, 4, S * D * 2)
    srd(a, 36, 26, S * D * 2, WS_XNF)
    srd(a, 40, 26, CF_BYTES, WS_CF)
    a("v_lshrrev_b32 v1, 4, v0")
    a("v_and_b32 v2, 15, v0")
    a("s_lshl_b32 s3, s2, 4")
    a("v_add_u32 v1, s3, v1")
    a("s_movk_i32 s28, 1152")
    a("v_mul_lo_u32 v3, v1, s28")
    a("v_lshl_add_u32 v3, v2, 3, v3")
    for i in range(9):
        a("buffer_load_dwordx2 v[%d:%d], v3, s[32:35], 0 offen offset:%d" % (8 + 2 * i, 9 + 2 * i, i * 128))
    do_prefetch()
    a("v_lshrrev_b32 v4, 5, v1")
    a("s_mov_b32 s29, 36864")
    a("v_mul_lo_u32 v4, v4, s29")
    a("v_lshrrev_b32 v5, 2, v2")
    a("v_lshl_add_u32 v4, v5, 10, v4")
    a("v_bfe_u32 v5, v2, 1, 1")
    a("v_lshl_add_u32 v4, v5, 9, v4")
    a("v_and_b32 v5, 31, v1")
    a("v_lshl_add_u32 v4, v5, 4, v4")
    a("v_and_b32 v5, 1, v2")
    a("v_lshl_add_u32 v4, v5, 3, v4")
    npf = 0
    stamp(a, 4, 0)
    a("s_waitcnt vmcnt(%d)" % npf)
    stamp(a, 4, 1)
    if OPT["pf"]: w_prefetch()
    for i in range(18):
        a("v_lshlrev_b32 v%d, 16, v%d" % (32 + 2 * i, 8 + i))
        a("v_and_b32 v%d, 0xffff0000, v%d" % (33 + 2 * i, 8 + i))
    a("v_add_f32 v70, v32, v33")
    a("v_add_f32 v71, v34, v35")
    for i in range(4, 36, 2):
        a("v_add_f32 v70, v70, v%d" % (32 + i))
        a("v_add_f32 v71, v71, v%d" % (33 + i))
    a("v_add_f32 v70, v70, v71")
    def row_sum(r):
        for sh in (8, 4, 2, 1):
            a("s_nop 1")
            a("v_add_f32_dpp v%d, v%d, v%d row_ror:%d row_mask:0xf bank_mask:0xf" % (r, r, r, sh))
    row_sum(70)
    a("v_mul_f32 v70, 0x%08x, v70" % f2u(1.0 / 576))
    a("v_mov_b32 v72, 0"); a("v_mov_b32 v73, 0")
    for i in range(0, 36, 2):
        a("v_sub_f32 v74, v%d, v70" % (32 + i))
        a("v_sub_f32 v75, v%d, v70" % (33 + i))
        a("v_fmac_f32 v72, v74, v74")
        a("v_fmac_f32 v73, v75, v75")
    a("v_add_f32 v72, v72, v73")
    row_sum(72)
    a("v_mul_f32 v72, 0x%08x, v72" % f2u(1.0 / 576))
    a("v_cvt_pk_bf16_f32 v76, v70, v72")
    a("v_lshlrev_b32 v70, 16, v76")
    a("v_and_b32 v72, 0xffff0000, v76")
    a("v_add_f32 v72, 0x%08x, v72" % f2u(1e-5))
    a("v_cvt_pk_bf16_f32 v76, v72, v72")
    a("v_lshlrev_b32 v72, 16, v76")
    a("v_sqrt_f32 v72, v72")
    a("s_nop 0")
    a("v_cvt_pk_bf16_f32 v76, v72, v72")
    a("v_lshlrev_b32 v72, 16, v76")
    a("v_rcp_f32 v72, v72")
    a("v_mov_b32 v77, 0")
    for i in range(18):
        x0, x1 = 32 + 2 * i, 33 + 2 * i
        a("v_sub_f32 v%d, v%d, v70" % (x0, x0))
        a("v_sub_f32 v%d, v%d, v70" % (x1, x1))
        a("v_cvt_pk_bf16_f32 v76, v%d, v%d" % (x0, x1))
        a("v_lshlrev_b32 v%d, 16, v76" % x0)
        a("v_and_b32 v%d, 0xffff0000, v76" % x1)
        a("v_mul_f32 v%d, v%d, v72" % (x0, x0))
        a("v_mul_f32 v%d, v%d, v72" % (x1, x1))
        a("v_cvt_pk_bf16_f32 v%d, v%d, v%d" % (8 + i, x0, x1))
        a("v_lshlrev_b32 v%d, 16, v%d" % (x0, 8 + i))
        a("v_and_b32 v%d, 0xffff0000, v%d" % (x1, 8 + i))
        a("v_sub_f32 v%d, v%d, v%d" % (x0, x0, x1))
        a("v_add_f32 v77, v77, v%d" % x0)
    stamp(a, 4, 2)
    for i in range(9):
        a("s_mov_b32 s30, %d" % (i * 4096))
        a("buffer_store_dwordx2 v[%d:%d], v4, s[36:39], s30 offen %s" % (8 + 2 * i, 9 + 2 * i, OPT.get("k1st", "")))
    row_sum(77)
    a("v_cvt_pk_bf16_f32 v77, v77, v77")
    a("v_mov_b32 v78, 0")
    a("v_lshlrev_b32 v79, 1, v1")
    a("v_add_u32 v79, %d, v79" % (288 * 8192))
    a("v_cmp_eq_u32 vcc, 0, v2")
    a("v_mov_b32 v80, 0x7ff00000")
    a("s_nop 0")
    a("v_cndmask_b32 v79, v80, v79, vcc")
    a("buffer_store_short v77, v79, s[40:43], 0 offen")
    a("s_movk_i32 s30, 4096")
    a("buffer_store_short v78, v79, s[40:43], s30 offen")
    stamp(a, 0, 1)
    dstamp(a, 0, 1)
    stamp(a, 4, 3)
    a("s_branch L_k1_done")
    a.label("L_k1_df")
    a("s_cmp_ge_u32 s2, %d" % (N_LN + N_DF)); a("s_cbranch_scc1 L_k1_tab")
    a("s_sub_u32 s28, s2, %d" % N_LN)
    a("s_lshl_b32 s28, s28, 2")
    a("s_add_u32 s28, s28, s48")
    a("s_mul_hi_u32 s29, s28, %d" % (-(-(1 << 32) // 36)))
    a("s_mul_i32 s30, s29, 36")
    a("s_sub_u32 s30, s28, s30")
    a("s_cmp_ge_u32 s29, 9")
    a("s_cselect_b32 s32, s12, s10")
    a("s_cselect_b32 s33, s13, s11")
    a("s_cselect_b32 s31, 9, 0")
    a("s_mov_b32 s34, %d" % (D * D * 2)); a("s_mov_b32 s35, 0x00020000")
    a("s_sub_u32 s29, s29, s31")
    srd(a, 36, 26, DF_BYTES, WS_DF)
    a("v_and_b32 v1, 31, v21")
    a("s_lshl_b32 s29, s29, 5")
    a("v_add_u32 v1, s29, v1")
    a("s_movk_i32 s31, 1152")
    a("v_mul_lo_u32 v1, v1, s31")
    a("v_lshrrev_b32 v2, 5, v21")
    a("v_lshl_add_u32 v1, v2, 4, v1")
    a("s_lshl_b32 s30, s30, 5")
    a("buffer_load_dwordx4 v[8:11], v1, s[32:35], s30 offen")
    if OPT.get("cpf", 1): code_prefetch()
    a("v_lshlrev_b32 v3, 4, v21")
    a("s_lshl_b32 s28, s28, 10")
    a("s_waitcnt vmcnt(0)")
    a("buffer_store_dwordx4 v[8:11], v3, s[36:39], s28 offen %s" % OPT.get("k1st", ""))
    stamp(a, 0, 2)
    a("s_branch L_k1_done")
    a.label("L_k1_tab")
    a("s_sub_u32 s28, s2, %d" % (N_LN + N_DF))
    a("s_lshl_b32 s28, s28, 2")
    a("s_add_u32 s28, s28, s48")
    a("s_cmp_eq_u32 s28, 38"); a("s_cbranch_scc0 L_k1_tab2")
    srd(a, 36, 26, 2048, WS_FLAG)
    a("v_lshlrev_b32 v3, 4, v21")
    a("v_mov_b32 v8, 0"); a("v_mov_b32 v9, 0"); a("v_mov_b32 v10, 0"); a("v_mov_b32 v11, 0")
    a("buffer_store_dwordx4 v[8:11], v3, s[36:39], 0 offen")
    a("buffer_store_dwordx4 v[8:11], v3, s[36:39], 0 offen offset:1024")
    a("s_branch L_k1_done")
    a.label("L_k1_tab2")
    a("s_cmp_ge_u32 s28, 38"); a("s_cbranch_scc1 L_k1_done")
    srd(a, 36, 26, TAB_BYTES, WS_TAB)
    a("v_and_b32 v1, 31, v21")
    a("v_lshrrev_b32 v2, 5, v21")
    a("v_lshlrev_b32 v3, 4, v21")
    a("s_lshl_b32 s29, s28, 10")
    a("s_cmp_ge_u32 s28, 22"); a("s_cbranch_scc1 L_k1_t3")
    a("s_cmp_ge_u32 s28, 6"); a("s_cbranch_scc1 L_k1_t2")
    a("s_and_b32 s30, s28, 1")
    a("s_lshl_b32 s30, s30, 4")
    a("v_lshl_add_u32 v4, v2, 3, s30")
    for j in range(8):
        a("v_add_u32 v5, %d, v4" % j)
        a("v_mul_u32_u24 v5, v5, v1")
        a("v_and_b32 v5, 31, v5")
        a("v_cvt_f32_u32 v5, v5")
        a("v_mul_f32 v5, 0x%08x, v5" % f2u(1.0 / 32))
        a("v_cos_f32 v%d, v5" % (8 + j))
        a("v_sin_f32 v%d, v5" % (16 + j))
    a("s_nop 0")
    a("s_cmp_lt_u32 s28, 2"); a("s_cbranch_scc1 L_k1_t1p")
    for j in range(8): a("v_mov_b32 v%d, v%d" % (8 + j, 16 + j))
    a("s_cmp_lt_u32 s28, 4"); a("s_cbranch_scc1 L_k1_t1p")
    for j in range(8): a("v_sub_f32 v%d, 0, v%d" % (8 + j, 16 + j))
    a.label("L_k1_t1p")
    for d in range(4): a("v_cvt_pk_bf16_f32 v%d, v%d, v%d" % (24 + d, 8 + 2 * d, 9 + 2 * d))
    a("buffer_store_dwordx4 v[24:27], v3, s[36:39], s29 offen")
    a("s_branch L_k1_done")
    a.label("L_k1_t2")
    a("s_sub_u32 s30, s28, 6")
    a("s_lshr_b32 s31, s30, 3")
    a("s_and_b32 s30, s30, 7")
    a("s_lshl_b32 s31, s31, 5")
    a("s_lshr_b32 s40, s30, 1"); a("s_lshl_b32 s40, s40, 3")
    a("s_add_u32 s31, s31, s40")
    a("s_and_b32 s40, s30, 1"); a("s_lshl_b32 s40, s40, 1")
    a("s_add_u32 s31, s31, s40")
    a("v_lshl_add_u32 v4, v2, 2, s31")
    for i in range(2):
        a("v_add_u32 v5, %d, v4" % i)
        a("v_mul_u32_u24 v5, v5, v1")
        a("v_cvt_f32_u32 v5, v5")
        a("v_mul_f32 v5, 0x%08x, v5" % f2u(1.0 / 2048))
        a("v_cos_f32 v%d, v5" % (24 + 2 * i))
        a("v_sin_f32 v%d, v5" % (25 + 2 * i))
    a("s_nop 1")
    a("buffer_store_dwordx4 v[24:27], v3, s[36:39], s29 offen")
    a("s_branch L_k1_done")
    a.label("L_k1_t3")
    a("s_sub_u32 s30, s28, 22")
    a("s_lshr_b32 s31, s30, 3")
    a("s_bfe_u32 s40, s30, 0x10002")
    a("s_and_b32 s30, s30, 3")
    a("s_lshl_b32 s40, s40, 5")
    a("v_add_u32 v1, s40, v1")
    a("s_lshl_b32 s30, s30, 4")
    a("v_lshl_add_u32 v4, v2, 2, s30")
    for j in range(8):
        a("v_add_u32 v5, %d, v4" % (j if j < 4 else 8 + j - 4))
        a("v_mul_u32_u24 v5, v5, v1")
        a("v_and_b32 v5, 63, v5")
        a("v_cvt_f32_u32 v5, v5")
        a("v_mul_f32 v5, 0x%08x, v5" % f2u(1.0 / 64))
        a("v_cos_f32 v%d, v5" % (8 + j))
        a("v_sin_f32 v%d, v5" % (16 + j))
    a("s_nop 0")
    a("s_cmp_eq_u32 s31, 0"); a("s_cbranch_scc1 L_k1_t3p")
    for j in range(8): a("v_mov_b32 v%d, v%d" % (8 + j, 16 + j))
    a.label("L_k1_t3p")
    for d in range(4): a("v_cvt_pk_bf16_f32 v%d, v%d, v%d" % (24 + d, 8 + 2 * d, 9 + 2 * d))
    a("buffer_store_dwordx4 v[24:27], v3, s[36:39], s29 offen")
    a.label("L_k1_done")
    a("s_endpgm")
    return name

ACC = [16, 80]
XOV = 144
AF = 176
GT = 200
HP = 216
V_LANE16 = 1
V_DM0, V_DM1 = 2, 3
V_DH0, V_DH1 = 4, 5
V_TR = [6, 7, 8, 9]
V_TRH = [10, 11]
V_H = 12
V_HH = 13
V_C0 = 14
V_D2 = 224
V_TR2 = [225, 226, 227, 228]
V_HR = 229
V_CF = 230
BR = 232
S_W = 32; S_X = 36; S_D = 40; S_P = 44
S_WAVE, S_TM, S_FH, S_M, S_J = 48, 49, 50, 51, 52
S_FB, S_FHB = 53, 54
S_LDSW = 55
S_COL = [56, 57, 58, 59, 60]
S_OFF = 61; S_T0 = 62; S_T1 = 63; S_C1 = 64
S_PB = 65; S_LDS2 = 66
S_WD0, S_WD1, S_OFF2 = 67, 68, 69
S_XB = 70
S_DF = 72
S_CF = 76
S_DFB = 80; S_CFB = 81
S_ROW = 4
S_ROT = 82; S_RB = 83

def xreg(ks, t):
    i = ks * 2 + t
    if i < 64: return "a[%d:%d]" % (4 * i, 4 * i + 3)
    r = XOV + 4 * (i - 64)
    return "v[%d:%d]" % (r, r + 3)

def gelu_items(accbase, tiles):
    items = []
    c1 = "s%d" % S_C1
    for n, (ti, off, areg) in enumerate(tiles):
        base = accbase + 16 * ti
        hp = HP + 4 * (n & 1)
        for pr in range(4):
            g0, g1 = base + 2 * pr, base + 2 * pr + 1
            u0, u1 = g0 + 8, g1 + 8
            t0, t1 = GT + 4 * (pr & 1), GT + 4 * (pr & 1) + 1
            m0, m1 = t0 + 2, t0 + 3
            items += [
                "v_mul_f32 v%d, v%d, v%d" % (t0, g0, g0),
                "v_mul_f32 v%d, v%d, v%d" % (t1, g1, g1),
                "v_fma_f32 v%d, v%d, %s, v%d" % (t0, t0, c1, V_C0),
                "v_fma_f32 v%d, v%d, %s, v%d" % (t1, t1, c1, V_C0),
                "v_mul_f32 v%d, v%d, v%d" % (t0, t0, g0),
                "v_mul_f32 v%d, v%d, v%d" % (t1, t1, g1),
                "v_exp_f32 v%d, v%d" % (t0, t0),
                "v_exp_f32 v%d, v%d" % (t1, t1),
                "v_mul_f32 v%d, v%d, v%d" % (m0, g0, u0),
                "v_mul_f32 v%d, v%d, v%d" % (m1, g1, u1),
                "v_add_f32 v%d, 1.0, v%d" % (t0, t0),
                "v_add_f32 v%d, 1.0, v%d" % (t1, t1),
                "v_rcp_f32 v%d, v%d" % (t0, t0),
                "v_rcp_f32 v%d, v%d" % (t1, t1),
                "v_mul_f32 v%d, v%d, v%d" % (m0, m0, t0),
                "v_mul_f32 v%d, v%d, v%d" % (m1, m1, t1),
                "v_cvt_pk_bf16_f32 v%d, v%d, v%d" % (hp + pr, m0, m1),
            ]
        items.append(("lds", "ds_write_b128 v%d, v[%d:%d] offset:%d" % (areg, hp, hp + 3, off), "hw"))
    return items

def k2(a):
    R = OPT["R"]; ABLS = OPT["abl"]
    HB = R * 8192
    name = "ffn_kernel"
    kernel_begin(a, name)
    a("s_cmp_ge_u32 s2, 256"); a("s_cbranch_scc1 L_ffn_done")
    load_ptrs(a)
    stamp(a, 1, 0)
    dstamp(a, 1, 2, mn=True)
    st = Stream(a)
    def emit_item(it):
        if isinstance(it, tuple):
            kind = it[0]
            if kind == "lds": st.lds(it[1], it[2])
            elif kind == "vm": st.vmem(it[1], it[2])
            elif kind == "bar":
                st.wait(vm=it[1])
                if "nobar" not in ABLS: st("s_barrier")
            else: raise ValueError(kind)
        elif isinstance(it, list):
            for x in it: emit_item(x)
        else:
            st(it)
    a("v_lshrrev_b32 v20, 6, v0")
    a("v_and_b32 v21, 63, v0")
    a("v_readfirstlane_b32 s%d, v20" % S_WAVE)
    mj_from_wg(a, S_M, S_J, S_T0, S_T1)
    a("s_lshr_b32 s%d, s%d, 1" % (S_TM, S_WAVE))
    a("s_and_b32 s%d, s%d, 1" % (S_FH, S_WAVE))
    a("s_mul_i32 s%d, s%d, 288" % (S_T0, S_J))
    a("s_lshl_b32 s%d, s%d, 5" % (S_FB, S_T1))
    a("s_add_u32 s%d, s%d, s%d" % (S_FB, S_FB, S_T0))
    a("s_cmp_eq_u32 s%d, 0" % S_T1)
    a("s_cselect_b32 s%d, 256, 0" % S_FHB)
    a("s_add_u32 s%d, s%d, s%d" % (S_FHB, S_FHB, S_T0))
    for s_ in range(4):
        a("s_add_u32 s%d, s%d, %d" % (S_COL[s_], S_FB, 64 * s_))
        a("s_lshl_b32 s%d, s%d, 1" % (S_COL[s_], S_COL[s_]))
    a("s_lshl_b32 s%d, s%d, 5" % (S_COL[4], S_T1))
    a("s_sub_u32 s%d, s%d, s%d" % (S_COL[4], S_FHB, S_COL[4]))
    a("s_lshl_b32 s%d, s%d, 1" % (S_COL[4], S_COL[4]))
    a("s_cmp_ge_u32 s%d, 2" % S_WAVE)
    a("s_cselect_b32 s%d, s18, s16" % S_W)
    a("s_cselect_b32 s%d, s19, s17" % (S_W + 1))
    a("s_mov_b32 s%d, %d" % (S_W + 2, D * F * 2)); a("s_mov_b32 s%d, 0x00020000" % (S_W + 3))
    srd(a, S_X, 26, S * D * 2, WS_XNF)
    a("s_lshl_b32 s%d, s%d, 11" % (S_LDSW, S_WAVE))
    a("v_lshlrev_b32 v%d, 4, v21" % V_LANE16)
    a("v_lshrrev_b32 v22, 3, v21")
    a("s_lshl_b32 s%d, s%d, 4" % (S_T0, S_FH))
    a("v_add_u32 v22, s%d, v22" % S_T0)
    a("s_movk_i32 s%d, 9216" % S_T0)
    a("v_mul_lo_u32 v22, v22, s%d" % S_T0)
    a("v_bfe_u32 v23, v21, 4, 1")
    a("s_lshl_b32 s%d, s%d, 1" % (S_T0, S_TM))
    a("v_or_b32 v23, s%d, v23" % S_T0)
    a("v_bfe_u32 v24, v21, 1, 2")
    a("v_xor_b32 v24, v24, v23")
    a("v_and_b32 v25, 1, v21")
    a("v_lshlrev_b32 v25, 4, v25")
    a("v_lshl_add_u32 v25, v24, 5, v25")
    a("v_add_u32 v%d, v22, v25" % V_DM0)
    a("v_add_u32 v%d, %d, v%d" % (V_DM1, 8 * 9216, V_DM0))
    a("s_lshl_b32 s%d, s%d, 2" % (S_T0, S_M))
    a("s_lshl_b32 s%d, s%d, 1" % (S_T1, S_TM))
    a("s_add_u32 s%d, s%d, s%d" % (S_T0, S_T0, S_T1))
    a("s_mul_i32 s%d, s%d, 36864" % (S_XB, S_T0))
    srd(a, S_D, 20, D * F * 2)
    if OPT.get("rot", 1):
        a("s_mul_i32 s%d, s%d, 18" % (S_ROT, S_M))
        a("s_lshr_b32 s%d, s%d, 4" % (S_ROT, S_ROT))
    else:
        a("s_mov_b32 s%d, 0" % S_ROT)
    for s_ in range(18):
        a("s_add_u32 s%d, s%d, %d" % (S_T0, S_ROT, s_))
        a("s_cmp_ge_u32 s%d, 18" % S_T0)
        a("s_cselect_b32 s%d, 18, 0" % S_T1)
        a("s_sub_u32 s%d, s%d, s%d" % (S_T0, S_T0, S_T1))
        a("s_mul_i32 s%d, s%d, %d" % (S_ROW + s_, S_T0, 32 * 9216))

    def dma_items(g):
        stg, s_ = divmod(g, 18)
        if stg > 4: return []
        if "nodma" in ABLS and g >= 8: return []
        slot = g % R
        v0_, v1_ = (V_DH0, V_DH1) if stg == 4 else (V_DM0, V_DM1)
        g0 = ["s_add_u32 s%d, s%d, s%d" % (S_OFF, S_COL[stg], S_ROW + s_),
              "s_add_u32 m0, s%d, %d" % (S_LDSW, slot * 8192),
              "NOPSLOT",
              ("vm", "buffer_load_dwordx4 v%d, s[%d:%d], s%d offen lds" % (v0_, S_W, S_W + 3, S_OFF), ("W", g))]
        g1 = ["s_add_u32 m0, s%d, %d" % (S_LDSW, slot * 8192 + 1024),
              "NOPSLOT",
              ("vm", "buffer_load_dwordx4 v%d, s[%d:%d], s%d offen lds" % (v1_, S_W, S_W + 3, S_OFF), ("W", g))]
        return [g0, g1]
    def emit_group(grp, filler=None):
        for it in grp:
            if it == "NOPSLOT":
                if not (filler and filler()): st("s_nop 0")
            else: emit_item(it)
    def xload_items(ks):
        out = []
        for t in range(2):
            sl = ks // 2
            out.append(["s_mul_hi_u32 s%d, s%d, %d" % (S_OFF2, S_ROW + sl, -(-(1 << 32) // 144)),
                        "s_add_u32 s%d, s%d, s%d" % (S_OFF2, S_OFF2, S_XB),
                        "s_add_u32 s%d, s%d, %d" % (S_OFF2, S_OFF2, t * 36864 + (ks & 1) * 1024),
                        ("vm", "buffer_load_dwordx4 %s, v%d, s[%d:%d], s%d offen" % (xreg(ks, t), V_LANE16, S_X, S_X + 3, S_OFF2), ("X", ks))])
        return out
    NPRE = R - 1
    XA = OPT["xahead"]
    for s_ in range(NPRE):
        for grp in dma_items(s_): emit_group(grp)
        for ks in (2 * s_, 2 * s_ + 1):
            if ks < XA:
                for it in xload_items(ks): emit_item(it)
    srd(a, S_P, 26, PART_BYTES, WS_PART)
    srd(a, S_DF, 26, DF_BYTES, WS_DF)
    srd(a, S_CF, 26, CF_BYTES, WS_CF)
    a("s_lshl_b32 s%d, s%d, 10" % (S_LDS2, S_WAVE))
    a("s_mov_b32 s%d, 0x%08x" % (S_C1, f2u(-2.0 * 0.7978845608028654 * 1.4426950408889634 * 0.044715)))
    a("v_mov_b32 v%d, 0x%08x" % (V_C0, f2u(-2.0 * 0.7978845608028654 * 1.4426950408889634)))
    a("v_lshrrev_b32 v24, 1, v24")
    a("s_and_b32 s%d, s%d, 1" % (S_T0, S_J))
    a("v_cmp_eq_u32 vcc, s%d, v24" % S_T0)
    a("v_mov_b32 v26, 0x7ff00000")
    a("s_nop 0")
    a("v_cndmask_b32 v%d, v26, v%d, vcc" % (V_DH0, V_DM0))
    a("v_cndmask_b32 v%d, v26, v%d, vcc" % (V_DH1, V_DM1))
    a("v_bfe_u32 v22, v21, 4, 1")
    a("v_bfe_u32 v23, v21, 5, 1")
    a("v_bfe_u32 v24, v21, 2, 2")
    a("v_and_b32 v25, 3, v21")
    a("v_lshlrev_b32 v26, 12, v22")
    a("v_lshl_add_u32 v27, v23, 3, v24")
    a("v_lshl_add_u32 v26, v27, 7, v26")
    a("v_lshl_add_u32 v26, v25, 3, v26")
    a("v_lshrrev_b32 v27, 1, v24")
    a("v_lshl_or_b32 v27, v22, 1, v27")
    a("s_lshl_b32 s%d, s%d, 1" % (S_T0, S_FH))
    a("v_xor_b32 v28, s%d, v27" % S_T0)
    a("v_lshl_add_u32 v%d, v28, 5, v26" % V_TR[0])
    a("v_xor_b32 v28, 1, v28")
    a("v_lshl_add_u32 v%d, v28, 5, v26" % V_TR[1])
    a("v_add_u32 v%d, 49152, v%d" % (V_TR[2], V_TR[0]))
    a("v_add_u32 v%d, 49152, v%d" % (V_TR[3], V_TR[1]))
    a("s_and_b32 s%d, s%d, 1" % (S_T0, S_J))
    a("s_lshl_b32 s%d, s%d, 1" % (S_T0, S_T0))
    a("s_add_u32 s%d, s%d, s%d" % (S_T0, S_T0, S_FH))
    a("v_xor_b32 v28, s%d, v27" % S_T0)
    a("v_lshl_add_u32 v%d, v28, 5, v26" % V_TRH[0])
    a("v_add_u32 v%d, 49152, v%d" % (V_TRH[1], V_TRH[0]))
    a("s_mul_i32 s%d, s%d, 36" % (S_T0, S_TM))
    a("s_lshl_b32 s%d, s%d, 1" % (S_T1, S_FH))
    a("s_add_u32 s%d, s%d, s%d" % (S_T1, S_T1, S_T0))
    a("s_lshl_b32 s%d, s%d, 10" % (S_T1, S_T1))
    a("s_add_u32 s%d, s%d, %d" % (S_T1, S_T1, HB))
    a("v_add_u32 v%d, s%d, v%d" % (V_H, S_T1, V_LANE16))
    a("s_add_u32 s%d, s%d, 16" % (S_T1, S_T0))
    a("s_add_u32 s%d, s%d, s%d" % (S_T1, S_T1, S_FH))
    a("s_lshl_b32 s%d, s%d, 10" % (S_T1, S_T1))
    a("s_add_u32 s%d, s%d, %d" % (S_T1, S_T1, HB))
    a("v_add_u32 v%d, s%d, v%d" % (V_HH, S_T1, V_LANE16))
    a("s_lshl_b32 s%d, s%d, 10" % (S_T1, S_T0))
    a("s_add_u32 s%d, s%d, %d" % (S_T1, S_T1, HB))
    a("v_add_u32 v%d, s%d, v%d" % (V_HR, S_T1, V_LANE16))
    a("v_lshrrev_b32 v22, 3, v21")
    a("s_lshl_b32 s%d, s%d, 3" % (S_T0, S_WAVE))
    a("v_add_u32 v22, s%d, v22" % S_T0)
    a("s_movk_i32 s%d, 1152" % S_T0)
    a("v_mul_lo_u32 v22, v22, s%d" % S_T0)
    a("v_bfe_u32 v23, v21, 4, 1")
    a("v_lshlrev_b32 v23, 1, v23")
    a("v_bfe_u32 v24, v21, 1, 2")
    a("v_xor_b32 v24, v24, v23")
    a("v_and_b32 v25, 1, v21")
    a("v_lshlrev_b32 v25, 4, v25")
    a("v_lshl_add_u32 v25, v24, 5, v25")
    a("v_add_u32 v%d, v22, v25" % V_D2)
    a("v_bfe_u32 v22, v21, 4, 1")
    a("v_bfe_u32 v23, v21, 5, 1")
    a("v_bfe_u32 v24, v21, 2, 2")
    a("v_and_b32 v25, 3, v21")
    a("v_lshl_add_u32 v26, v23, 2, v24")
    a("v_lshlrev_b32 v26, 7, v26")
    a("v_lshl_add_u32 v26, v25, 3, v26")
    a("v_and_b32 v27, 2, v24")
    a("s_lshl_b32 s%d, s%d, 1" % (S_T0, S_FH))
    a("v_or_b32 v28, s%d, v22" % S_T0)
    a("v_xor_b32 v28, v28, v27")
    a("v_lshl_add_u32 v%d, v28, 5, v26" % V_TR2[0])
    for b in range(1, 4):
        a("v_add_u32 v%d, %d, v%d" % (V_TR2[b], 36864 * b, V_TR2[0]))
    a("s_lshl_b32 s%d, s%d, 4" % (S_T0, S_J))
    a("s_add_u32 s%d, s%d, s%d" % (S_T0, S_T0, S_M))
    a("s_lshl_b32 s%d, s%d, 2" % (S_T0, S_T0))
    a("s_lshl_b32 s%d, s%d, 1" % (S_T1, S_TM))
    a("s_add_u32 s%d, s%d, s%d" % (S_T0, S_T0, S_T1))
    a("s_mul_i32 s%d, s%d, %d" % (S_PB, S_T0, 18 * 2048))
    a("s_lshl_b32 s%d, s%d, 11" % (S_T1, S_FH))
    a("s_add_u32 s%d, s%d, s%d" % (S_PB, S_PB, S_T1))
    a("s_mul_i32 s%d, s%d, 1152" % (S_WD0, S_FB))
    a("s_mul_i32 s%d, s%d, 1152" % (S_WD1, S_FHB))
    if OPT.get("rot", 1):
        a("s_mul_i32 s%d, s%d, 9" % (S_RB, S_M))
        a("s_lshr_b32 s%d, s%d, 4" % (S_RB, S_RB))
    else:
        a("s_mov_b32 s%d, 0" % S_RB)
    a("s_lshl_b32 s%d, s%d, 1" % (S_T0, S_J))
    a("s_add_u32 s%d, s%d, s%d" % (S_T0, S_T0, S_FH))
    a("s_mul_i32 s%d, s%d, 36864" % (S_DFB, S_T0))
    a("s_cmp_ge_u32 s%d, 9" % S_T0)
    a("s_cselect_b32 s%d, 9, 0" % S_T1)
    a("s_sub_u32 s%d, s%d, s%d" % (S_T0, S_T0, S_T1))
    a("s_lshl_b32 s%d, s%d, 18" % (S_CFB, S_T0))
    a("s_cselect_b32 s%d, 4096, 0" % S_T1)
    a("s_lshl_b32 s%d, s%d, 1" % (S_T0, S_J))
    a("s_add_u32 s%d, s%d, s%d" % (S_T0, S_T0, S_FH))
    a("s_cmp_ge_u32 s%d, 9" % S_T0)
    a("s_cselect_b32 s%d, 4096, 0" % S_T1)
    a("s_add_u32 s%d, s%d, s%d" % (S_CFB, S_CFB, S_T1))
    a("s_lshl_b32 s%d, s%d, 8" % (S_T0, S_M))
    a("s_add_u32 s%d, s%d, s%d" % (S_CFB, S_CFB, S_T0))
    a("s_lshl_b32 s%d, s%d, 7" % (S_T0, S_TM))
    a("s_add_u32 s%d, s%d, s%d" % (S_CFB, S_CFB, S_T0))
    a("v_and_b32 v22, 31, v21")
    a("v_lshlrev_b32 v22, 13, v22")
    a("v_lshrrev_b32 v23, 5, v21")
    a("v_lshl_add_u32 v%d, v23, 4, v22" % V_CF)
    if OPT.get("dfpf", 1):
        a("v_lshlrev_b32 v22, 7, v21")
        for i in range(5):
            st("s_add_u32 s%d, s%d, %d" % (S_T0, S_DFB, i * 8192))
            st.vmem("buffer_load_dword v%d, v22, s[%d:%d], s%d offen" % (BR, S_DF, S_DF + 3, S_T0), "PF")
    stamp(a, 1, 1)
    dstamp(a, 1, 3)

    HI = 49152
    def trread(g, kk, half):
        slot = g % R
        gks = g * 2 + kk
        buf = gks % 3
        out = []
        ncs = 1 if half else 2
        for c in range(ncs):
            for q in range(2):
                off = slot * 8192 + kk * 2048 + q * 512
                hi = off >= HI
                if half: areg = V_TRH[1 if hi else 0]
                else: areg = V_TR[c + (2 if hi else 0)]
                if hi: off -= HI
                r = AF + (buf * 2 + c) * 4 + q * 2
                out.append(("lds", "ds_read_b64_tr_b16 v[%d:%d], v%d offset:%d" % (r, r + 1, areg, off), ("A", gks)))
        return out
    B = OPT["B"]
    NG = 5 * 18
    st.wait(vm=[("W", i) for i in range(B)])
    st("s_barrier")
    for kk in range(2):
        for it in trread(0, kk, False): emit_item(it)
    next_dma = [NPRE]
    dma_pending = []
    def stage(stg, accset, gelu_q):
        half = stg == 4
        ncs = 1 if half else 2
        gq = list(gelu_q) if "nogelu" not in ABLS else []
        nm_total = 36 * ncs * 2
        per = len(gq) / float(nm_total - 6)
        state = {"acc": 0.0, "em": 0}
        def pop_gelu():
            if gq:
                emit_item(gq.pop(0)); state["em"] += 1
                return True
            return False
        mi = 0
        since_dma = 99
        xq = []
        for ks in range(36):
            g = stg * 18 + ks // 2
            gks = stg * 36 + ks
            buf = gks % 3
            g2, kk2 = divmod(gks + 2, 2)
            bar = None
            if kk2 == 0 and g2 % B == 0 and g2 < NG:
                bar = [("W", i) for i in range(g2, min(g2 + B, NG))]
            reads = trread(g2, kk2, g2 // 18 == 4) if (g2 < NG and "notr" not in ABLS) else []
            if stg == 0 and ks + XA < 36: xq.extend(xload_items(ks + XA))
            st.wait(vm=[("X", ks)] if stg == 0 else [], lg=[("A", gks)])
            ng = ncs * 2
            k = 0
            for c in range(ncs):
                for t in range(2):
                    ti = c * 2 + t
                    d = ACC[accset] + 16 * ti
                    ar = AF + (buf * 2 + c) * 4
                    src = "0" if ks == 0 else "v[%d:%d]" % (d, d + 15)
                    st("v_mfma_f32_32x32x16_bf16 v[%d:%d], v[%d:%d], %s, %s" % (d, d + 15, ar, ar + 3, xreg(ks, t), src))
                    mi += 1
                    if k == 0 and bar is not None:
                        emit_item(("bar", bar))
                        while next_dma[0] < NG and next_dma[0] - R <= g2 - 2:
                            dma_pending.extend(dma_items(next_dma[0])); next_dma[0] += 1
                    lo = k * len(reads) // ng; hi_ = (k + 1) * len(reads) // ng
                    for it in reads[lo:hi_]: emit_item(it)
                    since_dma += 1
                    did = False
                    if xq and k in (1, 3):
                        emit_item(xq.pop(0)); did = True
                    elif dma_pending and since_dma >= OPT.get("dmagap", 4 if not half else 2) and not (k == 0 and bar is not None):
                        emit_group(dma_pending.pop(0), pop_gelu if mi > 6 else None)
                        since_dma = 0; did = True
                    if mi > 6:
                        state["acc"] += per
                        n = 0
                        cap = OPT["gcap"] - (2 if did else 0)
                        while gq and state["em"] < state["acc"] and n < cap:
                            pop_gelu(); n += 1
                    k += 1
        assert not xq
        while gq: pop_gelu()

    def full_tiles(stg):
        return [(c * 2 + t, (t * 18 + c) * 1024 + stg * 4096, V_H) for c in range(2) for t in range(2)]
    stage(0, 0, [])
    stamp(a, 1, 2)
    dstamp(a, 1, 4)
    stage(1, 1, gelu_items(ACC[0], full_tiles(0)))
    stage(2, 0, gelu_items(ACC[1], full_tiles(1)))
    stage(3, 1, gelu_items(ACC[0], full_tiles(2)))
    stage(4, 0, gelu_items(ACC[1], full_tiles(3)))
    assert not dma_pending
    stamp(a, 1, 3)
    dstamp(a, 1, 5)
    S_BC = 84
    def blk_items(dst, b, mul):
        return ["s_add_u32 s%d, s%d, %d" % (dst, S_RB, b),
                "s_cmp_ge_u32 s%d, 9" % dst,
                "s_cselect_b32 s%d, 9, 0" % S_T0,
                "s_sub_u32 s%d, s%d, s%d" % (dst, dst, S_T0),
                "s_mul_i32 s%d, s%d, %d" % (dst, dst, mul)]
    def wd_groups(b):
        buf = b % 4
        out = []
        for i in range(9):
            base = S_WD0 if i < 8 else S_WD1
            off = (32 * i * 1152 if i < 8 else 0)
            pre = blk_items(S_BC, b, 128) if i == 0 else []
            out.append(pre + ["s_add_u32 s%d, s%d, s%d" % (S_OFF, base, S_BC),
                        "s_add_u32 s%d, s%d, %d" % (S_OFF, S_OFF, off),
                        "s_add_u32 m0, s%d, %d" % (S_LDS2, buf * 36864 + i * 4096),
                        "NOPSLOT",
                        ("vm", "buffer_load_dwordx4 v%d, s[%d:%d], s%d offen lds" % (V_D2, S_D, S_D + 3, S_OFF), ("D", b))])
        return out
    st.wait_all(vm=False, lg=True)
    st("s_barrier")
    tail = gelu_items(ACC[0], [(t, t * 18 * 1024, V_HH) for t in range(2)])
    a("s_cmp_ge_u32 s%d, 9" % S_J)
    a("s_cbranch_scc1 L_ffn_noa1")
    vm_save, lg_save = list(st.vm), list(st.lg)
    NB = 18
    def breg(ks):
        i = ks % NB
        r = (AF + 4 * i) if i < 6 else (BR + 4 * (i - 6)) if i < 10 else (112 + 4 * (i - 10))
        return r
    def bload(ks):
        r = breg(ks)
        return ["s_mul_hi_u32 s%d, s%d, %d" % (S_OFF2, S_ROW + ks // 2, -(-(1 << 32) // 144)),
                "s_add_u32 s%d, s%d, s%d" % (S_OFF2, S_OFF2, S_DFB),
                "s_add_u32 s%d, s%d, %d" % (S_OFF2, S_OFF2, (ks & 1) * 1024),
                ("vm", "buffer_load_dwordx4 v[%d:%d], v%d, s[%d:%d], s%d offen" % (r, r + 3, V_LANE16, S_DF, S_DF + 3, S_OFF2), ("B", ks))]
    for ks in range(NB - 1): emit_item(bload(ks))
    wdq = wd_groups(0) + wd_groups(1)
    for _ in range(4): emit_group(wdq.pop(0))
    A1ACC = ACC[1]
    tq = list(tail)
    for ks in range(36):
        st.wait(vm=[("B", ks)])
        for t in range(2):
            d = A1ACC + 16 * t
            br = breg(ks)
            src = "0" if ks == 0 else "v[%d:%d]" % (d, d + 15)
            st("v_mfma_f32_32x32x16_bf16 v[%d:%d], %s, v[%d:%d], %s" % (d, d + 15, xreg(ks, t), br, br + 3, src))
            if t == 0 and ks + NB - 1 < 36:
                emit_item(bload(ks + NB - 1))
            elif t == 1 and wdq and ks % 2 == 1:
                emit_group(wdq.pop(0))
            if ks >= 2:
                for _ in range(3):
                    if tq: emit_item(tq.pop(0))
    assert not tq and not wdq, (len(tq), len(wdq))
    st("s_nop 15"); st("s_nop 3")
    for t in range(2):
        pk = GT + 8 * 0 if t == 0 else HP
        for dd in range(8):
            st("v_cvt_pk_bf16_f32 v%d, v%d, v%d" % (pk + dd, A1ACC + 16 * t + 2 * dd, A1ACC + 16 * t + 2 * dd + 1))
        st("s_nop 1")
        st("v_permlane32_swap_b32 v%d, v%d" % (pk + 0, pk + 2))
        st("v_permlane32_swap_b32 v%d, v%d" % (pk + 1, pk + 3))
        st("v_permlane32_swap_b32 v%d, v%d" % (pk + 4, pk + 6))
        st("v_permlane32_swap_b32 v%d, v%d" % (pk + 5, pk + 7))
        st("s_add_u32 s%d, s%d, %d" % (S_OFF2, S_CFB, t * 64))
        st("s_nop 0")
        st.vmem("buffer_store_dwordx4 v[%d:%d], v%d, s[%d:%d], s%d offen" % (pk, pk + 3, V_CF, S_CF, S_CF + 3, S_OFF2), "CF")
        st.vmem("buffer_store_dwordx4 v[%d:%d], v%d, s[%d:%d], s%d offen offset:32" % (pk + 4, pk + 7, V_CF, S_CF, S_CF + 3, S_OFF2), "CF")
    a("s_branch L_ffn_join")
    vm_a = list(st.vm)
    a.label("L_ffn_noa1")
    st.vm, st.lg = vm_save, lg_save
    for grp in wd_groups(0) + wd_groups(1): emit_group(grp)
    for it in tail: emit_item(it)
    a.label("L_ffn_join")
    st.wait_all(vm=False, lg=True)
    st("s_barrier")
    for t in range(2):
        for ci in range(18):
            i = t * 18 + ci
            st.lds("ds_read_b128 a[%d:%d], v%d offset:%d" % (4 * i, 4 * i + 3, V_HR, i * 1024), ("H", i))
    st.wait_all(vm=False, lg=True)
    st("s_waitcnt vmcnt(4)")
    st("s_barrier")
    st.vm = [("D", 1)] * 4
    for grp in wd_groups(2): emit_group(grp)
    stamp(a, 1, 4)
    dstamp(a, 1, 6)
    A2 = 176; ACC2 = [16, 48]; PK = 200
    def trread2(b, ci):
        gk = b * 18 + ci
        r = A2 + (gk % 4) * 4
        return [("lds", "ds_read_b64_tr_b16 v[%d:%d], v%d offset:%d" % (r + 2 * q, r + 2 * q + 1, V_TR2[b % 4], ci * 2048 + q * 1024), ("A2", gk)) for q in range(2)]
    def epi_items(b):
        items = []
        acc = ACC2[b % 2]
        for t in range(2):
            pk = PK + 8 * t
            for d in range(8):
                items.append("v_cvt_pk_bf16_f32 v%d, v%d, v%d" % (pk + d, acc + 16 * t + 2 * d, acc + 16 * t + 2 * d + 1))
            for q in range(2):
                pre = blk_items(S_BC + 1, b, 4096) if (t == 0 and q == 0) else []
                items.append(pre + ["s_add_u32 s%d, s%d, s%d" % (S_OFF2, S_PB, S_BC + 1),
                              "s_add_u32 s%d, s%d, %d" % (S_OFF2, S_OFF2, t * 18 * 2048),
                              ("vm", "buffer_store_dwordx4 v[%d:%d], v%d, s[%d:%d], s%d offen offset:%d %s" % (pk + 4 * q, pk + 4 * q + 3, V_LANE16, S_P, S_P + 3, S_OFF2, q * 1024, OPT["stflags"]), ("P", b))])
        return items
    for ci in range(3):
        for it in trread2(0, ci): emit_item(it)
    pend = list(wd_groups(3))
    for b in range(9):
        eq = epi_items(b - 1) if b > 0 else []
        if b == 5 and OPT.get("cpf3", 1):
            st("s_getpc_b64 s[%d:%d]" % (S_DF, S_DF + 1))
            a.label("L_k2_pc")
            st("s_add_u32 s%d, s%d, fin_kernel-L_k2_pc" % (S_DF, S_DF))
            st("s_addc_u32 s%d, s%d, 0" % (S_DF + 1, S_DF + 1))
            st("v_lshlrev_b32 v%d, 6, v0" % (BR + 1))
            st("v_min_u32 v%d, L_code_end-fin_kernel-64, v%d" % (BR + 1, BR + 1))
            st.vmem("global_load_dword v%d, v%d, s[%d:%d]" % (BR, BR + 1, S_DF, S_DF + 1), "PF")
        mi = 0
        since = 99
        for ci in range(18):
            gk = b * 18 + ci
            nb, nci = divmod(gk + 3, 18)
            reads = trread2(nb, nci) if nb < 9 else []
            st.wait(lg=[("A2", gk)])
            for t in range(2):
                d = ACC2[b % 2] + 16 * t
                ar = A2 + (gk % 4) * 4
                hr = (t * 18 + ci) * 4
                src = "0" if ci == 0 else "v[%d:%d]" % (d, d + 15)
                st("v_mfma_f32_32x32x16_bf16 v[%d:%d], v[%d:%d], a[%d:%d], %s" % (d, d + 15, ar, ar + 3, hr, hr + 3, src))
                mi += 1
                isbar = (t == 0 and ci == 15 and b + 1 < 9)
                if isbar:
                    emit_item(("bar", [("D", b + 1)]))
                    if b >= 1 and b + 3 <= 8:
                        pend.extend(wd_groups(b + 3))
                if reads: emit_item(reads[t])
                since += 1
                vm_done = False
                if pend and since >= 3 and not isbar:
                    emit_group(pend.pop(0)); since = 0; vm_done = True
                if mi > 4 and eq and not vm_done:
                    it = eq.pop(0)
                    if isinstance(it, list):
                        if since >= 2:
                            emit_item(it); since = 0
                        else: eq.insert(0, it)
                    else:
                        emit_item(it)
                        if eq and not isinstance(eq[0], list): emit_item(eq.pop(0))
        while eq: emit_item(eq.pop(0))
    assert not pend
    st("s_nop 15"); st("s_nop 3")
    for it in epi_items(8): emit_item(it)
    stamp(a, 1, 5)
    dstamp(a, 1, 7)
    a.label("L_ffn_done")
    a("s_endpgm")
    return name, max(R * 8192 + 73728, 147456)

K3_WAVES = 11
K3_LDS_COL = 0
K3_LDS_TAB = 16384
K3_LDS = 16384 + 22 * 1024
def k3(a):
    name = "fin_kernel"
    kernel_begin(a, name)
    a("s_cmp_ge_u32 s2, 256"); a("s_cbranch_scc1 L_k3_done")
    load_ptrs(a)
    stamp(a, 2, 0, vb=151)
    dstamp(a, 2, 8, mn=True, vb=151)
    a("v_lshrrev_b32 v1, 6, v0")
    a("v_and_b32 v2, 63, v0")
    a("v_readfirstlane_b32 s48, v1")
    a("s_cmp_ge_u32 s48, 2"); a("s_cbranch_scc1 L_k3_red")
    a("s_mov_b32 s47, s48")
    a("s_lshl_b32 s49, s47, 8")
    a("s_add_u32 s49, s49, s2")
    a("s_cmp_gt_u32 s49, 288"); a("s_cbranch_scc1 L_k3_done")
    srd(a, 32, 26, CF_BYTES, WS_CF)
    srd(a, 36, 26, TAB_BYTES, WS_TAB)
    srd(a, 40, 26, YT_BYTES, WS_YT)
    a("v_lshrrev_b32 v3, 3, v2")
    a("v_lshlrev_b32 v3, 7, v3")
    a("v_bfe_u32 v4, v2, 4, 1")
    a("v_lshlrev_b32 v4, 1, v4")
    a("v_bfe_u32 v5, v2, 1, 2")
    a("v_xor_b32 v5, v5, v4")
    a("v_lshl_add_u32 v3, v5, 5, v3")
    a("v_and_b32 v5, 1, v2")
    a("v_lshl_add_u32 v3, v5, 4, v3")
    a("s_lshl_b32 s50, s49, 13")
    a("s_lshl_b32 s51, s47, 13")
    for i in range(8):
        a("s_add_u32 s52, s50, %d" % (i * 1024))
        a("s_add_u32 m0, s51, %d" % (i * 1024))
        a("s_nop 0")
        a("buffer_load_dwordx4 v3, s[32:35], s52 offen lds")
    a("v_lshlrev_b32 v6, 4, v2")
    a("s_lshl_b32 s53, s47, 14")
    a("s_add_u32 s53, s53, 16384")
    for i in range(16):
        a("s_mov_b32 s52, %d" % ((22 + i) * 1024))
        a("s_add_u32 m0, s53, %d" % (i * 1024))
        a("s_nop 0")
        a("buffer_load_dwordx4 v6, s[36:39], s52 offen lds")
    a("v_add_u32 v15, s53, v6")
    for i in range(6):
        a("s_movk_i32 s52, %d" % (i * 1024))
        a("buffer_load_dwordx4 v[%d:%d], v6, s[36:39], s52 offen" % (64 + 4 * i, 67 + 4 * i))
    a("v_bfe_u32 v8, v2, 4, 1")
    a("v_bfe_u32 v9, v2, 5, 1")
    a("v_bfe_u32 v10, v2, 2, 2")
    a("v_and_b32 v11, 3, v2")
    a("v_lshl_add_u32 v12, v9, 3, v10")
    a("v_lshlrev_b32 v12, 7, v12")
    a("v_lshl_add_u32 v12, v11, 3, v12")
    a("v_add_u32 v12, s51, v12")
    a("v_and_b32 v13, 2, v10")
    a("v_xor_b32 v14, v8, v13")
    a("v_lshl_add_u32 v16, v14, 5, v12")
    a("v_xor_b32 v14, 2, v14")
    a("v_lshl_add_u32 v17, v14, 5, v12")
    a("v_and_b32 v18, 31, v2")
    a("v_cvt_f32_u32 v18, v18")
    a("v_mul_f32 v18, 0x%08x, v18" % f2u(1.0 / 2048))
    a("v_cvt_f32_u32 v19, v9")
    a("v_mul_f32 v19, 4.0, v19")
    a("v_mul_f32 v19, v19, v18")
    stamp(a, 5, 0, vb=61, tid=0)
    a("s_waitcnt vmcnt(22)")
    C0, C1, S0, S1, N0, N1 = 64, 68, 72, 76, 80, 84
    for rt in range(2):
        for kk in range(4):
            p, h = kk >> 1, kk & 1
            for q in range(2):
                r = 88 + 4 * kk + 2 * q
                a("ds_read_b64_tr_b16 v[%d:%d], v%d offset:%d" % (r, r + 1, 16 + rt, p * 4096 + h * 2048 + q * 512))
        a("s_waitcnt vmcnt(0) lgkmcnt(0)" if rt == 0 else "s_waitcnt lgkmcnt(0)")
        if rt == 0:
            stamp(a, 5, 1, vb=61, tid=0)
            dstamp(a, 2, 12, vb=61)
        ur, ui = 104, 120
        br = [C0, C1, S0, S1]; bi = [N0, N1, C0, C1]
        for kk in range(4):
            ar = 88 + 4 * kk
            a("v_mfma_f32_32x32x16_bf16 v[%d:%d], v[%d:%d], v[%d:%d], %s" % (ur, ur + 15, ar, ar + 3, br[kk], br[kk] + 3, "0" if kk == 0 else "v[%d:%d]" % (ur, ur + 15)))
            a("v_mfma_f32_32x32x16_bf16 v[%d:%d], v[%d:%d], v[%d:%d], %s" % (ui, ui + 15, ar, ar + 3, bi[kk], bi[kk] + 3, "0" if kk == 0 else "v[%d:%d]" % (ui, ui + 15)))
        if rt == 1:
            pass
        a("s_nop 15"); a("s_nop 3")
        for r in range(0, 16, 2):
            for i in range(2):
                rr = r + i
                s2c = 32 * rt + 8 * (rr >> 2) + (rr & 3)
                a("v_fmamk_f32 v%d, v18, 0x%08x, v19" % (52 + i, f2u(float(s2c))))
            a("v_cos_f32 v54, v52"); a("v_sin_f32 v56, v52")
            a("v_cos_f32 v55, v53"); a("v_sin_f32 v57, v53")
            for i in range(2):
                rr = r + i
                a("v_mul_f32 v%d, v%d, v%d" % (58 + i, ur + rr, 54 + i))
                a("v_mul_f32 v%d, v%d, v%d" % (62 + i, ui + rr, 54 + i))
            for i in range(2):
                rr = r + i
                a("v_fma_f32 v%d, v%d, v%d, v%d" % (58 + i, ui + rr, 56 + i, 58 + i))
                a("v_fma_f32 v%d, -v%d, v%d, v%d" % (62 + i, ur + rr, 56 + i, 62 + i))
            half, dd = r >> 3, (r >> 1) & 3
            base = 20 + 8 * (rt * 2 + half)
            a("v_cvt_pk_bf16_f32 v%d, v58, v59" % (base + dd))
            a("v_cvt_pk_bf16_f32 v%d, v62, v63" % (base + 4 + dd))
        if rt == 0:
            for i in range(8):
                a("ds_read_b128 v[%d:%d], v15 offset:%d" % (136 + 4 * i, 139 + 4 * i, i * 1024))
    stamp(a, 5, 2, vb=61, tid=0)
    for i in range(8, 16):
        a("ds_read_b128 v[%d:%d], v15 offset:%d" % (64 + 4 * (i - 8), 67 + 4 * (i - 8), i * 1024))
    def t3reg(i): return (136 + 4 * i) if i < 8 else (64 + 4 * (i - 8))
    a("s_waitcnt lgkmcnt(8)")
    a("s_nop 1")
    for part in range(2):
        if part == 1: a("s_waitcnt lgkmcnt(0)")
        for tt in range(2):
            y = 96 + 16 * tt
            for rh in range(4):
                ac = t3reg(part * 8 + tt * 4 + rh)
                vb = 20 + 8 * rh + 4 * part
                a("v_mfma_f32_32x32x16_bf16 v[%d:%d], v[%d:%d], v[%d:%d], %s" % (y, y + 15, ac, ac + 3, vb, vb + 3, "0" if (part == 0 and rh == 0) else "v[%d:%d]" % (y, y + 15)))
    stamp(a, 5, 3, vb=61, tid=0)
    a("v_and_b32 v4, 31, v2")
    a("v_lshlrev_b32 v4, 2, v4")
    a("v_lshrrev_b32 v5, 5, v2")
    a("v_lshl_add_u32 v4, v5, 9, v4")
    a("v_add_u32 v4, s51, v4")
    a("v_add_u32 v7, s51, v6")
    a("s_nop 15"); a("s_nop 3")
    for tt in range(2):
        for r in range(16):
            a("ds_write_b32 v4, v%d offset:%d" % (96 + 16 * tt + r, tt * 4096 + (8 * (r >> 2) + (r & 3)) * 128))
    a("s_waitcnt lgkmcnt(0)")
    for i in range(8):
        a("ds_read_b128 v[%d:%d], v7 offset:%d" % (128 + 4 * i, 131 + 4 * i, i * 1024))
    for i in range(8):
        a("s_waitcnt lgkmcnt(%d)" % (7 - i))
        a("s_add_u32 s52, s50, %d" % (i * 1024))
        a("buffer_store_dwordx4 v[%d:%d], v6, s[40:43], s52 offen sc1" % (128 + 4 * i, 131 + 4 * i))
    stamp(a, 5, 4, vb=61, tid=0)
    a("s_waitcnt vmcnt(0)")
    stamp(a, 5, 5, vb=61, tid=0)
    dstamp(a, 2, 13, vb=61)
    srd(a, 44, 26, FLAG_BYTES, WS_FLAG)
    a("v_cmp_eq_u32 vcc, 0, v2")
    a("v_mov_b32 v4, 0x7ff00000")
    a("s_lshl_b32 s52, s49, 2")
    a("v_mov_b32 v5, s52")
    a("v_cndmask_b32 v4, v4, v5, vcc")
    a("v_mov_b32 v5, 1")
    a("buffer_store_dword v5, v4, s[44:47], 0 offen sc1")
    a("s_branch L_k3_done")
    a.label("L_k3_red")
    a("s_sub_u32 s48, s48, 2")
    srd(a, 32, 26, PART_BYTES, WS_PART)
    srd(a, 36, 26, YT_BYTES, WS_YT)
    srd(a, 40, 4, S * D * 2)
    srd(a, 44, 22, S * D * 2)
    a("s_mul_i32 s49, s2, 9")
    a("s_add_u32 s49, s49, s48")
    a("v_lshlrev_b32 v3, 4, v2")
    a("s_lshl_b32 s53, s49, 10")
    for j in range(16):
        r = 32 + j * 4
        a("buffer_load_dwordx4 v[%d:%d], v3, s[32:35], s53 offen" % (r, r + 3))
        if j < 15: a("s_add_u32 s53, s53, %d" % (64 * 18 * 2048))
    a("s_mul_hi_u32 s51, s49, %d" % (-(-(1 << 32) // 36)))
    a("s_mul_i32 s52, s51, 36")
    a("s_sub_u32 s52, s49, s52")
    a("s_and_b32 s50, s52, 1")
    a("s_lshr_b32 s52, s52, 1")
    a("v_and_b32 v4, 31, v2")
    a("v_lshrrev_b32 v5, 5, v2")
    a("s_lshl_b32 s55, s51, 5")
    a("v_add_u32 v12, s55, v4")
    a("s_movk_i32 s56, 1152")
    a("v_mul_lo_u32 v7, v12, s56")
    a("s_lshl_b32 s57, s52, 6")
    a("s_lshl_b32 s58, s50, 5")
    a("s_add_u32 s57, s57, s58")
    a("v_add_u32 v7, s57, v7")
    a("v_lshl_add_u32 v8, v5, 3, v7")
    for g in range(2):
        a("buffer_load_dwordx2 v[%d:%d], v8, s[40:43], 0 offen offset:%d" % (100 + 2 * g, 101 + 2 * g, g * 16))
    a("v_lshl_add_u32 v9, v5, 4, v7")
    a("s_lshl_b32 s59, s52, 5")
    a("s_lshl_b32 s58, s50, 4")
    a("s_add_u32 s59, s59, s58")
    a("s_cmp_le_u32 s52, 8"); a("s_cbranch_scc0 L_k3_mir")
    a("v_lshlrev_b32 v6, 15, v5")
    a("v_lshl_add_u32 v6, v12, 2, v6")
    a("s_lshl_b32 s54, s59, 13")
    a("s_movk_i32 s58, 8192")
    a("s_branch L_k3_yad")
    a.label("L_k3_mir")
    a("v_sub_u32 v6, 2048, v12")
    a("v_and_b32 v6, 2047, v6")
    a("v_lshlrev_b32 v6, 2, v6")
    a("v_xor_b32 v13, 1, v5")
    a("v_lshl_add_u32 v6, v13, 15, v6")
    a("s_sub_u32 s54, 572, s59")
    a("s_lshl_b32 s54, s54, 13")
    a("s_mov_b32 s58, %d" % (-8192 & 0xffffffff))
    a.label("L_k3_yad")
    n = 16 + 2
    for j in range(16):
        a("s_waitcnt vmcnt(%d)" % (n - (j + 1)))
        for d in range(4):
            src = 32 + j * 4 + d
            e = 2 * d
            if j == 0:
                a("v_lshlrev_b32 v%d, 16, v%d" % (16 + e, src))
                a("v_and_b32 v%d, 0xffff0000, v%d" % (17 + e, src))
            else:
                a("v_lshlrev_b32 v10, 16, v%d" % src)
                a("v_and_b32 v11, 0xffff0000, v%d" % src)
                a("v_add_f32 v%d, v%d, v10" % (16 + e, 16 + e))
                a("v_add_f32 v%d, v%d, v11" % (17 + e, 17 + e))
    a("s_waitcnt vmcnt(0)")
    for g in range(2):
        for h in range(2):
            src = 100 + 2 * g + h
            e = 4 * g + 2 * h
            a("v_lshlrev_b32 v10, 16, v%d" % src)
            a("v_and_b32 v11, 0xffff0000, v%d" % src)
            a("v_add_f32 v%d, v%d, v10" % (16 + e, 16 + e))
            a("v_add_f32 v%d, v%d, v11" % (17 + e, 17 + e))
    stamp(a, 2, 1, vb=151, tid=128)
    dstamp(a, 2, 9, vb=151, tid=128)
    a("s_cmp_lg_u32 s48, 0"); a("s_cbranch_scc1 L_k3_go")
    srd(a, 60, 26, FLAG_BYTES, WS_FLAG)
    a("s_mov_b32 s64, 0")
    a("v_lshlrev_b32 v13, 2, v2")
    a("v_cmp_gt_u32 s[66:67], 33, v2")
    a.label("L_k3_poll")
    for k in range(5):
        a("buffer_load_dword v%d, v13, s[60:63], 0 offen offset:%d sc1" % (112 + k, 256 * k))
    a("s_waitcnt vmcnt(0)")
    a("v_cndmask_b32 v116, 1, v116, s[66:67]")
    a("v_and_b32 v112, v112, v113")
    a("v_and_b32 v114, v114, v115")
    a("v_and_b32 v112, v112, v114")
    a("v_and_b32 v112, v112, v116")
    a("v_cmp_eq_u32 vcc, 1, v112")
    a("s_nop 1")
    a("s_cmp_eq_u64 vcc, exec"); a("s_cbranch_scc1 L_k3_go")
    a("s_sleep 8")
    a("s_add_u32 s64, s64, 1")
    a("s_cmp_lt_u32 s64, 100000"); a("s_cbranch_scc1 L_k3_poll")
    a.label("L_k3_go")
    a("s_barrier")
    stamp(a, 2, 2, vb=151, tid=128)
    dstamp(a, 2, 10, vb=151, tid=128)
    for r in range(8):
        off = 8 * (r >> 2) + (r & 3)
        a("s_mul_i32 s55, s58, %d" % off)
        a("s_add_u32 s55, s55, s54")
        a("buffer_load_dword v%d, v6, s[36:39], s55 offen sc1" % (104 + r))
    a("s_waitcnt vmcnt(0)")
    for r in range(8):
        a("v_add_f32 v%d, v%d, v%d" % (16 + r, 16 + r, 104 + r))
    for d in range(4):
        a("v_cvt_pk_bf16_f32 v%d, v%d, v%d" % (32 + d, 16 + 2 * d, 17 + 2 * d))
    a("s_nop 1")
    a("v_permlane32_swap_b32 v32, v34")
    a("v_permlane32_swap_b32 v33, v35")
    a("s_nop 1")
    a("buffer_store_dwordx4 v[32:35], v9, s[44:47], 0 offen")
    stamp(a, 2, 3, vb=151, tid=128)
    dstamp(a, 2, 11, vb=151, tid=128)
    a.label("L_k3_done")
    a("s_endpgm")
    return name

def main():
    out = sys.argv[1]
    for o in sys.argv[2:]:
        if o == "stamps": OPT["stamps"] = 1
        elif o.startswith("abl="): OPT["abl"].update(o[4:].split(","))
        elif "=" in o:
            k, v = o.split("=", 1)
            OPT[k] = int(v) if v.lstrip("-").isdigit() else v.replace("+", " ")
    lds = max(OPT["R"] * 8192 + 73728, 147456)
    a = Asm()
    a.raw(HEADER.rstrip("\n"))
    a.raw("; @launch kernel=prep_kernel grid=(%d,1,1) block=(256,1,1) lds=0" % (N_LN + N_DF + N_TAB))
    a.raw("; @launch kernel=ffn_kernel grid=(256,1,1) block=(256,1,1) lds=%d" % lds)
    a.raw("; @launch kernel=fin_kernel grid=(256,1,1) block=(%d,1,1) lds=49152" % (64 * K3_WAVES))
    a.raw('.amdgcn_target "amdgcn-amd-amdhsa--gfx950"')
    k1(a); k2(a); k3(a)
    a.label("L_code_end")
    big = OPT["stamps"] or OPT.get("dbgst")
    kernel_desc(a, "prep_kernel", 256 if big else 128, 96, 256 if big else 128)
    kernel_desc(a, "ffn_kernel", 512, 96, 256)
    kernel_desc(a, "fin_kernel", 168, 96, 168)
    open(out, "w").write(a.text())
if __name__ == "__main__":
    main()
```

```python
import sys, math
from asmgen import *
from sched import *

S, D, F = 2048, 576, 4608
OPT = {"B": 2, "R": 9, "abl": set(), "gcap": 3, "stamps": 0, "pf": 2, "stflags": "sc1", "xahead": 6, "pert": 0.0}
WS_XNF   = 0
WS_CF    = 4 << 20
CF_BYTES = 289 * 8192
WS_DF    = 8 << 20
DF_BYTES = 18 * 36864
WS_TAB   = 9 << 20
TAB_BYTES = 38 * 1024
WS_YT    = 12 << 20
YT_BYTES = 289 * 8192
WS_FLAG  = 10 << 20
FLAG_BYTES = 289 * 4
WS_PART  = 24 << 20
PART_BYTES = 16 * S * D * 2
WS_STAMP = 128 << 20
N_LN, N_DF, N_TAB = 128, 162, 10
PF0 = 304
N_K1 = PF0 + 256
N_FFT, N_RED = 73, 288

def srd(a, sd, sp, nbytes, off=0):
    if off:
        a("s_add_u32 s%d, s%d, %d" % (sd, sp, off))
        a("s_addc_u32 s%d, s%d, 0" % (sd + 1, sp + 1))
    else:
        a("s_mov_b32 s%d, s%d" % (sd, sp))
        a("s_mov_b32 s%d, s%d" % (sd + 1, sp + 1))
    a("s_mov_b32 s%d, %d" % (sd + 2, nbytes))
    a("s_mov_b32 s%d, 0x00020000" % (sd + 3))

def load_ptrs(a):
    a("s_load_dwordx2 s[4:5], s[0:1], 0")
    a("s_load_dwordx4 s[8:11], s[0:1], 16")
    a("s_load_dwordx2 s[12:13], s[0:1], 32")
    a("s_load_dwordx8 s[16:23], s[0:1], 48")
    a("s_load_dwordx4 s[24:27], s[0:1], 80")
    a("s_waitcnt lgkmcnt(0)")

def stamp(a, kidx, slot, sreg=88, vb=251, tid=0):
    if not OPT["stamps"]: return
    lab = a.newlabel("L_st")
    a("s_memrealtime s[%d:%d]" % (sreg, sreg + 1))
    a("s_memtime s[%d:%d]" % (sreg + 6, sreg + 7))
    a("s_waitcnt lgkmcnt(0)")
    a("v_cmp_eq_u32 vcc, %d, v0" % tid if tid <= 64 else "v_mov_b32 v%d, %d\n    v_cmp_eq_u32 vcc, v%d, v0" % (vb, tid, vb))
    a("s_and_saveexec_b64 s[%d:%d], vcc" % (sreg + 2, sreg + 3))
    a("s_cbranch_execz %s" % lab)
    a("s_lshl_b32 s%d, s2, 7" % (sreg + 4))
    a("s_add_u32 s%d, s%d, %d" % (sreg + 4, sreg + 4, WS_STAMP + kidx * 65536 + slot * 8))
    a("s_add_u32 s%d, s26, s%d" % (sreg + 4, sreg + 4))
    a("s_addc_u32 s%d, s27, 0" % (sreg + 5))
    a("v_mov_b32 v%d, s%d" % (vb + 1, sreg)); a("v_mov_b32 v%d, s%d" % (vb + 2, sreg + 1))
    a("v_mov_b32 v%d, 0" % vb)
    a("global_store_dwordx2 v%d, v[%d:%d], s[%d:%d]" % (vb, vb + 1, vb + 2, sreg + 4, sreg + 5))
    a("s_nop 1")
    a("v_mov_b32 v%d, s%d" % (vb + 1, sreg + 6)); a("v_mov_b32 v%d, s%d" % (vb + 2, sreg + 7))
    a("s_nop 1")
    a("global_store_dwordx2 v%d, v[%d:%d], s[%d:%d] offset:64" % (vb, vb + 1, vb + 2, sreg + 4, sreg + 5))
    a.label(lab)
    a("s_mov_b64 exec, s[%d:%d]" % (sreg + 2, sreg + 3))

def dstamp(a, kl, word, mn=False, sreg=88, vb=251, tid=0, mask=31):
    if not OPT.get("dbgst"): return
    lab = a.newlabel("L_ds")
    a("s_and_b32 s%d, s2, %d" % (sreg, mask))
    a("s_cmp_lg_u32 s%d, 0" % sreg)
    a("s_cbranch_scc1 %s" % lab)
    a("s_memrealtime s[%d:%d]" % (sreg, sreg + 1))
    a("s_waitcnt lgkmcnt(0)")
    if mn: a("s_not_b32 s%d, s%d" % (sreg, sreg))
    if tid <= 64: a("v_cmp_eq_u32 vcc, %d, v0" % tid)
    else:
        a("v_mov_b32 v%d, %d" % (vb, tid)); a("v_cmp_eq_u32 vcc, v%d, v0" % vb)
    a("s_and_saveexec_b64 s[%d:%d], vcc" % (sreg + 2, sreg + 3))
    a("s_cbranch_execz %s_r" % lab)
    a("s_add_u32 s%d, s24, %d" % (sreg + 4, (2 - kl) * 512))
    a("s_addc_u32 s%d, s25, 0" % (sreg + 5))
    a("v_mov_b32 v%d, %d" % (vb, word * 4))
    a("v_mov_b32 v%d, s%d" % (vb + 1, sreg))
    a("global_atomic_umax v%d, v%d, s[%d:%d]" % (vb, vb + 1, sreg + 4, sreg + 5))
    a.label("%s_r" % lab)
    a("s_mov_b64 exec, s[%d:%d]" % (sreg + 2, sreg + 3))
    a.label(lab)

def prefetch_w(a, sM, sJ, sW, vl, sector, sa, sb, srdg, srdu, srdd, vdst, vt):
    t0, t1, t2, t3 = vt, vt + 1, vt + 2, vt + 3
    a("v_mul_u32_u24 v%d, 52, v%d" % (t0, vl))
    a("v_lshrrev_b32 v%d, 8, v%d" % (t0, t0))
    a("v_mul_u32_u24 v%d, 5, v%d" % (t1, t0))
    a("v_sub_u32 v%d, v%d, v%d" % (t1, vl, t1))
    a("s_lshl_b32 s%d, s%d, 2" % (sa, sM))
    a("s_add_u32 s%d, s%d, s%d" % (sa, sa, sW))
    a("s_mul_i32 s%d, s%d, 9" % (sa, sa))
    a("v_add_u32 v%d, s%d, v%d" % (t2, sa, t0))
    a("s_movk_i32 s%d, 9216" % sb)
    a("v_mul_lo_u32 v%d, v%d, s%d" % (t2, t2, sb))
    a("v_lshl_add_u32 v%d, v%d, 7, v%d" % (t2, t1, t2))
    a("v_cmp_gt_u32 vcc, 9, v%d" % t0)
    a("v_mov_b32 v%d, 0x7ff00000" % t3)
    a("s_nop 0")
    a("v_cndmask_b32 v%d, v%d, v%d, vcc" % (t2, t3, t2))
    a("s_mul_i32 s%d, s%d, 288" % (sa, sJ))
    a("s_and_b32 s%d, s%d, 1" % (sb, sJ))
    a("s_lshl_b32 s%d, s%d, 5" % (sb, sb))
    a("s_sub_u32 s%d, s%d, s%d" % (sa, sa, sb))
    a("s_lshl_b32 s%d, s%d, 1" % (sa, sa))
    n = 0
    for srd_ in (srdg, srdu):
        a("buffer_load_dword v%d, v%d, s[%d:%d], s%d offen" % (vdst, t2, srd_, srd_ + 3, sa)); n += 1
        if sector: a("buffer_load_dword v%d, v%d, s[%d:%d], s%d offen offset:64" % (vdst, t2, srd_, srd_ + 3, sa)); n += 1
    a("v_mul_u32_u24 v%d, 57, v0" % t0)
    a("v_lshrrev_b32 v%d, 9, v%d" % (t0, t0))
    a("v_mul_u32_u24 v%d, 9, v%d" % (t1, t0))
    a("v_sub_u32 v%d, v0, v%d" % (t1, t1))
    a("s_mul_i32 s%d, s%d, 288" % (sa, sJ))
    a("s_mul_i32 s%d, s%d, 18" % (sb, sM))
    a("s_add_u32 s%d, s%d, s%d" % (sa, sa, sb))
    a("v_add_u32 v%d, s%d, v%d" % (t2, sa, t0))
    a("s_movk_i32 s%d, 1152" % sb)
    a("v_mul_lo_u32 v%d, v%d, s%d" % (t2, t2, sb))
    a("v_lshl_add_u32 v%d, v%d, 7, v%d" % (t2, t1, t2))
    a("v_cmp_gt_u32 vcc, 18, v%d" % t0)
    a("s_nop 1")
    a("v_cndmask_b32 v%d, v%d, v%d, vcc" % (t2, t3, t2))
    a("buffer_load_dword v%d, v%d, s[%d:%d], 0 offen" % (vdst, t2, srdd, srdd + 3)); n += 1
    if sector: a("buffer_load_dword v%d, v%d, s[%d:%d], 0 offen offset:64" % (vdst, t2, srdd, srdd + 3)); n += 1
    return n

def mj_from_wg(a, sM, sJ, t0, t1):
    a("s_and_b32 s%d, s2, 7" % t0)
    a("s_lshr_b32 s%d, s2, 3" % t1)
    a("s_lshr_b32 s%d, s%d, 1" % (sM, t1))
    a("s_and_b32 s%d, s%d, 1" % (t1, t1))
    a("s_lshl_b32 s%d, s%d, 1" % (sJ, t0))
    a("s_add_u32 s%d, s%d, s%d" % (sJ, sJ, t1))

def k1(a):
    name = "prep_kernel"
    kernel_begin(a, name)
    NT = N_LN + N_DF + N_TAB
    a("s_cmp_ge_u32 s2, %d" % NT); a("s_cbranch_scc1 L_k1_done")
    load_ptrs(a)
    stamp(a, 0, 0)
    dstamp(a, 0, 0, mn=True)
    a("v_lshrrev_b32 v20, 6, v0")
    a("v_and_b32 v21, 63, v0")
    a("v_readfirstlane_b32 s48, v20")
    def do_prefetch(): pass
    def code_prefetch():
        lab = a.newlabel("L_nocpf")
        a("s_sub_u32 s60, s2, %d" % N_LN)
        a("s_lshr_b32 s60, s60, 3")
        a("s_cmp_ge_u32 s60, 4"); a("s_cbranch_scc1 %s" % lab)
        a("s_getpc_b64 s[56:57]")
        a.label("L_k1_pc")
        a("s_add_u32 s56, s56, ffn_kernel-L_k1_pc")
        a("s_addc_u32 s57, s57, 0")
        a("s_lshl_b32 s60, s60, 14")
        a("v_lshlrev_b32 v30, 6, v0")
        a("v_add_u32 v30, s60, v30")
        a("v_cmp_gt_u32 vcc, L_code_end-ffn_kernel, v30")
        a("s_and_saveexec_b64 s[58:59], vcc")
        a("s_cbranch_execz %s_r" % lab)
        a("global_load_dword v31, v30, s[56:57]")
        a.label("%s_r" % lab)
        a("s_mov_b64 exec, s[58:59]")
        a.label(lab)
    def w_prefetch():
        srd(a, 68, 16, D * F * 2); srd(a, 72, 18, D * F * 2); srd(a, 76, 20, D * F * 2)
        a("s_and_b32 s60, s2, 7"); a("s_lshr_b32 s61, s2, 3")
        a("v_mul_u32_u24 v90, 57, v21"); a("v_lshrrev_b32 v90, 9, v90")
        a("v_mul_u32_u24 v91, 9, v90"); a("v_sub_u32 v91, v21, v91")
        a("s_lshl_b32 s62, s61, 2"); a("s_add_u32 s62, s62, s48"); a("s_mul_i32 s62, s62, 9")
        a("v_add_u32 v91, s62, v91")
        a("s_movk_i32 s63, 9216")
        a("v_mul_lo_u32 v91, v91, s63")
        a("v_and_b32 v92, 1, v90")
        a("v_lshrrev_b32 v93, 1, v90")
        a("s_mul_i32 s63, s60, 576")
        a("v_mul_u32_u24 v94, 320, v93")
        a("v_add_u32 v94, s63, v94")
        a("v_lshl_add_u32 v95, v94, 1, v91")
        a("v_mul_u32_u24 v96, 640, v93")
        a("v_sub_u32 v96, 512, v96")
        a("v_add_u32 v96, v95, v96")
        a("v_cmp_gt_u32 vcc, 2, v93")
        a("v_mov_b32 v97, 0x7ff00000")
        a("v_cmp_eq_u32 s[64:65], 0, v92")
        a("s_nop 1")
        a("v_cndmask_b32 v95, v97, v95, vcc")
        a("v_cndmask_b32 v96, v97, v96, vcc")
        a("v_cndmask_b32 v98, v97, v95, s[64:65]")
        a("v_cndmask_b32 v99, v95, v97, s[64:65]")
        a("v_cndmask_b32 v100, v97, v96, s[64:65]")
        a("v_cndmask_b32 v101, v96, v97, s[64:65]")
        for stg in range(4):
            a("buffer_load_dword v102, v98, s[68:71], 0 offen offset:%d" % (128 * stg))
            a("buffer_load_dword v102, v99, s[72:75], 0 offen offset:%d" % (128 * stg))
        a("buffer_load_dword v102, v100, s[68:71], 0 offen")
        a("buffer_load_dword v102, v101, s[72:75], 0 offen")
        a("v_mul_u32_u24 v90, 57, v0"); a("v_lshrrev_b32 v90, 9, v90")
        a("v_mul_u32_u24 v91, 9, v90"); a("v_sub_u32 v91, v0, v91")
        a("s_mul_i32 s62, s61, 18"); a("s_mul_i32 s63, s60, 576"); a("s_add_u32 s62, s62, s63")
        a("v_add_u32 v92, s62, v90")
        a("s_movk_i32 s63, 1152")
        a("v_mul_lo_u32 v92, v92, s63")
        a("v_lshl_add_u32 v92, v91, 7, v92")
        a("v_cmp_gt_u32 vcc, 18, v90")
        a("s_nop 1")
        a("v_cndmask_b32 v92, v97, v92, vcc")
        a("buffer_load_dword v102, v92, s[76:79], 0 offen")
        a("s_mov_b32 s63, %d" % (288 * 1152))
        a("buffer_load_dword v102, v92, s[76:79], s63 offen")
    a("s_cmp_ge_u32 s2, %d" % (N_LN + N_DF + N_TAB)); a("s_cbranch_scc1 L_k1_done")
    a("s_cmp_ge_u32 s2, %d" % N_LN); a("s_cbranch_scc1 L_k1_df")
    srd(a, 32, 4, S * D * 2)
    srd(a, 36, 26, S * D * 2, WS_XNF)
    srd(a, 40, 26, CF_BYTES, WS_CF)
    a("v_lshrrev_b32 v1, 4, v0")
    a("v_and_b32 v2, 15, v0")
    a("s_lshl_b32 s3, s2, 4")
    a("v_add_u32 v1, s3, v1")
    a("s_movk_i32 s28, 1152")
    a("v_mul_lo_u32 v3, v1, s28")
    a("v_lshl_add_u32 v3, v2, 3, v3")
    for i in range(9):
        a("buffer_load_dwordx2 v[%d:%d], v3, s[32:35], 0 offen offset:%d" % (8 + 2 * i, 9 + 2 * i, i * 128))
    do_prefetch()
    a("v_lshrrev_b32 v4, 5, v1")
    a("s_mov_b32 s29, 36864")
    a("v_mul_lo_u32 v4, v4, s29")
    a("v_lshrrev_b32 v5, 2, v2")
    a("v_lshl_add_u32 v4, v5, 10, v4")
    a("v_bfe_u32 v5, v2, 1, 1")
    a("v_lshl_add_u32 v4, v5, 9, v4")
    a("v_and_b32 v5, 31, v1")
    a("v_lshl_add_u32 v4, v5, 4, v4")
    a("v_and_b32 v5, 1, v2")
    a("v_lshl_add_u32 v4, v5, 3, v4")
    npf = 0
    stamp(a, 4, 0)
    a("s_waitcnt vmcnt(%d)" % npf)
    stamp(a, 4, 1)
    if OPT["pf"]: w_prefetch()
    for i in range(18):
        a("v_lshlrev_b32 v%d, 16, v%d" % (32 + 2 * i, 8 + i))
        a("v_and_b32 v%d, 0xffff0000, v%d" % (33 + 2 * i, 8 + i))
    a("v_add_f32 v70, v32, v33")
    a("v_add_f32 v71, v34, v35")
    for i in range(4, 36, 2):
        a("v_add_f32 v70, v70, v%d" % (32 + i))
        a("v_add_f32 v71, v71, v%d" % (33 + i))
    a("v_add_f32 v70, v70, v71")
    def row_sum(r):
        for sh in (8, 4, 2, 1):
            a("s_nop 1")
            a("v_add_f32_dpp v%d, v%d, v%d row_ror:%d row_mask:0xf bank_mask:0xf" % (r, r, r, sh))
    row_sum(70)
    a("v_mul_f32 v70, 0x%08x, v70" % f2u(1.0 / 576))
    a("v_mov_b32 v72, 0"); a("v_mov_b32 v73, 0")
    for i in range(0, 36, 2):
        a("v_sub_f32 v74, v%d, v70" % (32 + i))
        a("v_sub_f32 v75, v%d, v70" % (33 + i))
        a("v_fmac_f32 v72, v74, v74")
        a("v_fmac_f32 v73, v75, v75")
    a("v_add_f32 v72, v72, v73")
    row_sum(72)
    a("v_mul_f32 v72, 0x%08x, v72" % f2u(1.0 / 576))
    a("v_cvt_pk_bf16_f32 v76, v70, v72")
    a("v_lshlrev_b32 v70, 16, v76")
    a("v_and_b32 v72, 0xffff0000, v76")
    a("v_add_f32 v72, 0x%08x, v72" % f2u(1e-5))
    a("v_cvt_pk_bf16_f32 v76, v72, v72")
    a("v_lshlrev_b32 v72, 16, v76")
    a("v_sqrt_f32 v72, v72")
    a("s_nop 0")
    a("v_cvt_pk_bf16_f32 v76, v72, v72")
    a("v_lshlrev_b32 v72, 16, v76")
    a("v_rcp_f32 v72, v72")
    a("v_mov_b32 v77, 0")
    for i in range(18):
        x0, x1 = 32 + 2 * i, 33 + 2 * i
        a("v_sub_f32 v%d, v%d, v70" % (x0, x0))
        a("v_sub_f32 v%d, v%d, v70" % (x1, x1))
        a("v_cvt_pk_bf16_f32 v76, v%d, v%d" % (x0, x1))
        a("v_lshlrev_b32 v%d, 16, v76" % x0)
        a("v_and_b32 v%d, 0xffff0000, v76" % x1)
        a("v_mul_f32 v%d, v%d, v72" % (x0, x0))
        a("v_mul_f32 v%d, v%d, v72" % (x1, x1))
        a("v_cvt_pk_bf16_f32 v%d, v%d, v%d" % (8 + i, x0, x1))
        a("v_lshlrev_b32 v%d, 16, v%d" % (x0, 8 + i))
        a("v_and_b32 v%d, 0xffff0000, v%d" % (x1, 8 + i))
        a("v_sub_f32 v%d, v%d, v%d" % (x0, x0, x1))
        a("v_add_f32 v77, v77, v%d" % x0)
    stamp(a, 4, 2)
    for i in range(9):
        a("s_mov_b32 s30, %d" % (i * 4096))
        a("buffer_store_dwordx2 v[%d:%d], v4, s[36:39], s30 offen %s" % (8 + 2 * i, 9 + 2 * i, OPT.get("k1st", "")))
    row_sum(77)
    a("v_cvt_pk_bf16_f32 v77, v77, v77")
    a("v_mov_b32 v78, 0")
    a("v_lshlrev_b32 v79, 1, v1")
    a("v_add_u32 v79, %d, v79" % (288 * 8192))
    a("v_cmp_eq_u32 vcc, 0, v2")
    a("v_mov_b32 v80, 0x7ff00000")
    a("s_nop 0")
    a("v_cndmask_b32 v79, v80, v79, vcc")
    a("buffer_store_short v77, v79, s[40:43], 0 offen")
    a("s_movk_i32 s30, 4096")
    a("buffer_store_short v78, v79, s[40:43], s30 offen")
    stamp(a, 0, 1)
    dstamp(a, 0, 1)
    stamp(a, 4, 3)
    a("s_branch L_k1_done")
    a.label("L_k1_df")
    a("s_cmp_ge_u32 s2, %d" % (N_LN + N_DF)); a("s_cbranch_scc1 L_k1_tab")
    a("s_sub_u32 s28, s2, %d" % N_LN)
    a("s_lshl_b32 s28, s28, 2")
    a("s_add_u32 s28, s28, s48")
    a("s_mul_hi_u32 s29, s28, %d" % (-(-(1 << 32) // 36)))
    a("s_mul_i32 s30, s29, 36")
    a("s_sub_u32 s30, s28, s30")
    a("s_cmp_ge_u32 s29, 9")
    a("s_cselect_b32 s32, s12, s10")
    a("s_cselect_b32 s33, s13, s11")
    a("s_cselect_b32 s31, 9, 0")
    a("s_mov_b32 s34, %d" % (D * D * 2)); a("s_mov_b32 s35, 0x00020000")
    a("s_sub_u32 s29, s29, s31")
    srd(a, 36, 26, DF_BYTES, WS_DF)
    a("v_and_b32 v1, 31, v21")
    a("s_lshl_b32 s29, s29, 5")
    a("v_add_u32 v1, s29, v1")
    a("s_movk_i32 s31, 1152")
    a("v_mul_lo_u32 v1, v1, s31")
    a("v_lshrrev_b32 v2, 5, v21")
    a("v_lshl_add_u32 v1, v2, 4, v1")
    a("s_lshl_b32 s30, s30, 5")
    a("buffer_load_dwordx4 v[8:11], v1, s[32:35], s30 offen")
    if OPT.get("cpf", 1): code_prefetch()
    a("v_lshlrev_b32 v3, 4, v21")
    a("s_lshl_b32 s28, s28, 10")
    a("s_waitcnt vmcnt(0)")
    a("buffer_store_dwordx4 v[8:11], v3, s[36:39], s28 offen %s" % OPT.get("k1st", ""))
    stamp(a, 0, 2)
    a("s_branch L_k1_done")
    a.label("L_k1_tab")
    a("s_sub_u32 s28, s2, %d" % (N_LN + N_DF))
    a("s_lshl_b32 s28, s28, 2")
    a("s_add_u32 s28, s28, s48")
    a("s_cmp_eq_u32 s28, 38"); a("s_cbranch_scc0 L_k1_tab2")
    srd(a, 36, 26, 2048, WS_FLAG)
    a("v_lshlrev_b32 v3, 4, v21")
    a("v_mov_b32 v8, 0"); a("v_mov_b32 v9, 0"); a("v_mov_b32 v10, 0"); a("v_mov_b32 v11, 0")
    a("buffer_store_dwordx4 v[8:11], v3, s[36:39], 0 offen")
    a("buffer_store_dwordx4 v[8:11], v3, s[36:39], 0 offen offset:1024")
    a("s_branch L_k1_done")
    a.label("L_k1_tab2")
    a("s_cmp_ge_u32 s28, 38"); a("s_cbranch_scc1 L_k1_done")
    srd(a, 36, 26, TAB_BYTES, WS_TAB)
    a("v_and_b32 v1, 31, v21")
    a("v_lshrrev_b32 v2, 5, v21")
    a("v_lshlrev_b32 v3, 4, v21")
    a("s_lshl_b32 s29, s28, 10")
    a("s_cmp_ge_u32 s28, 22"); a("s_cbranch_scc1 L_k1_t3")
    a("s_cmp_ge_u32 s28, 6"); a("s_cbranch_scc1 L_k1_t2")
    a("s_and_b32 s30, s28, 1")
    a("s_lshl_b32 s30, s30, 4")
    a("v_lshl_add_u32 v4, v2, 3, s30")
    for j in range(8):
        a("v_add_u32 v5, %d, v4" % j)
        a("v_mul_u32_u24 v5, v5, v1")
        a("v_and_b32 v5, 31, v5")
        a("v_cvt_f32_u32 v5, v5")
        a("v_mul_f32 v5, 0x%08x, v5" % f2u(1.0 / 32))
        a("v_cos_f32 v%d, v5" % (8 + j))
        a("v_sin_f32 v%d, v5" % (16 + j))
    a("s_nop 0")
    a("s_cmp_lt_u32 s28, 2"); a("s_cbranch_scc1 L_k1_t1p")
    for j in range(8): a("v_mov_b32 v%d, v%d" % (8 + j, 16 + j))
    a("s_cmp_lt_u32 s28, 4"); a("s_cbranch_scc1 L_k1_t1p")
    for j in range(8): a("v_sub_f32 v%d, 0, v%d" % (8 + j, 16 + j))
    a.label("L_k1_t1p")
    for d in range(4): a("v_cvt_pk_bf16_f32 v%d, v%d, v%d" % (24 + d, 8 + 2 * d, 9 + 2 * d))
    a("buffer_store_dwordx4 v[24:27], v3, s[36:39], s29 offen")
    a("s_branch L_k1_done")
    a.label("L_k1_t2")
    a("s_sub_u32 s30, s28, 6")
    a("s_lshr_b32 s31, s30, 3")
    a("s_and_b32 s30, s30, 7")
    a("s_lshl_b32 s31, s31, 5")
    a("s_lshr_b32 s40, s30, 1"); a("s_lshl_b32 s40, s40, 3")
    a("s_add_u32 s31, s31, s40")
    a("s_and_b32 s40, s30, 1"); a("s_lshl_b32 s40, s40, 1")
    a("s_add_u32 s31, s31, s40")
    a("v_lshl_add_u32 v4, v2, 2, s31")
    for i in range(2):
        a("v_add_u32 v5, %d, v4" % i)
        a("v_mul_u32_u24 v5, v5, v1")
        a("v_cvt_f32_u32 v5, v5")
        a("v_mul_f32 v5, 0x%08x, v5" % f2u(1.0 / 2048))
        a("v_cos_f32 v%d, v5" % (24 + 2 * i))
        a("v_sin_f32 v%d, v5" % (25 + 2 * i))
    a("s_nop 1")
    a("buffer_store_dwordx4 v[24:27], v3, s[36:39], s29 offen")
    a("s_branch L_k1_done")
    a.label("L_k1_t3")
    a("s_sub_u32 s30, s28, 22")
    a("s_lshr_b32 s31, s30, 3")
    a("s_bfe_u32 s40, s30, 0x10002")
    a("s_and_b32 s30, s30, 3")
    a("s_lshl_b32 s40, s40, 5")
    a("v_add_u32 v1, s40, v1")
    a("s_lshl_b32 s30, s30, 4")
    a("v_lshl_add_u32 v4, v2, 2, s30")
    for j in range(8):
        a("v_add_u32 v5, %d, v4" % (j if j < 4 else 8 + j - 4))
        a("v_mul_u32_u24 v5, v5, v1")
        a("v_and_b32 v5, 63, v5")
        a("v_cvt_f32_u32 v5, v5")
        a("v_mul_f32 v5, 0x%08x, v5" % f2u(1.0 / 64))
        a("v_cos_f32 v%d, v5" % (8 + j))
        a("v_sin_f32 v%d, v5" % (16 + j))
    a("s_nop 0")
    a("s_cmp_eq_u32 s31, 0"); a("s_cbranch_scc1 L_k1_t3p")
    for j in range(8): a("v_mov_b32 v%d, v%d" % (8 + j, 16 + j))
    a.label("L_k1_t3p")
    for d in range(4): a("v_cvt_pk_bf16_f32 v%d, v%d, v%d" % (24 + d, 8 + 2 * d, 9 + 2 * d))
    a("buffer_store_dwordx4 v[24:27], v3, s[36:39], s29 offen")
    a.label("L_k1_done")
    a("s_endpgm")
    return name


def fft_column(a, kidx):
    srd(a, 32, 26, CF_BYTES, WS_CF)
    srd(a, 36, 26, TAB_BYTES, WS_TAB)
    srd(a, 40, 26, YT_BYTES, WS_YT)
    a("v_lshrrev_b32 v3, 3, v2")
    a("v_lshlrev_b32 v3, 7, v3")
    a("v_bfe_u32 v4, v2, 4, 1")
    a("v_lshlrev_b32 v4, 1, v4")
    a("v_bfe_u32 v5, v2, 1, 2")
    a("v_xor_b32 v5, v5, v4")
    a("v_lshl_add_u32 v3, v5, 5, v3")
    a("v_and_b32 v5, 1, v2")
    a("v_lshl_add_u32 v3, v5, 4, v3")
    a("s_lshl_b32 s50, s49, 13")
    for i in range(8):
        a("s_add_u32 s52, s50, %d" % (i * 1024))
        a("s_add_u32 m0, s51, %d" % (i * 1024))
        a("s_nop 0")
        a("buffer_load_dwordx4 v3, s[32:35], s52 offen sc1 lds")
    a("v_lshlrev_b32 v6, 4, v2")
    for i in range(6):
        a("s_movk_i32 s52, %d" % (i * 1024))
        a("buffer_load_dwordx4 v[%d:%d], v6, s[36:39], s52 offen" % (64 + 4 * i, 67 + 4 * i))
    for i in range(16):
        a("s_mov_b32 s52, %d" % ((22 + i) * 1024))
        a("buffer_load_dwordx4 v[%d:%d], v6, s[36:39], s52 offen" % (136 + 4 * i, 139 + 4 * i))
    a("v_bfe_u32 v8, v2, 4, 1")
    a("v_bfe_u32 v9, v2, 5, 1")
    a("v_bfe_u32 v10, v2, 2, 2")
    a("v_and_b32 v11, 3, v2")
    a("v_lshl_add_u32 v12, v9, 3, v10")
    a("v_lshlrev_b32 v12, 7, v12")
    a("v_lshl_add_u32 v12, v11, 3, v12")
    a("v_add_u32 v12, s51, v12")
    a("v_and_b32 v13, 2, v10")
    a("v_xor_b32 v14, v8, v13")
    a("v_lshl_add_u32 v16, v14, 5, v12")
    a("v_xor_b32 v14, 2, v14")
    a("v_lshl_add_u32 v17, v14, 5, v12")
    a("v_and_b32 v18, 31, v2")
    a("v_cvt_f32_u32 v18, v18")
    a("v_mul_f32 v18, 0x%08x, v18" % f2u(1.0 / 2048))
    a("v_cvt_f32_u32 v19, v9")
    a("v_mul_f32 v19, 4.0, v19")
    a("v_mul_f32 v19, v19, v18")
    a("s_waitcnt vmcnt(22)")
    C0, C1, S0, S1, N0, N1 = 64, 68, 72, 76, 80, 84
    for rt in range(2):
        for kk in range(4):
            p, h = kk >> 1, kk & 1
            for q in range(2):
                r = 200 + 16 * rt + 4 * kk + 2 * q
                a("ds_read_b64_tr_b16 v[%d:%d], v%d offset:%d" % (r, r + 1, 16 + rt, p * 4096 + h * 2048 + q * 512))
    a("s_waitcnt vmcnt(16) lgkmcnt(0)")
    br = [C0, C1, S0, S1]; bi = [N0, N1, C0, C1]
    UR = [88, 232]
    UI = [104, 120]
    for rt in range(2):
        ur, ui = UR[rt], UI[rt]
        for kk in range(4):
            ar = 200 + 16 * rt + 4 * kk
            a("v_mfma_f32_32x32x16_bf16 v[%d:%d], v[%d:%d], v[%d:%d], %s" % (ur, ur + 15, ar, ar + 3, br[kk], br[kk] + 3, "0" if kk == 0 else "v[%d:%d]" % (ur, ur + 15)))
            a("v_mfma_f32_32x32x16_bf16 v[%d:%d], v[%d:%d], v[%d:%d], %s" % (ui, ui + 15, ar, ar + 3, bi[kk], bi[kk] + 3, "0" if kk == 0 else "v[%d:%d]" % (ui, ui + 15)))
    for rt in range(2):
        ur, ui = UR[rt], UI[rt]
        if rt == 1: a("s_nop 7")
        for r in range(0, 16, 2):
            for i in range(2):
                rr = r + i
                s2c = 32 * rt + 8 * (rr >> 2) + (rr & 3)
                a("v_fmamk_f32 v%d, v18, 0x%08x, v19" % (52 + i, f2u(float(s2c))))
            a("v_cos_f32 v54, v52"); a("v_sin_f32 v56, v52")
            a("v_cos_f32 v55, v53"); a("v_sin_f32 v57, v53")
            for i in range(2):
                rr = r + i
                a("v_mul_f32 v%d, v%d, v%d" % (58 + i, ur + rr, 54 + i))
                a("v_mul_f32 v%d, v%d, v%d" % (62 + i, ui + rr, 54 + i))
            for i in range(2):
                rr = r + i
                a("v_fma_f32 v%d, v%d, v%d, v%d" % (58 + i, ui + rr, 56 + i, 58 + i))
                a("v_fma_f32 v%d, -v%d, v%d, v%d" % (62 + i, ur + rr, 56 + i, 62 + i))
            half, dd = r >> 3, (r >> 1) & 3
            base = 20 + 8 * (rt * 2 + half)
            a("v_cvt_pk_bf16_f32 v%d, v58, v59" % (base + dd))
            a("v_cvt_pk_bf16_f32 v%d, v62, v63" % (base + 4 + dd))
    a("s_waitcnt vmcnt(0)")
    a("s_nop 1")
    for part in range(2):
        for tt in range(2):
            y = 88 + 16 * tt
            for rh in range(4):
                ac = 136 + 4 * (part * 8 + tt * 4 + rh)
                vb = 20 + 8 * rh + 4 * part
                a("v_mfma_f32_32x32x16_bf16 v[%d:%d], v[%d:%d], v[%d:%d], %s" % (y, y + 15, ac, ac + 3, vb, vb + 3, "0" if (part == 0 and rh == 0) else "v[%d:%d]" % (y, y + 15)))
    a("v_and_b32 v4, 31, v2")
    a("v_lshlrev_b32 v4, 2, v4")
    a("v_lshrrev_b32 v5, 5, v2")
    a("v_lshl_add_u32 v4, v5, 9, v4")
    a("v_add_u32 v4, s51, v4")
    a("v_add_u32 v7, s51, v6")
    a("s_nop 15"); a("s_nop 3")
    for tt in range(2):
        for r in range(16):
            a("ds_write_b32 v4, v%d offset:%d" % (88 + 16 * tt + r, tt * 4096 + (8 * (r >> 2) + (r & 3)) * 128))
    a("s_waitcnt lgkmcnt(0)")
    for i in range(8):
        a("ds_read_b128 v[%d:%d], v7 offset:%d" % (136 + 4 * i, 139 + 4 * i, i * 1024))
    for i in range(8):
        a("s_waitcnt lgkmcnt(%d)" % (7 - i))
        a("s_add_u32 s52, s50, %d" % (i * 1024))
        a("buffer_store_dwordx4 v[%d:%d], v6, s[40:43], s52 offen" % (136 + 4 * i, 139 + 4 * i))

ACC = [16, 80]
XOV = 144
AF = 176
GT = 200
HP = 216
V_LANE16 = 1
V_DM0, V_DM1 = 2, 3
V_DH0, V_DH1 = 4, 5
V_TR = [6, 7, 8, 9]
V_TRH = [10, 11]
V_H = 12
V_HH = 13
V_C0 = 14
V_D2 = 224
V_TR2 = [225, 226, 227, 228]
V_HR = 229
V_CR, V_CG = 231, 254
V_CF = 230
V_LN, V_T1, V_T2 = 248, 249, 250
BR = 232
S_W = 32; S_X = 36; S_D = 40; S_P = 44
S_WAVE, S_TM, S_FH, S_M, S_J = 48, 49, 50, 51, 52
S_FB, S_FHB = 53, 54
S_LDSW = 55
S_COL = [56, 57, 58, 59, 60]
S_OFF = 61; S_T0 = 62; S_T1 = 63; S_C1 = 64
S_PB = 65; S_LDS2 = 66
S_WD0, S_WD1, S_OFF2 = 67, 68, 69
S_XB = 70
S_DF = 72
S_CF = 76
S_DFB = 80; S_CFB = 81
S_ROW = 4
S_ROT = 82; S_RB = 83
S_CNT = 86; S_DBG = 96

def xreg(ks, t):
    i = ks * 2 + t
    if i < 64: return "a[%d:%d]" % (4 * i, 4 * i + 3)
    r = XOV + 4 * (i - 64)
    return "v[%d:%d]" % (r, r + 3)

def gelu_items(accbase, tiles):
    items = []
    c1 = "s%d" % S_C1
    for n, (ti, off, areg) in enumerate(tiles):
        base = accbase + 16 * ti
        hp = HP + 4 * (n & 1)
        for pr in range(4):
            g0, g1 = base + 2 * pr, base + 2 * pr + 1
            u0, u1 = g0 + 8, g1 + 8
            t0, t1 = GT + 4 * (pr & 1), GT + 4 * (pr & 1) + 1
            m0, m1 = t0 + 2, t0 + 3
            items += [
                "v_mul_f32 v%d, v%d, v%d" % (t0, g0, g0),
                "v_mul_f32 v%d, v%d, v%d" % (t1, g1, g1),
                "v_fma_f32 v%d, v%d, %s, v%d" % (t0, t0, c1, V_C0),
                "v_fma_f32 v%d, v%d, %s, v%d" % (t1, t1, c1, V_C0),
                "v_mul_f32 v%d, v%d, v%d" % (t0, t0, g0),
                "v_mul_f32 v%d, v%d, v%d" % (t1, t1, g1),
                "v_exp_f32 v%d, v%d" % (t0, t0),
                "v_exp_f32 v%d, v%d" % (t1, t1),
                "v_mul_f32 v%d, v%d, v%d" % (m0, g0, u0),
                "v_mul_f32 v%d, v%d, v%d" % (m1, g1, u1),
                "v_add_f32 v%d, 1.0, v%d" % (t0, t0),
                "v_add_f32 v%d, 1.0, v%d" % (t1, t1),
                "v_rcp_f32 v%d, v%d" % (t0, t0),
                "v_rcp_f32 v%d, v%d" % (t1, t1),
                "v_mul_f32 v%d, v%d, v%d" % (m0, m0, t0),
                "v_mul_f32 v%d, v%d, v%d" % (m1, m1, t1),
                "v_cvt_pk_bf16_f32 v%d, v%d, v%d" % (hp + pr, m0, m1),
            ]
        items.append(("lds", "ds_write_b128 v%d, v[%d:%d] offset:%d" % (areg, hp, hp + 3, off), "hw"))
    return items

def k2(a):
    R = OPT["R"]; ABLS = OPT["abl"]
    HB = R * 8192
    name = "ffn_kernel"
    kernel_begin(a, name)
    a("s_cmp_ge_u32 s2, 256"); a("s_cbranch_scc1 L_ffn_done")
    load_ptrs(a)
    stamp(a, 1, 0)
    dstamp(a, 1, 2, mn=True)
    st = Stream(a)
    def emit_item(it):
        if isinstance(it, tuple):
            kind = it[0]
            if kind == "lds": st.lds(it[1], it[2])
            elif kind == "vm": st.vmem(it[1], it[2])
            elif kind == "bar":
                st.wait(vm=it[1])
                if "nobar" not in ABLS: st("s_barrier")
            else: raise ValueError(kind)
        elif isinstance(it, list):
            for x in it: emit_item(x)
        else:
            st(it)
    a("v_lshrrev_b32 v20, 6, v0")
    a("v_and_b32 v21, 63, v0")
    a("v_readfirstlane_b32 s%d, v20" % S_WAVE)
    mj_from_wg(a, S_M, S_J, S_T0, S_T1)
    a("s_lshr_b32 s%d, s%d, 1" % (S_TM, S_WAVE))
    a("s_and_b32 s%d, s%d, 1" % (S_FH, S_WAVE))
    a("s_mul_i32 s%d, s%d, 288" % (S_T0, S_J))
    a("s_lshl_b32 s%d, s%d, 5" % (S_FB, S_T1))
    a("s_add_u32 s%d, s%d, s%d" % (S_FB, S_FB, S_T0))
    a("s_cmp_eq_u32 s%d, 0" % S_T1)
    a("s_cselect_b32 s%d, 256, 0" % S_FHB)
    a("s_add_u32 s%d, s%d, s%d" % (S_FHB, S_FHB, S_T0))
    for s_ in range(4):
        a("s_add_u32 s%d, s%d, %d" % (S_COL[s_], S_FB, 64 * s_))
        a("s_lshl_b32 s%d, s%d, 1" % (S_COL[s_], S_COL[s_]))
    a("s_lshl_b32 s%d, s%d, 5" % (S_COL[4], S_T1))
    a("s_sub_u32 s%d, s%d, s%d" % (S_COL[4], S_FHB, S_COL[4]))
    a("s_lshl_b32 s%d, s%d, 1" % (S_COL[4], S_COL[4]))
    a("s_cmp_ge_u32 s%d, 2" % S_WAVE)
    a("s_cselect_b32 s%d, s18, s16" % S_W)
    a("s_cselect_b32 s%d, s19, s17" % (S_W + 1))
    a("s_mov_b32 s%d, %d" % (S_W + 2, D * F * 2)); a("s_mov_b32 s%d, 0x00020000" % (S_W + 3))
    srd(a, S_X, 26, S * D * 2, WS_XNF)
    a("s_lshl_b32 s%d, s%d, 11" % (S_LDSW, S_WAVE))
    a("v_lshlrev_b32 v%d, 4, v21" % V_LANE16)
    a("v_lshrrev_b32 v22, 3, v21")
    a("s_lshl_b32 s%d, s%d, 4" % (S_T0, S_FH))
    a("v_add_u32 v22, s%d, v22" % S_T0)
    a("s_movk_i32 s%d, 9216" % S_T0)
    a("v_mul_lo_u32 v22, v22, s%d" % S_T0)
    a("v_bfe_u32 v23, v21, 4, 1")
    a("s_lshl_b32 s%d, s%d, 1" % (S_T0, S_TM))
    a("v_or_b32 v23, s%d, v23" % S_T0)
    a("v_bfe_u32 v24, v21, 1, 2")
    a("v_xor_b32 v24, v24, v23")
    a("v_and_b32 v25, 1, v21")
    a("v_lshlrev_b32 v25, 4, v25")
    a("v_lshl_add_u32 v25, v24, 5, v25")
    a("v_add_u32 v%d, v22, v25" % V_DM0)
    a("v_add_u32 v%d, %d, v%d" % (V_DM1, 8 * 9216, V_DM0))
    a("s_lshl_b32 s%d, s%d, 2" % (S_T0, S_M))
    a("s_lshl_b32 s%d, s%d, 1" % (S_T1, S_TM))
    a("s_add_u32 s%d, s%d, s%d" % (S_T0, S_T0, S_T1))
    a("s_mul_i32 s%d, s%d, 36864" % (S_XB, S_T0))
    srd(a, S_D, 20, D * F * 2)
    if OPT.get("rot", 1):
        a("s_mul_i32 s%d, s%d, 18" % (S_ROT, S_M))
        a("s_lshr_b32 s%d, s%d, 4" % (S_ROT, S_ROT))
    else:
        a("s_mov_b32 s%d, 0" % S_ROT)
    def row_entry(s_):
        if s_ == 0:
            a("s_mul_i32 s%d, s%d, %d" % (S_ROW, S_ROT, 32 * 9216))
        else:
            a("s_add_u32 s%d, s%d, %d" % (S_ROW + s_, S_ROW + s_ - 1, 32 * 9216))
            a("s_cmp_eq_u32 s%d, %d" % (S_ROW + s_, 18 * 32 * 9216))
            a("s_cselect_b32 s%d, 0, s%d" % (S_ROW + s_, S_ROW + s_))

    def dma_items(g):
        stg, s_ = divmod(g, 18)
        if stg > 4: return []
        if "nodma" in ABLS and g >= 8: return []
        slot = g % R
        v0_, v1_ = (V_DH0, V_DH1) if stg == 4 else (V_DM0, V_DM1)
        g0 = ["s_add_u32 s%d, s%d, s%d" % (S_OFF, S_COL[stg], S_ROW + s_),
              "s_add_u32 m0, s%d, %d" % (S_LDSW, slot * 8192),
              "NOPSLOT",
              ("vm", "buffer_load_dwordx4 v%d, s[%d:%d], s%d offen lds" % (v0_, S_W, S_W + 3, S_OFF), ("W", g))]
        g1 = ["s_add_u32 m0, s%d, %d" % (S_LDSW, slot * 8192 + 1024),
              "NOPSLOT",
              ("vm", "buffer_load_dwordx4 v%d, s[%d:%d], s%d offen lds" % (v1_, S_W, S_W + 3, S_OFF), ("W", g))]
        return [g0, g1]
    def emit_group(grp, filler=None):
        for it in grp:
            if it == "NOPSLOT":
                if not (filler and filler()): st("s_nop 0")
            else: emit_item(it)
    def xload_items(ks):
        out = []
        for t in range(2):
            sl = ks // 2
            out.append(["s_mul_hi_u32 s%d, s%d, %d" % (S_OFF2, S_ROW + sl, -(-(1 << 32) // 144)),
                        "s_add_u32 s%d, s%d, s%d" % (S_OFF2, S_OFF2, S_XB),
                        "s_add_u32 s%d, s%d, %d" % (S_OFF2, S_OFF2, t * 36864 + (ks & 1) * 1024),
                        ("vm", "buffer_load_dwordx4 %s, v%d, s[%d:%d], s%d offen" % (xreg(ks, t), V_LANE16, S_X, S_X + 3, S_OFF2), ("X", ks))])
        return out
    NPRE = R - 1
    XA = OPT["xahead"]
    for s_ in range(NPRE):
        row_entry(s_)
        for grp in dma_items(s_): emit_group(grp)
        for ks in (2 * s_, 2 * s_ + 1):
            if ks < XA:
                for it in xload_items(ks): emit_item(it)
    for s_ in range(NPRE, 18): row_entry(s_)
    srd(a, S_P, 26, PART_BYTES, WS_PART)
    srd(a, S_DF, 26, DF_BYTES, WS_DF)
    srd(a, S_CF, 26, CF_BYTES, WS_CF)
    a("s_lshl_b32 s%d, s%d, 10" % (S_LDS2, S_WAVE))
    a("s_mov_b32 s%d, 0x%08x" % (S_C1, f2u(-2.0 * 0.7978845608028654 * 1.4426950408889634 * 0.044715)))
    a("v_mov_b32 v%d, 0x%08x" % (V_C0, f2u(-2.0 * 0.7978845608028654 * 1.4426950408889634)))
    a("v_lshrrev_b32 v24, 1, v24")
    a("s_and_b32 s%d, s%d, 1" % (S_T0, S_J))
    a("v_cmp_eq_u32 vcc, s%d, v24" % S_T0)
    a("v_mov_b32 v26, 0x7ff00000")
    a("s_nop 0")
    a("v_cndmask_b32 v%d, v26, v%d, vcc" % (V_DH0, V_DM0))
    a("v_cndmask_b32 v%d, v26, v%d, vcc" % (V_DH1, V_DM1))
    a("v_bfe_u32 v22, v21, 4, 1")
    a("v_bfe_u32 v23, v21, 5, 1")
    a("v_bfe_u32 v24, v21, 2, 2")
    a("v_and_b32 v25, 3, v21")
    a("v_lshlrev_b32 v26, 12, v22")
    a("v_lshl_add_u32 v27, v23, 3, v24")
    a("v_lshl_add_u32 v26, v27, 7, v26")
    a("v_lshl_add_u32 v26, v25, 3, v26")
    a("v_lshrrev_b32 v27, 1, v24")
    a("v_lshl_or_b32 v27, v22, 1, v27")
    a("s_lshl_b32 s%d, s%d, 1" % (S_T0, S_FH))
    a("v_xor_b32 v28, s%d, v27" % S_T0)
    a("v_lshl_add_u32 v%d, v28, 5, v26" % V_TR[0])
    a("v_xor_b32 v28, 1, v28")
    a("v_lshl_add_u32 v%d, v28, 5, v26" % V_TR[1])
    a("v_add_u32 v%d, 49152, v%d" % (V_TR[2], V_TR[0]))
    a("v_add_u32 v%d, 49152, v%d" % (V_TR[3], V_TR[1]))
    a("s_and_b32 s%d, s%d, 1" % (S_T0, S_J))
    a("s_lshl_b32 s%d, s%d, 1" % (S_T0, S_T0))
    a("s_add_u32 s%d, s%d, s%d" % (S_T0, S_T0, S_FH))
    a("v_xor_b32 v28, s%d, v27" % S_T0)
    a("v_lshl_add_u32 v%d, v28, 5, v26" % V_TRH[0])
    a("v_add_u32 v%d, 49152, v%d" % (V_TRH[1], V_TRH[0]))
    a("s_mul_i32 s%d, s%d, 36" % (S_T0, S_TM))
    a("s_lshl_b32 s%d, s%d, 1" % (S_T1, S_FH))
    a("s_add_u32 s%d, s%d, s%d" % (S_T1, S_T1, S_T0))
    a("s_lshl_b32 s%d, s%d, 10" % (S_T1, S_T1))
    a("s_add_u32 s%d, s%d, %d" % (S_T1, S_T1, HB))
    a("v_add_u32 v%d, s%d, v%d" % (V_H, S_T1, V_LANE16))
    a("s_add_u32 s%d, s%d, 16" % (S_T1, S_T0))
    a("s_add_u32 s%d, s%d, s%d" % (S_T1, S_T1, S_FH))
    a("s_lshl_b32 s%d, s%d, 10" % (S_T1, S_T1))
    a("s_add_u32 s%d, s%d, %d" % (S_T1, S_T1, HB))
    a("v_add_u32 v%d, s%d, v%d" % (V_HH, S_T1, V_LANE16))
    a("s_lshl_b32 s%d, s%d, 10" % (S_T1, S_T0))
    a("s_add_u32 s%d, s%d, %d" % (S_T1, S_T1, HB))
    a("v_add_u32 v%d, s%d, v%d" % (V_HR, S_T1, V_LANE16))
    a("v_lshrrev_b32 v22, 3, v21")
    a("s_lshl_b32 s%d, s%d, 3" % (S_T0, S_WAVE))
    a("v_add_u32 v22, s%d, v22" % S_T0)
    a("s_movk_i32 s%d, 1152" % S_T0)
    a("v_mul_lo_u32 v22, v22, s%d" % S_T0)
    a("v_bfe_u32 v23, v21, 4, 1")
    a("v_lshlrev_b32 v23, 1, v23")
    a("v_bfe_u32 v24, v21, 1, 2")
    a("v_xor_b32 v24, v24, v23")
    a("v_and_b32 v25, 1, v21")
    a("v_lshlrev_b32 v25, 4, v25")
    a("v_lshl_add_u32 v25, v24, 5, v25")
    a("v_add_u32 v%d, v22, v25" % V_D2)
    a("v_bfe_u32 v22, v21, 4, 1")
    a("v_bfe_u32 v23, v21, 5, 1")
    a("v_bfe_u32 v24, v21, 2, 2")
    a("v_and_b32 v25, 3, v21")
    a("v_lshl_add_u32 v26, v23, 2, v24")
    a("v_lshlrev_b32 v26, 7, v26")
    a("v_lshl_add_u32 v26, v25, 3, v26")
    a("v_and_b32 v27, 2, v24")
    a("s_lshl_b32 s%d, s%d, 1" % (S_T0, S_FH))
    a("v_or_b32 v28, s%d, v22" % S_T0)
    a("v_xor_b32 v28, v28, v27")
    a("v_lshl_add_u32 v%d, v28, 5, v26" % V_TR2[0])
    for b in range(1, 4):
        a("v_add_u32 v%d, %d, v%d" % (V_TR2[b], 36864 * b, V_TR2[0]))
    a("s_lshl_b32 s%d, s%d, 4" % (S_T0, S_J))
    a("s_add_u32 s%d, s%d, s%d" % (S_T0, S_T0, S_M))
    a("s_lshl_b32 s%d, s%d, 2" % (S_T0, S_T0))
    a("s_lshl_b32 s%d, s%d, 1" % (S_T1, S_TM))
    a("s_add_u32 s%d, s%d, s%d" % (S_T0, S_T0, S_T1))
    a("s_mul_i32 s%d, s%d, %d" % (S_PB, S_T0, 18 * 2048))
    a("s_lshl_b32 s%d, s%d, 11" % (S_T1, S_FH))
    a("s_add_u32 s%d, s%d, s%d" % (S_PB, S_PB, S_T1))
    a("s_mul_i32 s%d, s%d, 1152" % (S_WD0, S_FB))
    a("s_mul_i32 s%d, s%d, 1152" % (S_WD1, S_FHB))
    if OPT.get("rot", 1):
        a("s_mul_i32 s%d, s%d, 9" % (S_RB, S_M))
        a("s_lshr_b32 s%d, s%d, 4" % (S_RB, S_RB))
    else:
        a("s_mov_b32 s%d, 0" % S_RB)
    a("s_lshl_b32 s%d, s%d, 1" % (S_T0, S_J))
    a("s_add_u32 s%d, s%d, s%d" % (S_T0, S_T0, S_FH))
    a("s_mul_i32 s%d, s%d, 36864" % (S_DFB, S_T0))
    a("s_cmp_ge_u32 s%d, 9" % S_T0)
    a("s_cselect_b32 s%d, 9, 0" % S_T1)
    a("s_sub_u32 s%d, s%d, s%d" % (S_T0, S_T0, S_T1))
    a("s_lshl_b32 s%d, s%d, 18" % (S_CFB, S_T0))
    a("s_cselect_b32 s%d, 4096, 0" % S_T1)
    a("s_lshl_b32 s%d, s%d, 1" % (S_T0, S_J))
    a("s_add_u32 s%d, s%d, s%d" % (S_T0, S_T0, S_FH))
    a("s_cmp_ge_u32 s%d, 9" % S_T0)
    a("s_cselect_b32 s%d, 4096, 0" % S_T1)
    a("s_add_u32 s%d, s%d, s%d" % (S_CFB, S_CFB, S_T1))
    a("s_lshl_b32 s%d, s%d, 8" % (S_T0, S_M))
    a("s_add_u32 s%d, s%d, s%d" % (S_CFB, S_CFB, S_T0))
    a("s_lshl_b32 s%d, s%d, 7" % (S_T0, S_TM))
    a("s_add_u32 s%d, s%d, s%d" % (S_CFB, S_CFB, S_T0))
    a("s_lshl_b32 s%d, s%d, 12" % (S_T0, S_WAVE))
    a("s_add_u32 s%d, s%d, 147456" % (S_T0, S_T0))
    a("v_and_b32 v22, 31, v21")
    a("v_lshlrev_b32 v22, 7, v22")
    a("v_lshrrev_b32 v23, 5, v21")
    a("v_lshl_add_u32 v22, v23, 4, v22")
    a("v_add_u32 v%d, s%d, v22" % (V_CF, S_T0))
    a("v_add_u32 v%d, s%d, v%d" % (V_CR, S_T0, V_LANE16))
    a("v_lshrrev_b32 v22, 3, v21")
    a("v_lshlrev_b32 v22, 13, v22")
    a("v_and_b32 v23, 7, v21")
    a("v_lshl_add_u32 v%d, v23, 4, v22" % V_CG)
    a("v_mov_b32 v%d, v21" % V_LN)
    srd(a, S_DBG, 26, 288 * 4, WS_FLAG)
    a("s_lshl_b32 s%d, s%d, 1" % (S_T0, S_J))
    a("s_add_u32 s%d, s%d, s%d" % (S_T0, S_T0, S_FH))
    a("s_lshl_b32 s%d, s%d, 4" % (S_T0, S_T0))
    a("s_add_u32 s%d, s%d, s%d" % (S_T0, S_T0, S_M))
    a("s_lshl_b32 s%d, s%d, 2" % (S_CNT, S_T0))
    a("s_cmp_lg_u32 s%d, 0" % S_TM)
    a("s_cselect_b32 s%d, 0x7ff00000, s%d" % (S_CNT, S_CNT))
    stamp(a, 1, 1)
    dstamp(a, 1, 3)

    HI = 49152
    def trread(g, kk, half):
        slot = g % R
        gks = g * 2 + kk
        buf = gks % 3
        out = []
        ncs = 1 if half else 2
        for c in range(ncs):
            for q in range(2):
                off = slot * 8192 + kk * 2048 + q * 512
                hi = off >= HI
                if half: areg = V_TRH[1 if hi else 0]
                else: areg = V_TR[c + (2 if hi else 0)]
                if hi: off -= HI
                r = AF + (buf * 2 + c) * 4 + q * 2
                out.append(("lds", "ds_read_b64_tr_b16 v[%d:%d], v%d offset:%d" % (r, r + 1, areg, off), ("A", gks)))
        return out
    B = OPT["B"]
    NG = 5 * 18
    st.wait(vm=[("W", i) for i in range(B)])
    st("s_barrier")
    for kk in range(2):
        for it in trread(0, kk, False): emit_item(it)
    next_dma = [NPRE]
    dma_pending = []
    def stage(stg, accset, gelu_q):
        half = stg == 4
        ncs = 1 if half else 2
        gq = list(gelu_q) if "nogelu" not in ABLS else []
        nm_total = 36 * ncs * 2
        per = len(gq) / float(nm_total - 6)
        state = {"acc": 0.0, "em": 0}
        def pop_gelu():
            if gq:
                emit_item(gq.pop(0)); state["em"] += 1
                return True
            return False
        mi = 0
        since_dma = 99
        xq = []
        for ks in range(36):
            g = stg * 18 + ks // 2
            gks = stg * 36 + ks
            buf = gks % 3
            g2, kk2 = divmod(gks + 2, 2)
            bar = None
            if kk2 == 0 and g2 % B == 0 and g2 < NG:
                bar = [("W", i) for i in range(g2, min(g2 + B, NG))]
            reads = trread(g2, kk2, g2 // 18 == 4) if (g2 < NG and "notr" not in ABLS) else []
            if stg == 0 and ks + XA < 36: xq.extend(xload_items(ks + XA))
            st.wait(vm=[("X", ks)] if stg == 0 else [], lg=[("A", gks)])
            ng = ncs * 2
            k = 0
            for c in range(ncs):
                for t in range(2):
                    ti = c * 2 + t
                    d = ACC[accset] + 16 * ti
                    ar = AF + (buf * 2 + c) * 4
                    src = "0" if ks == 0 else "v[%d:%d]" % (d, d + 15)
                    st("v_mfma_f32_32x32x16_bf16 v[%d:%d], v[%d:%d], %s, %s" % (d, d + 15, ar, ar + 3, xreg(ks, t), src))
                    mi += 1
                    if k == 0 and bar is not None:
                        emit_item(("bar", bar))
                        while next_dma[0] < NG and next_dma[0] - R <= g2 - 2:
                            dma_pending.extend(dma_items(next_dma[0])); next_dma[0] += 1
                    lo = k * len(reads) // ng; hi_ = (k + 1) * len(reads) // ng
                    for it in reads[lo:hi_]: emit_item(it)
                    since_dma += 1
                    did = False
                    if xq and k in (1, 3):
                        emit_item(xq.pop(0)); did = True
                    elif dma_pending and since_dma >= OPT.get("dmagap", 4 if not half else 2) and not (k == 0 and bar is not None):
                        emit_group(dma_pending.pop(0), pop_gelu if mi > 6 else None)
                        since_dma = 0; did = True
                    if mi > 6:
                        state["acc"] += per
                        n = 0
                        cap = OPT["gcap"] - (2 if did else 0)
                        while gq and state["em"] < state["acc"] and n < cap:
                            pop_gelu(); n += 1
                    k += 1
        assert not xq
        while gq: pop_gelu()

    def full_tiles(stg):
        return [(c * 2 + t, (t * 18 + c) * 1024 + stg * 4096, V_H) for c in range(2) for t in range(2)]
    stage(0, 0, [])
    stamp(a, 1, 2)
    dstamp(a, 1, 4)
    stage(1, 1, gelu_items(ACC[0], full_tiles(0)))
    stage(2, 0, gelu_items(ACC[1], full_tiles(1)))
    if OPT.get("dfpf", 1):
        st("v_lshlrev_b32 v%d, 7, v%d" % (V_T1, V_LN))
        for i in range(5):
            st("s_add_u32 s%d, s%d, %d" % (S_T0, S_DFB, i * 8192))
            st.vmem("buffer_load_dword v%d, v%d, s[%d:%d], s%d offen" % (V_T2, V_T1, S_DF, S_DF + 3, S_T0), "PF")
    stage(3, 1, gelu_items(ACC[0], full_tiles(2)))
    stage(4, 0, gelu_items(ACC[1], full_tiles(3)))
    assert not dma_pending
    stamp(a, 1, 3)
    dstamp(a, 1, 5)
    S_BC = 84
    def blk_items(dst, b, mul):
        return ["s_add_u32 s%d, s%d, %d" % (dst, S_RB, b),
                "s_cmp_ge_u32 s%d, 9" % dst,
                "s_cselect_b32 s%d, 9, 0" % S_T0,
                "s_sub_u32 s%d, s%d, s%d" % (dst, dst, S_T0),
                "s_mul_i32 s%d, s%d, %d" % (dst, dst, mul)]
    def wd_groups(b):
        buf = b % 4
        out = []
        for i in range(9):
            base = S_WD0 if i < 8 else S_WD1
            off = (32 * i * 1152 if i < 8 else 0)
            pre = blk_items(S_BC, b, 128) if i == 0 else []
            out.append(pre + ["s_add_u32 s%d, s%d, s%d" % (S_OFF, base, S_BC),
                        "s_add_u32 s%d, s%d, %d" % (S_OFF, S_OFF, off),
                        "s_add_u32 m0, s%d, %d" % (S_LDS2, buf * 36864 + i * 4096),
                        "NOPSLOT",
                        ("vm", "buffer_load_dwordx4 v%d, s[%d:%d], s%d offen lds" % (V_D2, S_D, S_D + 3, S_OFF), ("D", b))])
        return out
    st.wait_all(vm=False, lg=True)
    st("s_barrier")
    tail = gelu_items(ACC[0], [(t, t * 18 * 1024, V_HH) for t in range(2)])
    a("s_cmp_ge_u32 s%d, 9" % S_J)
    a("s_cbranch_scc1 L_ffn_noa1")
    vm_save, lg_save = list(st.vm), list(st.lg)
    NB = 18
    def breg(ks):
        i = ks % NB
        r = (AF + 4 * i) if i < 6 else (BR + 4 * (i - 6)) if i < 10 else (112 + 4 * (i - 10))
        return r
    def bload(ks):
        r = breg(ks)
        return ["s_mul_hi_u32 s%d, s%d, %d" % (S_OFF2, S_ROW + ks // 2, -(-(1 << 32) // 144)),
                "s_add_u32 s%d, s%d, s%d" % (S_OFF2, S_OFF2, S_DFB),
                "s_add_u32 s%d, s%d, %d" % (S_OFF2, S_OFF2, (ks & 1) * 1024),
                ("vm", "buffer_load_dwordx4 v[%d:%d], v%d, s[%d:%d], s%d offen" % (r, r + 3, V_LANE16, S_DF, S_DF + 3, S_OFF2), ("B", ks))]
    for ks in range(NB - 1): emit_item(bload(ks))
    wdq = wd_groups(0) + wd_groups(1)
    for _ in range(4): emit_group(wdq.pop(0))
    A1ACC = ACC[1]
    tq = list(tail)
    for ks in range(36):
        st.wait(vm=[("B", ks)])
        for t in range(2):
            d = A1ACC + 16 * t
            br = breg(ks)
            src = "0" if ks == 0 else "v[%d:%d]" % (d, d + 15)
            st("v_mfma_f32_32x32x16_bf16 v[%d:%d], %s, v[%d:%d], %s" % (d, d + 15, xreg(ks, t), br, br + 3, src))
            if t == 0 and ks + NB - 1 < 36:
                emit_item(bload(ks + NB - 1))
            elif t == 1 and wdq and ks % 2 == 1:
                emit_group(wdq.pop(0))
            if ks >= 2:
                for _ in range(3):
                    if tq: emit_item(tq.pop(0))
    assert not tq and not wdq, (len(tq), len(wdq))
    st("s_nop 15"); st("s_nop 3")
    for t in range(2):
        pk = GT + 8 * 0 if t == 0 else HP
        for dd in range(8):
            st("v_cvt_pk_bf16_f32 v%d, v%d, v%d" % (pk + dd, A1ACC + 16 * t + 2 * dd, A1ACC + 16 * t + 2 * dd + 1))
        st("s_nop 1")
        st("v_permlane32_swap_b32 v%d, v%d" % (pk + 0, pk + 2))
        st("v_permlane32_swap_b32 v%d, v%d" % (pk + 1, pk + 3))
        st("v_permlane32_swap_b32 v%d, v%d" % (pk + 4, pk + 6))
        st("v_permlane32_swap_b32 v%d, v%d" % (pk + 5, pk + 7))
        st.lds("ds_write_b128 v%d, v[%d:%d] offset:%d" % (V_CF, pk, pk + 3, t * 64), "cw")
        st.lds("ds_write_b128 v%d, v[%d:%d] offset:%d" % (V_CF, pk + 4, pk + 7, t * 64 + 32), "cw")
    st.wait_all(vm=False, lg=True)
    for k in range(4):
        st.lds("ds_read_b128 v[%d:%d], v%d offset:%d" % (112 + 4 * k, 115 + 4 * k, V_CR, k * 1024), ("cr", k))
    for k in range(4):
        st.wait(lg=[("cr", k)])
        st("s_add_u32 s%d, s%d, %d" % (S_OFF2, S_CFB, k * 8 * 8192))
        st.vmem("buffer_store_dwordx4 v[%d:%d], v%d, s[%d:%d], s%d offen sc1" % (112 + 4 * k, 115 + 4 * k, V_CG, S_CF, S_CF + 3, S_OFF2), "CF")
    a("s_branch L_ffn_join")
    vm_a = list(st.vm)
    a.label("L_ffn_noa1")
    st.vm, st.lg = vm_save, lg_save
    for grp in wd_groups(0) + wd_groups(1): emit_group(grp)
    for it in tail: emit_item(it)
    a.label("L_ffn_join")
    st.wait_all(vm=False, lg=True)
    st("s_barrier")
    for t in range(2):
        for ci in range(18):
            i = t * 18 + ci
            st.lds("ds_read_b128 a[%d:%d], v%d offset:%d" % (4 * i, 4 * i + 3, V_HR, i * 1024), ("H", i))
    st.wait_all(vm=False, lg=True)
    st("s_waitcnt vmcnt(4)")
    st("s_barrier")
    st.vm = [("D", 1)] * 4
    for grp in wd_groups(2): emit_group(grp)
    stamp(a, 1, 4)
    dstamp(a, 1, 6)
    A2 = 176; ACC2 = [16, 48]; PK = 200
    def trread2(b, ci):
        gk = b * 18 + ci
        r = A2 + (gk % 4) * 4
        return [("lds", "ds_read_b64_tr_b16 v[%d:%d], v%d offset:%d" % (r + 2 * q, r + 2 * q + 1, V_TR2[b % 4], ci * 2048 + q * 1024), ("A2", gk)) for q in range(2)]
    def epi_items(b):
        items = []
        acc = ACC2[b % 2]
        for t in range(2):
            pk = PK + 8 * t
            for d in range(8):
                items.append("v_cvt_pk_bf16_f32 v%d, v%d, v%d" % (pk + d, acc + 16 * t + 2 * d, acc + 16 * t + 2 * d + 1))
            for q in range(2):
                pre = blk_items(S_BC + 1, b, 4096) if (t == 0 and q == 0) else []
                items.append(pre + ["s_add_u32 s%d, s%d, s%d" % (S_OFF2, S_PB, S_BC + 1),
                              "s_add_u32 s%d, s%d, %d" % (S_OFF2, S_OFF2, t * 18 * 2048),
                              ("vm", "buffer_store_dwordx4 v[%d:%d], v%d, s[%d:%d], s%d offen offset:%d %s" % (pk + 4 * q, pk + 4 * q + 3, V_LANE16, S_P, S_P + 3, S_OFF2, q * 1024, OPT["stflags"]), ("P", b))])
        return items
    for ci in range(3):
        for it in trread2(0, ci): emit_item(it)
    pend = list(wd_groups(3))
    for b in range(9):
        eq = epi_items(b - 1) if b > 0 else []
        if b == 5 and OPT.get("cpf3", 1):
            st("s_getpc_b64 s[%d:%d]" % (S_DF, S_DF + 1))
            a.label("L_k2_pc")
            st("s_add_u32 s%d, s%d, fin_kernel-L_k2_pc" % (S_DF, S_DF))
            st("s_addc_u32 s%d, s%d, 0" % (S_DF + 1, S_DF + 1))
            st("v_lshlrev_b32 v%d, 6, v0" % (BR + 1))
            st("v_min_u32 v%d, L_code_end-fin_kernel-64, v%d" % (BR + 1, BR + 1))
            st.vmem("global_load_dword v%d, v%d, s[%d:%d]" % (BR, BR + 1, S_DF, S_DF + 1), "PF")
        mi = 0
        since = 99
        for ci in range(18):
            gk = b * 18 + ci
            nb, nci = divmod(gk + 3, 18)
            reads = trread2(nb, nci) if nb < 9 else []
            st.wait(lg=[("A2", gk)])
            for t in range(2):
                d = ACC2[b % 2] + 16 * t
                ar = A2 + (gk % 4) * 4
                hr = (t * 18 + ci) * 4
                src = "0" if ci == 0 else "v[%d:%d]" % (d, d + 15)
                st("v_mfma_f32_32x32x16_bf16 v[%d:%d], v[%d:%d], a[%d:%d], %s" % (d, d + 15, ar, ar + 3, hr, hr + 3, src))
                mi += 1
                isbar = (t == 0 and ci == 15 and b + 1 < 9)
                if isbar:
                    emit_item(("bar", [("D", b + 1)]))
                    if b == 0:
                        st("v_lshlrev_b32 v%d, 20, v%d" % (V_T1, V_LN))
                        st("v_add_u32 v%d, s%d, v%d" % (V_T1, S_CNT, V_T1))
                        st("v_mov_b32 v%d, 1" % V_T2)
                        st.vmem("buffer_store_dword v%d, v%d, s[%d:%d], 0 offen sc1" % (V_T2, V_T1, S_DBG, S_DBG + 3), "SIG")
                    if b >= 1 and b + 3 <= 8:
                        pend.extend(wd_groups(b + 3))
                if reads: emit_item(reads[t])
                since += 1
                vm_done = False
                if pend and since >= 3 and not isbar:
                    emit_group(pend.pop(0)); since = 0; vm_done = True
                if mi > 4 and eq and not vm_done:
                    it = eq.pop(0)
                    if isinstance(it, list):
                        if since >= 2:
                            emit_item(it); since = 0
                        else: eq.insert(0, it)
                    else:
                        emit_item(it)
                        if eq and not isinstance(eq[0], list): emit_item(eq.pop(0))
        while eq: emit_item(eq.pop(0))
    assert not pend
    st("s_nop 15"); st("s_nop 3")
    for it in epi_items(8): emit_item(it)
    stamp(a, 1, 5)
    dstamp(a, 1, 7)
    a("s_cmp_lt_u32 s%d, 9" % S_J); a("s_cbranch_scc1 L_ffn_done")
    a("s_cmp_ge_u32 s%d, 3" % S_WAVE); a("s_cbranch_scc1 L_ffn_done")
    a("s_sub_u32 s49, s%d, 9" % S_J)
    a("s_lshl_b32 s49, s49, 4")
    a("s_add_u32 s49, s49, s%d" % S_M)
    a("s_mul_i32 s49, s49, 3")
    a("s_add_u32 s49, s49, s%d" % S_WAVE)
    a("s_cmp_gt_u32 s49, 288"); a("s_cbranch_scc1 L_ffn_done")
    a("s_lshl_b32 s51, s%d, 13" % S_WAVE)
    a("s_add_u32 s51, s51, 36864")
    a("v_mov_b32 v2, v%d" % V_LN)
    a("s_cmp_eq_u32 s49, 288"); a("s_cbranch_scc1 L_ffn_fgo")
    a("s_lshr_b32 s52, s49, 5"); a("s_lshl_b32 s52, s52, 6")
    a("v_and_b32 v3, 15, v2"); a("v_lshlrev_b32 v3, 2, v3")
    a("v_bfe_u32 v4, v2, 4, 1"); a("v_mul_u32_u24 v4, 576, v4")
    a("v_add_u32 v3, v3, v4"); a("v_add_u32 v3, s52, v3")
    a("s_mov_b32 s53, 0")
    a.label("L_ffn_fpoll")
    a("buffer_load_dword v4, v3, s[%d:%d], 0 offen sc1" % (S_DBG, S_DBG + 3))
    a("s_waitcnt vmcnt(0)")
    a("v_cmp_eq_u32 vcc, 1, v4")
    a("s_nop 1")
    a("s_cmp_eq_u64 vcc, exec"); a("s_cbranch_scc1 L_ffn_fgo")
    a("s_sleep 8")
    a("s_add_u32 s53, s53, 1")
    a("s_cmp_lt_u32 s53, 100000"); a("s_cbranch_scc1 L_ffn_fpoll")
    a.label("L_ffn_fgo")
    fft_column(a, 1)
    stamp(a, 1, 6, vb=251)
    dstamp(a, 1, 13, mask=0)
    a.label("L_ffn_done")
    a("s_endpgm")
    return name, max(R * 8192 + 73728, 147456)

K3_WAVES = 9
K3_LDS_COL = 0
K3_LDS_TAB = 16384
K3_LDS = 16384 + 22 * 1024
def k3(a):
    name = "fin_kernel"
    kernel_begin(a, name)
    a("s_cmp_ge_u32 s2, 256"); a("s_cbranch_scc1 L_k3_done")
    load_ptrs(a)
    stamp(a, 2, 0, vb=151)
    dstamp(a, 2, 8, mn=True, vb=151)
    a("v_lshrrev_b32 v1, 6, v0")
    a("v_and_b32 v2, 63, v0")
    a("v_readfirstlane_b32 s48, v1")
    srd(a, 32, 26, PART_BYTES, WS_PART)
    srd(a, 36, 26, YT_BYTES, WS_YT)
    srd(a, 40, 4, S * D * 2)
    srd(a, 44, 22, S * D * 2)
    a("s_mul_i32 s49, s2, 9")
    a("s_add_u32 s49, s49, s48")
    a("v_lshlrev_b32 v3, 4, v2")
    a("s_lshl_b32 s53, s49, 10")
    for j in range(16):
        r = 32 + j * 4
        a("buffer_load_dwordx4 v[%d:%d], v3, s[32:35], s53 offen" % (r, r + 3))
        if j < 15: a("s_add_u32 s53, s53, %d" % (64 * 18 * 2048))
    a("s_mul_hi_u32 s51, s49, %d" % (-(-(1 << 32) // 36)))
    a("s_mul_i32 s52, s51, 36")
    a("s_sub_u32 s52, s49, s52")
    a("s_and_b32 s50, s52, 1")
    a("s_lshr_b32 s52, s52, 1")
    a("v_and_b32 v4, 31, v2")
    a("v_lshrrev_b32 v5, 5, v2")
    a("s_lshl_b32 s55, s51, 5")
    a("v_add_u32 v12, s55, v4")
    a("s_movk_i32 s56, 1152")
    a("v_mul_lo_u32 v7, v12, s56")
    a("s_lshl_b32 s57, s52, 6")
    a("s_lshl_b32 s58, s50, 5")
    a("s_add_u32 s57, s57, s58")
    a("v_add_u32 v7, s57, v7")
    a("v_lshl_add_u32 v8, v5, 3, v7")
    for g in range(2):
        a("buffer_load_dwordx2 v[%d:%d], v8, s[40:43], 0 offen offset:%d" % (100 + 2 * g, 101 + 2 * g, g * 16))
    a("v_lshl_add_u32 v9, v5, 4, v7")
    a("s_lshl_b32 s59, s52, 5")
    a("s_lshl_b32 s58, s50, 4")
    a("s_add_u32 s59, s59, s58")
    a("s_cmp_le_u32 s52, 8"); a("s_cbranch_scc0 L_k3_mir")
    a("v_lshlrev_b32 v6, 15, v5")
    a("v_lshl_add_u32 v6, v12, 2, v6")
    a("s_lshl_b32 s54, s59, 13")
    a("s_movk_i32 s58, 8192")
    a("s_branch L_k3_yad")
    a.label("L_k3_mir")
    a("v_sub_u32 v6, 2048, v12")
    a("v_and_b32 v6, 2047, v6")
    a("v_lshlrev_b32 v6, 2, v6")
    a("v_xor_b32 v13, 1, v5")
    a("v_lshl_add_u32 v6, v13, 15, v6")
    a("s_sub_u32 s54, 572, s59")
    a("s_lshl_b32 s54, s54, 13")
    a("s_mov_b32 s58, %d" % (-8192 & 0xffffffff))
    a.label("L_k3_yad")
    for r in range(8):
        off = 8 * (r >> 2) + (r & 3)
        a("s_mul_i32 s55, s58, %d" % off)
        a("s_add_u32 s55, s55, s54")
        a("buffer_load_dword v%d, v6, s[36:39], s55 offen" % (104 + r))
    n = 16 + 2 + 8
    for j in range(16):
        a("s_waitcnt vmcnt(%d)" % (n - (j + 1)))
        for d in range(4):
            src = 32 + j * 4 + d
            e = 2 * d
            if j == 0:
                a("v_lshlrev_b32 v%d, 16, v%d" % (16 + e, src))
                a("v_and_b32 v%d, 0xffff0000, v%d" % (17 + e, src))
            else:
                a("v_lshlrev_b32 v10, 16, v%d" % src)
                a("v_and_b32 v11, 0xffff0000, v%d" % src)
                a("v_add_f32 v%d, v%d, v10" % (16 + e, 16 + e))
                a("v_add_f32 v%d, v%d, v11" % (17 + e, 17 + e))
    a("s_waitcnt vmcnt(0)")
    for g in range(2):
        for h in range(2):
            src = 100 + 2 * g + h
            e = 4 * g + 2 * h
            a("v_lshlrev_b32 v10, 16, v%d" % src)
            a("v_and_b32 v11, 0xffff0000, v%d" % src)
            a("v_add_f32 v%d, v%d, v10" % (16 + e, 16 + e))
            a("v_add_f32 v%d, v%d, v11" % (17 + e, 17 + e))
    stamp(a, 2, 1, vb=151, tid=0)
    dstamp(a, 2, 9, vb=151, tid=0)
    stamp(a, 2, 2, vb=151, tid=0)
    dstamp(a, 2, 10, vb=151, tid=0)
    a("s_waitcnt vmcnt(0)")
    for r in range(8):
        a("v_add_f32 v%d, v%d, v%d" % (16 + r, 16 + r, 104 + r))
    for d in range(4):
        a("v_cvt_pk_bf16_f32 v%d, v%d, v%d" % (32 + d, 16 + 2 * d, 17 + 2 * d))
    a("s_nop 1")
    a("v_permlane32_swap_b32 v32, v34")
    a("v_permlane32_swap_b32 v33, v35")
    a("s_nop 1")
    a("buffer_store_dwordx4 v[32:35], v9, s[44:47], 0 offen")
    stamp(a, 2, 3, vb=151, tid=0)
    dstamp(a, 2, 11, vb=151, tid=0)
    a.label("L_k3_done")
    a("s_endpgm")
    return name

def main():
    out = sys.argv[1]
    for o in sys.argv[2:]:
        if o == "stamps": OPT["stamps"] = 1
        elif o.startswith("abl="): OPT["abl"].update(o[4:].split(","))
        elif "=" in o:
            k, v = o.split("=", 1)
            OPT[k] = int(v) if v.lstrip("-").isdigit() else v.replace("+", " ")
    lds = 163840
    a = Asm()
    a.raw(HEADER.rstrip("\n"))
    a.raw("; @launch kernel=prep_kernel grid=(%d,1,1) block=(256,1,1) lds=0" % (N_LN + N_DF + N_TAB))
    a.raw("; @launch kernel=ffn_kernel grid=(256,1,1) block=(256,1,1) lds=%d" % lds)
    a.raw("; @launch kernel=fin_kernel grid=(256,1,1) block=(%d,1,1) lds=0" % (64 * K3_WAVES))
    a.raw('.amdgcn_target "amdgcn-amd-amdhsa--gfx950"')
    k1(a); k2(a); k3(a)
    a.label("L_code_end")
    big = OPT["stamps"] or OPT.get("dbgst")
    kernel_desc(a, "prep_kernel", 256 if big else 128, 96, 256 if big else 128)
    kernel_desc(a, "ffn_kernel", 512, 102, 256)
    kernel_desc(a, "fin_kernel", 160, 96, 160)
    open(out, "w").write(a.text())
if __name__ == "__main__":
    main()
```

```python
import sys, math
from asmgen import *
from sched import *

S, D, F = 2048, 576, 4608
OPT = {"B": 2, "R": 9, "abl": set(), "gcap": 3, "stamps": 0, "pf": 2, "stflags": "sc1", "xahead": 6, "pert": 0.0}
WS_XNF   = 0
WS_CF    = 4 << 20
CF_BYTES = 289 * 8192
WS_DF    = 8 << 20
DF_BYTES = 18 * 36864
WS_TAB   = 9 << 20
TAB_BYTES = 38 * 1024
WS_YT    = 12 << 20
YT_BYTES = 289 * 8192
WS_FLAG  = 10 << 20
FLAG_BYTES = 289 * 4
WS_PART  = 24 << 20
PART_BYTES = 16 * S * D * 2
WS_STAMP = 128 << 20
N_LN, N_DF, N_TAB = 128, 162, 10
PF0 = 304
N_K1 = PF0 + 256
N_FFT, N_RED = 73, 288

def srd(a, sd, sp, nbytes, off=0):
    if off:
        a("s_add_u32 s%d, s%d, %d" % (sd, sp, off))
        a("s_addc_u32 s%d, s%d, 0" % (sd + 1, sp + 1))
    else:
        a("s_mov_b32 s%d, s%d" % (sd, sp))
        a("s_mov_b32 s%d, s%d" % (sd + 1, sp + 1))
    a("s_mov_b32 s%d, %d" % (sd + 2, nbytes))
    a("s_mov_b32 s%d, 0x00020000" % (sd + 3))

def load_ptrs(a):
    a("s_load_dwordx2 s[4:5], s[0:1], 0")
    a("s_load_dwordx4 s[8:11], s[0:1], 16")
    a("s_load_dwordx2 s[12:13], s[0:1], 32")
    a("s_load_dwordx8 s[16:23], s[0:1], 48")
    a("s_load_dwordx4 s[24:27], s[0:1], 80")
    a("s_waitcnt lgkmcnt(0)")

def stamp(a, kidx, slot, sreg=88, vb=251, tid=0):
    if not OPT["stamps"]: return
    lab = a.newlabel("L_st")
    a("s_memrealtime s[%d:%d]" % (sreg, sreg + 1))
    a("s_memtime s[%d:%d]" % (sreg + 6, sreg + 7))
    a("s_waitcnt lgkmcnt(0)")
    a("v_cmp_eq_u32 vcc, %d, v0" % tid if tid <= 64 else "v_mov_b32 v%d, %d\n    v_cmp_eq_u32 vcc, v%d, v0" % (vb, tid, vb))
    a("s_and_saveexec_b64 s[%d:%d], vcc" % (sreg + 2, sreg + 3))
    a("s_cbranch_execz %s" % lab)
    a("s_lshl_b32 s%d, s2, 7" % (sreg + 4))
    a("s_add_u32 s%d, s%d, %d" % (sreg + 4, sreg + 4, WS_STAMP + kidx * 65536 + slot * 8))
    a("s_add_u32 s%d, s26, s%d" % (sreg + 4, sreg + 4))
    a("s_addc_u32 s%d, s27, 0" % (sreg + 5))
    a("v_mov_b32 v%d, s%d" % (vb + 1, sreg)); a("v_mov_b32 v%d, s%d" % (vb + 2, sreg + 1))
    a("v_mov_b32 v%d, 0" % vb)
    a("global_store_dwordx2 v%d, v[%d:%d], s[%d:%d]" % (vb, vb + 1, vb + 2, sreg + 4, sreg + 5))
    a("s_nop 1")
    a("v_mov_b32 v%d, s%d" % (vb + 1, sreg + 6)); a("v_mov_b32 v%d, s%d" % (vb + 2, sreg + 7))
    a("s_nop 1")
    a("global_store_dwordx2 v%d, v[%d:%d], s[%d:%d] offset:64" % (vb, vb + 1, vb + 2, sreg + 4, sreg + 5))
    a.label(lab)
    a("s_mov_b64 exec, s[%d:%d]" % (sreg + 2, sreg + 3))

def dstamp(a, kl, word, mn=False, sreg=88, vb=251, tid=0, mask=31):
    if not OPT.get("dbgst"): return
    lab = a.newlabel("L_ds")
    a("s_and_b32 s%d, s2, %d" % (sreg, mask))
    a("s_cmp_lg_u32 s%d, 0" % sreg)
    a("s_cbranch_scc1 %s" % lab)
    a("s_memrealtime s[%d:%d]" % (sreg, sreg + 1))
    a("s_waitcnt lgkmcnt(0)")
    if mn: a("s_not_b32 s%d, s%d" % (sreg, sreg))
    if tid <= 64: a("v_cmp_eq_u32 vcc, %d, v0" % tid)
    else:
        a("v_mov_b32 v%d, %d" % (vb, tid)); a("v_cmp_eq_u32 vcc, v%d, v0" % vb)
    a("s_and_saveexec_b64 s[%d:%d], vcc" % (sreg + 2, sreg + 3))
    a("s_cbranch_execz %s_r" % lab)
    a("s_add_u32 s%d, s24, %d" % (sreg + 4, (2 - kl) * 512))
    a("s_addc_u32 s%d, s25, 0" % (sreg + 5))
    a("v_mov_b32 v%d, %d" % (vb, word * 4))
    a("v_mov_b32 v%d, s%d" % (vb + 1, sreg))
    a("global_atomic_umax v%d, v%d, s[%d:%d]" % (vb, vb + 1, sreg + 4, sreg + 5))
    a.label("%s_r" % lab)
    a("s_mov_b64 exec, s[%d:%d]" % (sreg + 2, sreg + 3))
    a.label(lab)

def prefetch_w(a, sM, sJ, sW, vl, sector, sa, sb, srdg, srdu, srdd, vdst, vt):
    t0, t1, t2, t3 = vt, vt + 1, vt + 2, vt + 3
    a("v_mul_u32_u24 v%d, 52, v%d" % (t0, vl))
    a("v_lshrrev_b32 v%d, 8, v%d" % (t0, t0))
    a("v_mul_u32_u24 v%d, 5, v%d" % (t1, t0))
    a("v_sub_u32 v%d, v%d, v%d" % (t1, vl, t1))
    a("s_lshl_b32 s%d, s%d, 2" % (sa, sM))
    a("s_add_u32 s%d, s%d, s%d" % (sa, sa, sW))
    a("s_mul_i32 s%d, s%d, 9" % (sa, sa))
    a("v_add_u32 v%d, s%d, v%d" % (t2, sa, t0))
    a("s_movk_i32 s%d, 9216" % sb)
    a("v_mul_lo_u32 v%d, v%d, s%d" % (t2, t2, sb))
    a("v_lshl_add_u32 v%d, v%d, 7, v%d" % (t2, t1, t2))
    a("v_cmp_gt_u32 vcc, 9, v%d" % t0)
    a("v_mov_b32 v%d, 0x7ff00000" % t3)
    a("s_nop 0")
    a("v_cndmask_b32 v%d, v%d, v%d, vcc" % (t2, t3, t2))
    a("s_mul_i32 s%d, s%d, 288" % (sa, sJ))
    a("s_and_b32 s%d, s%d, 1" % (sb, sJ))
    a("s_lshl_b32 s%d, s%d, 5" % (sb, sb))
    a("s_sub_u32 s%d, s%d, s%d" % (sa, sa, sb))
    a("s_lshl_b32 s%d, s%d, 1" % (sa, sa))
    n = 0
    for srd_ in (srdg, srdu):
        a("buffer_load_dword v%d, v%d, s[%d:%d], s%d offen" % (vdst, t2, srd_, srd_ + 3, sa)); n += 1
        if sector: a("buffer_load_dword v%d, v%d, s[%d:%d], s%d offen offset:64" % (vdst, t2, srd_, srd_ + 3, sa)); n += 1
    a("v_mul_u32_u24 v%d, 57, v0" % t0)
    a("v_lshrrev_b32 v%d, 9, v%d" % (t0, t0))
    a("v_mul_u32_u24 v%d, 9, v%d" % (t1, t0))
    a("v_sub_u32 v%d, v0, v%d" % (t1, t1))
    a("s_mul_i32 s%d, s%d, 288" % (sa, sJ))
    a("s_mul_i32 s%d, s%d, 18" % (sb, sM))
    a("s_add_u32 s%d, s%d, s%d" % (sa, sa, sb))
    a("v_add_u32 v%d, s%d, v%d" % (t2, sa, t0))
    a("s_movk_i32 s%d, 1152" % sb)
    a("v_mul_lo_u32 v%d, v%d, s%d" % (t2, t2, sb))
    a("v_lshl_add_u32 v%d, v%d, 7, v%d" % (t2, t1, t2))
    a("v_cmp_gt_u32 vcc, 18, v%d" % t0)
    a("s_nop 1")
    a("v_cndmask_b32 v%d, v%d, v%d, vcc" % (t2, t3, t2))
    a("buffer_load_dword v%d, v%d, s[%d:%d], 0 offen" % (vdst, t2, srdd, srdd + 3)); n += 1
    if sector: a("buffer_load_dword v%d, v%d, s[%d:%d], 0 offen offset:64" % (vdst, t2, srdd, srdd + 3)); n += 1
    return n

def mj_from_wg(a, sM, sJ, t0, t1):
    a("s_and_b32 s%d, s2, 7" % t0)
    a("s_lshr_b32 s%d, s2, 3" % t1)
    a("s_lshr_b32 s%d, s%d, 1" % (sM, t1))
    a("s_and_b32 s%d, s%d, 1" % (t1, t1))
    a("s_lshl_b32 s%d, s%d, 1" % (sJ, t0))
    a("s_add_u32 s%d, s%d, s%d" % (sJ, sJ, t1))

def k1(a):
    name = "prep_kernel"
    kernel_begin(a, name)
    NT = N_LN + N_DF + N_TAB
    a("s_cmp_ge_u32 s2, %d" % NT); a("s_cbranch_scc1 L_k1_done")
    load_ptrs(a)
    stamp(a, 0, 0)
    dstamp(a, 0, 0, mn=True)
    a("v_lshrrev_b32 v20, 6, v0")
    a("v_and_b32 v21, 63, v0")
    a("v_readfirstlane_b32 s48, v20")
    def do_prefetch(): pass
    def code_prefetch():
        lab = a.newlabel("L_nocpf")
        a("s_sub_u32 s60, s2, %d" % N_LN)
        a("s_lshr_b32 s60, s60, 3")
        a("s_cmp_ge_u32 s60, 4"); a("s_cbranch_scc1 %s" % lab)
        a("s_getpc_b64 s[56:57]")
        a.label("L_k1_pc")
        a("s_add_u32 s56, s56, ffn_kernel-L_k1_pc")
        a("s_addc_u32 s57, s57, 0")
        a("s_lshl_b32 s60, s60, 14")
        a("v_lshlrev_b32 v30, 6, v0")
        a("v_add_u32 v30, s60, v30")
        a("v_cmp_gt_u32 vcc, L_code_end-ffn_kernel, v30")
        a("s_and_saveexec_b64 s[58:59], vcc")
        a("s_cbranch_execz %s_r" % lab)
        a("global_load_dword v31, v30, s[56:57]")
        a.label("%s_r" % lab)
        a("s_mov_b64 exec, s[58:59]")
        a.label(lab)
    def w_prefetch():
        srd(a, 68, 16, D * F * 2); srd(a, 72, 18, D * F * 2); srd(a, 76, 20, D * F * 2)
        a("s_and_b32 s60, s2, 7"); a("s_lshr_b32 s61, s2, 3")
        a("v_mul_u32_u24 v90, 57, v21"); a("v_lshrrev_b32 v90, 9, v90")
        a("v_mul_u32_u24 v91, 9, v90"); a("v_sub_u32 v91, v21, v91")
        a("s_lshl_b32 s62, s61, 2"); a("s_add_u32 s62, s62, s48"); a("s_mul_i32 s62, s62, 9")
        a("v_add_u32 v91, s62, v91")
        a("s_movk_i32 s63, 9216")
        a("v_mul_lo_u32 v91, v91, s63")
        a("v_and_b32 v92, 1, v90")
        a("v_lshrrev_b32 v93, 1, v90")
        a("s_mul_i32 s63, s60, 576")
        a("v_mul_u32_u24 v94, 320, v93")
        a("v_add_u32 v94, s63, v94")
        a("v_lshl_add_u32 v95, v94, 1, v91")
        a("v_mul_u32_u24 v96, 640, v93")
        a("v_sub_u32 v96, 512, v96")
        a("v_add_u32 v96, v95, v96")
        a("v_cmp_gt_u32 vcc, 2, v93")
        a("v_mov_b32 v97, 0x7ff00000")
        a("v_cmp_eq_u32 s[64:65], 0, v92")
        a("s_nop 1")
        a("v_cndmask_b32 v95, v97, v95, vcc")
        a("v_cndmask_b32 v96, v97, v96, vcc")
        a("v_cndmask_b32 v98, v97, v95, s[64:65]")
        a("v_cndmask_b32 v99, v95, v97, s[64:65]")
        a("v_cndmask_b32 v100, v97, v96, s[64:65]")
        a("v_cndmask_b32 v101, v96, v97, s[64:65]")
        for stg in range(4):
            a("buffer_load_dword v102, v98, s[68:71], 0 offen offset:%d" % (128 * stg))
            a("buffer_load_dword v102, v99, s[72:75], 0 offen offset:%d" % (128 * stg))
        a("buffer_load_dword v102, v100, s[68:71], 0 offen")
        a("buffer_load_dword v102, v101, s[72:75], 0 offen")
        a("v_mul_u32_u24 v90, 57, v0"); a("v_lshrrev_b32 v90, 9, v90")
        a("v_mul_u32_u24 v91, 9, v90"); a("v_sub_u32 v91, v0, v91")
        a("s_mul_i32 s62, s61, 18"); a("s_mul_i32 s63, s60, 576"); a("s_add_u32 s62, s62, s63")
        a("v_add_u32 v92, s62, v90")
        a("s_movk_i32 s63, 1152")
        a("v_mul_lo_u32 v92, v92, s63")
        a("v_lshl_add_u32 v92, v91, 7, v92")
        a("v_cmp_gt_u32 vcc, 18, v90")
        a("s_nop 1")
        a("v_cndmask_b32 v92, v97, v92, vcc")
        a("buffer_load_dword v102, v92, s[76:79], 0 offen")
        a("s_mov_b32 s63, %d" % (288 * 1152))
        a("buffer_load_dword v102, v92, s[76:79], s63 offen")
    a("s_cmp_ge_u32 s2, %d" % (N_LN + N_DF + N_TAB)); a("s_cbranch_scc1 L_k1_done")
    a("s_cmp_ge_u32 s2, %d" % N_LN); a("s_cbranch_scc1 L_k1_df")
    srd(a, 32, 4, S * D * 2)
    srd(a, 36, 26, S * D * 2, WS_XNF)
    srd(a, 40, 26, CF_BYTES, WS_CF)
    a("v_lshrrev_b32 v1, 4, v0")
    a("v_and_b32 v2, 15, v0")
    a("s_lshl_b32 s3, s2, 4")
    a("v_add_u32 v1, s3, v1")
    a("s_movk_i32 s28, 1152")
    a("v_mul_lo_u32 v3, v1, s28")
    a("v_lshl_add_u32 v3, v2, 3, v3")
    for i in range(9):
        a("buffer_load_dwordx2 v[%d:%d], v3, s[32:35], 0 offen offset:%d" % (8 + 2 * i, 9 + 2 * i, i * 128))
    do_prefetch()
    a("v_lshrrev_b32 v4, 5, v1")
    a("s_mov_b32 s29, 36864")
    a("v_mul_lo_u32 v4, v4, s29")
    a("v_lshrrev_b32 v5, 2, v2")
    a("v_lshl_add_u32 v4, v5, 10, v4")
    a("v_bfe_u32 v5, v2, 1, 1")
    a("v_lshl_add_u32 v4, v5, 9, v4")
    a("v_and_b32 v5, 31, v1")
    a("v_lshl_add_u32 v4, v5, 4, v4")
    a("v_and_b32 v5, 1, v2")
    a("v_lshl_add_u32 v4, v5, 3, v4")
    npf = 0
    stamp(a, 4, 0)
    a("s_waitcnt vmcnt(%d)" % npf)
    stamp(a, 4, 1)
    if OPT["pf"]: w_prefetch()
    for i in range(18):
        a("v_lshlrev_b32 v%d, 16, v%d" % (32 + 2 * i, 8 + i))
        a("v_and_b32 v%d, 0xffff0000, v%d" % (33 + 2 * i, 8 + i))
    a("v_add_f32 v70, v32, v33")
    a("v_add_f32 v71, v34, v35")
    for i in range(4, 36, 2):
        a("v_add_f32 v70, v70, v%d" % (32 + i))
        a("v_add_f32 v71, v71, v%d" % (33 + i))
    a("v_add_f32 v70, v70, v71")
    def row_sum(r):
        for sh in (8, 4, 2, 1):
            a("s_nop 1")
            a("v_add_f32_dpp v%d, v%d, v%d row_ror:%d row_mask:0xf bank_mask:0xf" % (r, r, r, sh))
    row_sum(70)
    a("v_mul_f32 v70, 0x%08x, v70" % f2u(1.0 / 576))
    a("v_mov_b32 v72, 0"); a("v_mov_b32 v73, 0")
    for i in range(0, 36, 2):
        a("v_sub_f32 v74, v%d, v70" % (32 + i))
        a("v_sub_f32 v75, v%d, v70" % (33 + i))
        a("v_fmac_f32 v72, v74, v74")
        a("v_fmac_f32 v73, v75, v75")
    a("v_add_f32 v72, v72, v73")
    row_sum(72)
    a("v_mul_f32 v72, 0x%08x, v72" % f2u(1.0 / 576))
    a("v_cvt_pk_bf16_f32 v76, v70, v72")
    a("v_lshlrev_b32 v70, 16, v76")
    a("v_and_b32 v72, 0xffff0000, v76")
    a("v_add_f32 v72, 0x%08x, v72" % f2u(1e-5))
    a("v_cvt_pk_bf16_f32 v76, v72, v72")
    a("v_lshlrev_b32 v72, 16, v76")
    a("v_sqrt_f32 v72, v72")
    a("s_nop 0")
    a("v_cvt_pk_bf16_f32 v76, v72, v72")
    a("v_lshlrev_b32 v72, 16, v76")
    a("v_rcp_f32 v72, v72")
    a("v_mov_b32 v77, 0")
    for i in range(18):
        x0, x1 = 32 + 2 * i, 33 + 2 * i
        a("v_sub_f32 v%d, v%d, v70" % (x0, x0))
        a("v_sub_f32 v%d, v%d, v70" % (x1, x1))
        a("v_cvt_pk_bf16_f32 v76, v%d, v%d" % (x0, x1))
        a("v_lshlrev_b32 v%d, 16, v76" % x0)
        a("v_and_b32 v%d, 0xffff0000, v76" % x1)
        a("v_mul_f32 v%d, v%d, v72" % (x0, x0))
        a("v_mul_f32 v%d, v%d, v72" % (x1, x1))
        a("v_cvt_pk_bf16_f32 v%d, v%d, v%d" % (8 + i, x0, x1))
        a("v_lshlrev_b32 v%d, 16, v%d" % (x0, 8 + i))
        a("v_and_b32 v%d, 0xffff0000, v%d" % (x1, 8 + i))
        a("v_sub_f32 v%d, v%d, v%d" % (x0, x0, x1))
        a("v_add_f32 v77, v77, v%d" % x0)
    stamp(a, 4, 2)
    for i in range(9):
        a("s_mov_b32 s30, %d" % (i * 4096))
        a("buffer_store_dwordx2 v[%d:%d], v4, s[36:39], s30 offen %s" % (8 + 2 * i, 9 + 2 * i, OPT.get("k1st", "")))
    row_sum(77)
    a("v_cvt_pk_bf16_f32 v77, v77, v77")
    a("v_mov_b32 v78, 0")
    a("v_lshlrev_b32 v79, 1, v1")
    a("v_add_u32 v79, %d, v79" % (288 * 8192))
    a("v_cmp_eq_u32 vcc, 0, v2")
    a("v_mov_b32 v80, 0x7ff00000")
    a("s_nop 0")
    a("v_cndmask_b32 v79, v80, v79, vcc")
    a("buffer_store_short v77, v79, s[40:43], 0 offen")
    a("s_movk_i32 s30, 4096")
    a("buffer_store_short v78, v79, s[40:43], s30 offen")
    stamp(a, 0, 1)
    dstamp(a, 0, 1)
    stamp(a, 4, 3)
    a("s_branch L_k1_done")
    a.label("L_k1_df")
    a("s_cmp_ge_u32 s2, %d" % (N_LN + N_DF)); a("s_cbranch_scc1 L_k1_tab")
    a("s_sub_u32 s28, s2, %d" % N_LN)
    a("s_lshl_b32 s28, s28, 2")
    a("s_add_u32 s28, s28, s48")
    a("s_mul_hi_u32 s29, s28, %d" % (-(-(1 << 32) // 36)))
    a("s_mul_i32 s30, s29, 36")
    a("s_sub_u32 s30, s28, s30")
    a("s_cmp_ge_u32 s29, 9")
    a("s_cselect_b32 s32, s12, s10")
    a("s_cselect_b32 s33, s13, s11")
    a("s_cselect_b32 s31, 9, 0")
    a("s_mov_b32 s34, %d" % (D * D * 2)); a("s_mov_b32 s35, 0x00020000")
    a("s_sub_u32 s29, s29, s31")
    srd(a, 36, 26, DF_BYTES, WS_DF)
    a("v_and_b32 v1, 31, v21")
    a("s_lshl_b32 s29, s29, 5")
    a("v_add_u32 v1, s29, v1")
    a("s_movk_i32 s31, 1152")
    a("v_mul_lo_u32 v1, v1, s31")
    a("v_lshrrev_b32 v2, 5, v21")
    a("v_lshl_add_u32 v1, v2, 4, v1")
    a("s_lshl_b32 s30, s30, 5")
    a("buffer_load_dwordx4 v[8:11], v1, s[32:35], s30 offen")
    if OPT.get("cpf", 1): code_prefetch()
    a("v_lshlrev_b32 v3, 4, v21")
    a("s_lshl_b32 s28, s28, 10")
    a("s_waitcnt vmcnt(0)")
    a("buffer_store_dwordx4 v[8:11], v3, s[36:39], s28 offen %s" % OPT.get("k1st", ""))
    stamp(a, 0, 2)
    a("s_branch L_k1_done")
    a.label("L_k1_tab")
    a("s_sub_u32 s28, s2, %d" % (N_LN + N_DF))
    a("s_lshl_b32 s28, s28, 2")
    a("s_add_u32 s28, s28, s48")
    a("s_cmp_eq_u32 s28, 38"); a("s_cbranch_scc0 L_k1_tab2")
    srd(a, 36, 26, 2048, WS_FLAG)
    a("v_lshlrev_b32 v3, 4, v21")
    a("v_mov_b32 v8, 0"); a("v_mov_b32 v9, 0"); a("v_mov_b32 v10, 0"); a("v_mov_b32 v11, 0")
    a("buffer_store_dwordx4 v[8:11], v3, s[36:39], 0 offen")
    a("buffer_store_dwordx4 v[8:11], v3, s[36:39], 0 offen offset:1024")
    a("s_branch L_k1_done")
    a.label("L_k1_tab2")
    a("s_cmp_ge_u32 s28, 38"); a("s_cbranch_scc1 L_k1_done")
    srd(a, 36, 26, TAB_BYTES, WS_TAB)
    a("v_and_b32 v1, 31, v21")
    a("v_lshrrev_b32 v2, 5, v21")
    a("v_lshlrev_b32 v3, 4, v21")
    a("s_lshl_b32 s29, s28, 10")
    a("s_cmp_ge_u32 s28, 22"); a("s_cbranch_scc1 L_k1_t3")
    a("s_cmp_ge_u32 s28, 6"); a("s_cbranch_scc1 L_k1_t2")
    a("s_and_b32 s30, s28, 1")
    a("s_lshl_b32 s30, s30, 4")
    a("v_lshl_add_u32 v4, v2, 3, s30")
    for j in range(8):
        a("v_add_u32 v5, %d, v4" % j)
        a("v_mul_u32_u24 v5, v5, v1")
        a("v_and_b32 v5, 31, v5")
        a("v_cvt_f32_u32 v5, v5")
        a("v_mul_f32 v5, 0x%08x, v5" % f2u(1.0 / 32))
        a("v_cos_f32 v%d, v5" % (8 + j))
        a("v_sin_f32 v%d, v5" % (16 + j))
    a("s_nop 0")
    a("s_cmp_lt_u32 s28, 2"); a("s_cbranch_scc1 L_k1_t1p")
    for j in range(8): a("v_mov_b32 v%d, v%d" % (8 + j, 16 + j))
    a("s_cmp_lt_u32 s28, 4"); a("s_cbranch_scc1 L_k1_t1p")
    for j in range(8): a("v_sub_f32 v%d, 0, v%d" % (8 + j, 16 + j))
    a.label("L_k1_t1p")
    for d in range(4): a("v_cvt_pk_bf16_f32 v%d, v%d, v%d" % (24 + d, 8 + 2 * d, 9 + 2 * d))
    a("buffer_store_dwordx4 v[24:27], v3, s[36:39], s29 offen")
    a("s_branch L_k1_done")
    a.label("L_k1_t2")
    a("s_sub_u32 s30, s28, 6")
    a("s_lshr_b32 s31, s30, 3")
    a("s_and_b32 s30, s30, 7")
    a("s_lshl_b32 s31, s31, 5")
    a("s_lshr_b32 s40, s30, 1"); a("s_lshl_b32 s40, s40, 3")
    a("s_add_u32 s31, s31, s40")
    a("s_and_b32 s40, s30, 1"); a("s_lshl_b32 s40, s40, 1")
    a("s_add_u32 s31, s31, s40")
    a("v_lshl_add_u32 v4, v2, 2, s31")
    for i in range(2):
        a("v_add_u32 v5, %d, v4" % i)
        a("v_mul_u32_u24 v5, v5, v1")
        a("v_cvt_f32_u32 v5, v5")
        a("v_mul_f32 v5, 0x%08x, v5" % f2u(1.0 / 2048))
        a("v_cos_f32 v%d, v5" % (24 + 2 * i))
        a("v_sin_f32 v%d, v5" % (25 + 2 * i))
    a("s_nop 1")
    a("buffer_store_dwordx4 v[24:27], v3, s[36:39], s29 offen")
    a("s_branch L_k1_done")
    a.label("L_k1_t3")
    a("s_sub_u32 s30, s28, 22")
    a("s_lshr_b32 s31, s30, 3")
    a("s_bfe_u32 s40, s30, 0x10002")
    a("s_and_b32 s30, s30, 3")
    a("s_lshl_b32 s40, s40, 5")
    a("v_add_u32 v1, s40, v1")
    a("s_lshl_b32 s30, s30, 4")
    a("v_lshl_add_u32 v4, v2, 2, s30")
    for j in range(8):
        a("v_add_u32 v5, %d, v4" % (j if j < 4 else 8 + j - 4))
        a("v_mul_u32_u24 v5, v5, v1")
        a("v_and_b32 v5, 63, v5")
        a("v_cvt_f32_u32 v5, v5")
        a("v_mul_f32 v5, 0x%08x, v5" % f2u(1.0 / 64))
        a("v_cos_f32 v%d, v5" % (8 + j))
        a("v_sin_f32 v%d, v5" % (16 + j))
    a("s_nop 0")
    a("s_cmp_eq_u32 s31, 0"); a("s_cbranch_scc1 L_k1_t3p")
    for j in range(8): a("v_mov_b32 v%d, v%d" % (8 + j, 16 + j))
    a.label("L_k1_t3p")
    for d in range(4): a("v_cvt_pk_bf16_f32 v%d, v%d, v%d" % (24 + d, 8 + 2 * d, 9 + 2 * d))
    a("buffer_store_dwordx4 v[24:27], v3, s[36:39], s29 offen")
    a.label("L_k1_done")
    a("s_endpgm")
    return name


def fft_column(a, kidx):
    srd(a, 32, 26, CF_BYTES, WS_CF)
    srd(a, 36, 26, TAB_BYTES, WS_TAB)
    srd(a, 40, 26, YT_BYTES, WS_YT)
    a("v_lshrrev_b32 v3, 3, v2")
    a("v_lshlrev_b32 v3, 7, v3")
    a("v_bfe_u32 v4, v2, 4, 1")
    a("v_lshlrev_b32 v4, 1, v4")
    a("v_bfe_u32 v5, v2, 1, 2")
    a("v_xor_b32 v5, v5, v4")
    a("v_lshl_add_u32 v3, v5, 5, v3")
    a("v_and_b32 v5, 1, v2")
    a("v_lshl_add_u32 v3, v5, 4, v3")
    a("s_lshl_b32 s50, s49, 13")
    for i in range(8):
        a("s_add_u32 s52, s50, %d" % (i * 1024))
        a("s_add_u32 m0, s51, %d" % (i * 1024))
        a("s_nop 0")
        a("buffer_load_dwordx4 v3, s[32:35], s52 offen sc1 lds")
    a("v_lshlrev_b32 v6, 4, v2")
    for i in range(6):
        a("s_movk_i32 s52, %d" % (i * 1024))
        a("buffer_load_dwordx4 v[%d:%d], v6, s[36:39], s52 offen" % (64 + 4 * i, 67 + 4 * i))
    for i in range(16):
        a("s_mov_b32 s52, %d" % ((22 + i) * 1024))
        a("buffer_load_dwordx4 v[%d:%d], v6, s[36:39], s52 offen" % (136 + 4 * i, 139 + 4 * i))
    a("v_bfe_u32 v8, v2, 4, 1")
    a("v_bfe_u32 v9, v2, 5, 1")
    a("v_bfe_u32 v10, v2, 2, 2")
    a("v_and_b32 v11, 3, v2")
    a("v_lshl_add_u32 v12, v9, 3, v10")
    a("v_lshlrev_b32 v12, 7, v12")
    a("v_lshl_add_u32 v12, v11, 3, v12")
    a("v_add_u32 v12, s51, v12")
    a("v_and_b32 v13, 2, v10")
    a("v_xor_b32 v14, v8, v13")
    a("v_lshl_add_u32 v16, v14, 5, v12")
    a("v_xor_b32 v14, 2, v14")
    a("v_lshl_add_u32 v17, v14, 5, v12")
    a("v_and_b32 v18, 31, v2")
    a("v_cvt_f32_u32 v18, v18")
    a("v_mul_f32 v18, 0x%08x, v18" % f2u(1.0 / 2048))
    a("v_cvt_f32_u32 v19, v9")
    a("v_mul_f32 v19, 4.0, v19")
    a("v_mul_f32 v19, v19, v18")
    a("s_waitcnt vmcnt(22)")
    C0, C1, S0, S1, N0, N1 = 64, 68, 72, 76, 80, 84
    for rt in range(2):
        for kk in range(4):
            p, h = kk >> 1, kk & 1
            for q in range(2):
                r = 200 + 16 * rt + 4 * kk + 2 * q
                a("ds_read_b64_tr_b16 v[%d:%d], v%d offset:%d" % (r, r + 1, 16 + rt, p * 4096 + h * 2048 + q * 512))
    a("s_waitcnt vmcnt(16) lgkmcnt(0)")
    br = [C0, C1, S0, S1]; bi = [N0, N1, C0, C1]
    UR = [88, 232]
    UI = [104, 120]
    for rt in range(2):
        ur, ui = UR[rt], UI[rt]
        for kk in range(4):
            ar = 200 + 16 * rt + 4 * kk
            a("v_mfma_f32_32x32x16_bf16 v[%d:%d], v[%d:%d], v[%d:%d], %s" % (ur, ur + 15, ar, ar + 3, br[kk], br[kk] + 3, "0" if kk == 0 else "v[%d:%d]" % (ur, ur + 15)))
            a("v_mfma_f32_32x32x16_bf16 v[%d:%d], v[%d:%d], v[%d:%d], %s" % (ui, ui + 15, ar, ar + 3, bi[kk], bi[kk] + 3, "0" if kk == 0 else "v[%d:%d]" % (ui, ui + 15)))
    for rt in range(2):
        ur, ui = UR[rt], UI[rt]
        if rt == 1: a("s_nop 7")
        for r in range(0, 16, 2):
            for i in range(2):
                rr = r + i
                s2c = 32 * rt + 8 * (rr >> 2) + (rr & 3)
                a("v_fmamk_f32 v%d, v18, 0x%08x, v19" % (52 + i, f2u(float(s2c))))
            a("v_cos_f32 v54, v52"); a("v_sin_f32 v56, v52")
            a("v_cos_f32 v55, v53"); a("v_sin_f32 v57, v53")
            for i in range(2):
                rr = r + i
                a("v_mul_f32 v%d, v%d, v%d" % (58 + i, ur + rr, 54 + i))
                a("v_mul_f32 v%d, v%d, v%d" % (62 + i, ui + rr, 54 + i))
            for i in range(2):
                rr = r + i
                a("v_fma_f32 v%d, v%d, v%d, v%d" % (58 + i, ui + rr, 56 + i, 58 + i))
                a("v_fma_f32 v%d, -v%d, v%d, v%d" % (62 + i, ur + rr, 56 + i, 62 + i))
            half, dd = r >> 3, (r >> 1) & 3
            base = 20 + 8 * (rt * 2 + half)
            a("v_cvt_pk_bf16_f32 v%d, v58, v59" % (base + dd))
            a("v_cvt_pk_bf16_f32 v%d, v62, v63" % (base + 4 + dd))
    a("s_waitcnt vmcnt(0)")
    a("s_nop 1")
    for part in range(2):
        for tt in range(2):
            y = 88 + 16 * tt
            for rh in range(4):
                ac = 136 + 4 * (part * 8 + tt * 4 + rh)
                vb = 20 + 8 * rh + 4 * part
                a("v_mfma_f32_32x32x16_bf16 v[%d:%d], v[%d:%d], v[%d:%d], %s" % (y, y + 15, ac, ac + 3, vb, vb + 3, "0" if (part == 0 and rh == 0) else "v[%d:%d]" % (y, y + 15)))
    a("v_and_b32 v4, 31, v2")
    a("v_lshlrev_b32 v4, 2, v4")
    a("v_lshrrev_b32 v5, 5, v2")
    a("v_lshl_add_u32 v4, v5, 9, v4")
    a("v_add_u32 v4, s51, v4")
    a("v_add_u32 v7, s51, v6")
    a("s_nop 15"); a("s_nop 3")
    for tt in range(2):
        for r in range(16):
            a("ds_write_b32 v4, v%d offset:%d" % (88 + 16 * tt + r, tt * 4096 + (8 * (r >> 2) + (r & 3)) * 128))
    a("s_waitcnt lgkmcnt(0)")
    for i in range(8):
        a("ds_read_b128 v[%d:%d], v7 offset:%d" % (136 + 4 * i, 139 + 4 * i, i * 1024))
    for i in range(8):
        a("s_waitcnt lgkmcnt(%d)" % (7 - i))
        a("s_add_u32 s52, s50, %d" % (i * 1024))
        a("buffer_store_dwordx4 v[%d:%d], v6, s[40:43], s52 offen %s" % (136 + 4 * i, 139 + 4 * i, OPT.get("ytst", "sc1")))

ACC = [16, 80]
XOV = 144
AF = 176
GT = 200
HP = 216
V_LANE16 = 1
V_DM0, V_DM1 = 2, 3
V_DH0, V_DH1 = 4, 5
V_TR = [6, 7, 8, 9]
V_TRH = [10, 11]
V_H = 12
V_HH = 13
V_C0 = 14
V_D2 = 224
V_TR2 = [225, 226, 227, 228]
V_HR = 229
V_CR, V_CG = 231, 254
V_CF = 230
V_LN, V_T1, V_T2 = 248, 249, 250
BR = 232
S_W = 32; S_X = 36; S_D = 40; S_P = 44
S_WAVE, S_TM, S_FH, S_M, S_J = 48, 49, 50, 51, 52
S_FB, S_FHB = 53, 54
S_LDSW = 55
S_COL = [56, 57, 58, 59, 60]
S_OFF = 61; S_T0 = 62; S_T1 = 63; S_C1 = 64
S_PB = 65; S_LDS2 = 66
S_WD0, S_WD1, S_OFF2 = 67, 68, 69
S_XB = 70
S_DF = 72
S_CF = 76
S_DFB = 80; S_CFB = 81
S_ROW = 4
S_ROT = 82; S_RB = 83
S_CNT = 86; S_DBG = 96

def xreg(ks, t):
    i = ks * 2 + t
    if i < 64: return "a[%d:%d]" % (4 * i, 4 * i + 3)
    r = XOV + 4 * (i - 64)
    return "v[%d:%d]" % (r, r + 3)

def gelu_items(accbase, tiles):
    items = []
    c1 = "s%d" % S_C1
    for n, (ti, off, areg) in enumerate(tiles):
        base = accbase + 16 * ti
        hp = HP + 4 * (n & 1)
        for pr in range(4):
            g0, g1 = base + 2 * pr, base + 2 * pr + 1
            u0, u1 = g0 + 8, g1 + 8
            t0, t1 = GT + 4 * (pr & 1), GT + 4 * (pr & 1) + 1
            m0, m1 = t0 + 2, t0 + 3
            items += [
                "v_mul_f32 v%d, v%d, v%d" % (t0, g0, g0),
                "v_mul_f32 v%d, v%d, v%d" % (t1, g1, g1),
                "v_fma_f32 v%d, v%d, %s, v%d" % (t0, t0, c1, V_C0),
                "v_fma_f32 v%d, v%d, %s, v%d" % (t1, t1, c1, V_C0),
                "v_mul_f32 v%d, v%d, v%d" % (t0, t0, g0),
                "v_mul_f32 v%d, v%d, v%d" % (t1, t1, g1),
                "v_exp_f32 v%d, v%d" % (t0, t0),
                "v_exp_f32 v%d, v%d" % (t1, t1),
                "v_mul_f32 v%d, v%d, v%d" % (m0, g0, u0),
                "v_mul_f32 v%d, v%d, v%d" % (m1, g1, u1),
                "v_add_f32 v%d, 1.0, v%d" % (t0, t0),
                "v_add_f32 v%d, 1.0, v%d" % (t1, t1),
                "v_rcp_f32 v%d, v%d" % (t0, t0),
                "v_rcp_f32 v%d, v%d" % (t1, t1),
                "v_mul_f32 v%d, v%d, v%d" % (m0, m0, t0),
                "v_mul_f32 v%d, v%d, v%d" % (m1, m1, t1),
                "v_cvt_pk_bf16_f32 v%d, v%d, v%d" % (hp + pr, m0, m1),
            ]
        items.append(("lds", "ds_write_b128 v%d, v[%d:%d] offset:%d" % (areg, hp, hp + 3, off), "hw"))
    return items

def k2(a):
    R = OPT["R"]; ABLS = OPT["abl"]
    HB = R * 8192
    name = "ffn_kernel"
    kernel_begin(a, name)
    a("s_cmp_ge_u32 s2, 256"); a("s_cbranch_scc1 L_ffn_done")
    load_ptrs(a)
    stamp(a, 1, 0)
    dstamp(a, 1, 2, mn=True)
    st = Stream(a)
    def emit_item(it):
        if isinstance(it, tuple):
            kind = it[0]
            if kind == "lds": st.lds(it[1], it[2])
            elif kind == "vm": st.vmem(it[1], it[2])
            elif kind == "bar":
                st.wait(vm=it[1])
                if "nobar" not in ABLS: st("s_barrier")
            else: raise ValueError(kind)
        elif isinstance(it, list):
            for x in it: emit_item(x)
        else:
            st(it)
    a("v_lshrrev_b32 v20, 6, v0")
    a("v_and_b32 v21, 63, v0")
    a("v_readfirstlane_b32 s%d, v20" % S_WAVE)
    mj_from_wg(a, S_M, S_J, S_T0, S_T1)
    a("s_lshr_b32 s%d, s%d, 1" % (S_TM, S_WAVE))
    a("s_and_b32 s%d, s%d, 1" % (S_FH, S_WAVE))
    a("s_mul_i32 s%d, s%d, 288" % (S_T0, S_J))
    a("s_lshl_b32 s%d, s%d, 5" % (S_FB, S_T1))
    a("s_add_u32 s%d, s%d, s%d" % (S_FB, S_FB, S_T0))
    a("s_cmp_eq_u32 s%d, 0" % S_T1)
    a("s_cselect_b32 s%d, 256, 0" % S_FHB)
    a("s_add_u32 s%d, s%d, s%d" % (S_FHB, S_FHB, S_T0))
    for s_ in range(4):
        a("s_add_u32 s%d, s%d, %d" % (S_COL[s_], S_FB, 64 * s_))
        a("s_lshl_b32 s%d, s%d, 1" % (S_COL[s_], S_COL[s_]))
    a("s_lshl_b32 s%d, s%d, 5" % (S_COL[4], S_T1))
    a("s_sub_u32 s%d, s%d, s%d" % (S_COL[4], S_FHB, S_COL[4]))
    a("s_lshl_b32 s%d, s%d, 1" % (S_COL[4], S_COL[4]))
    a("s_cmp_ge_u32 s%d, 2" % S_WAVE)
    a("s_cselect_b32 s%d, s18, s16" % S_W)
    a("s_cselect_b32 s%d, s19, s17" % (S_W + 1))
    a("s_mov_b32 s%d, %d" % (S_W + 2, D * F * 2)); a("s_mov_b32 s%d, 0x00020000" % (S_W + 3))
    srd(a, S_X, 26, S * D * 2, WS_XNF)
    a("s_lshl_b32 s%d, s%d, 11" % (S_LDSW, S_WAVE))
    a("v_lshlrev_b32 v%d, 4, v21" % V_LANE16)
    a("v_lshrrev_b32 v22, 3, v21")
    a("s_lshl_b32 s%d, s%d, 4" % (S_T0, S_FH))
    a("v_add_u32 v22, s%d, v22" % S_T0)
    a("s_movk_i32 s%d, 9216" % S_T0)
    a("v_mul_lo_u32 v22, v22, s%d" % S_T0)
    a("v_bfe_u32 v23, v21, 4, 1")
    a("s_lshl_b32 s%d, s%d, 1" % (S_T0, S_TM))
    a("v_or_b32 v23, s%d, v23" % S_T0)
    a("v_bfe_u32 v24, v21, 1, 2")
    a("v_xor_b32 v24, v24, v23")
    a("v_and_b32 v25, 1, v21")
    a("v_lshlrev_b32 v25, 4, v25")
    a("v_lshl_add_u32 v25, v24, 5, v25")
    a("v_add_u32 v%d, v22, v25" % V_DM0)
    a("v_add_u32 v%d, %d, v%d" % (V_DM1, 8 * 9216, V_DM0))
    a("s_lshl_b32 s%d, s%d, 2" % (S_T0, S_M))
    a("s_lshl_b32 s%d, s%d, 1" % (S_T1, S_TM))
    a("s_add_u32 s%d, s%d, s%d" % (S_T0, S_T0, S_T1))
    a("s_mul_i32 s%d, s%d, 36864" % (S_XB, S_T0))
    srd(a, S_D, 20, D * F * 2)
    if OPT.get("rot", 1):
        a("s_mul_i32 s%d, s%d, 18" % (S_ROT, S_M))
        a("s_lshr_b32 s%d, s%d, 4" % (S_ROT, S_ROT))
    else:
        a("s_mov_b32 s%d, 0" % S_ROT)
    def row_entry(s_):
        if s_ == 0:
            a("s_mul_i32 s%d, s%d, %d" % (S_ROW, S_ROT, 32 * 9216))
        else:
            a("s_add_u32 s%d, s%d, %d" % (S_ROW + s_, S_ROW + s_ - 1, 32 * 9216))
            a("s_cmp_eq_u32 s%d, %d" % (S_ROW + s_, 18 * 32 * 9216))
            a("s_cselect_b32 s%d, 0, s%d" % (S_ROW + s_, S_ROW + s_))

    def dma_items(g):
        stg, s_ = divmod(g, 18)
        if stg > 4: return []
        if "nodma" in ABLS and g >= 8: return []
        slot = g % R
        v0_, v1_ = (V_DH0, V_DH1) if stg == 4 else (V_DM0, V_DM1)
        g0 = ["s_add_u32 s%d, s%d, s%d" % (S_OFF, S_COL[stg], S_ROW + s_),
              "s_add_u32 m0, s%d, %d" % (S_LDSW, slot * 8192),
              "NOPSLOT",
              ("vm", "buffer_load_dwordx4 v%d, s[%d:%d], s%d offen lds" % (v0_, S_W, S_W + 3, S_OFF), ("W", g))]
        g1 = ["s_add_u32 m0, s%d, %d" % (S_LDSW, slot * 8192 + 1024),
              "NOPSLOT",
              ("vm", "buffer_load_dwordx4 v%d, s[%d:%d], s%d offen lds" % (v1_, S_W, S_W + 3, S_OFF), ("W", g))]
        return [g0, g1]
    def emit_group(grp, filler=None):
        for it in grp:
            if it == "NOPSLOT":
                if not (filler and filler()): st("s_nop 0")
            else: emit_item(it)
    def xload_items(ks):
        out = []
        for t in range(2):
            sl = ks // 2
            out.append(["s_mul_hi_u32 s%d, s%d, %d" % (S_OFF2, S_ROW + sl, -(-(1 << 32) // 144)),
                        "s_add_u32 s%d, s%d, s%d" % (S_OFF2, S_OFF2, S_XB),
                        "s_add_u32 s%d, s%d, %d" % (S_OFF2, S_OFF2, t * 36864 + (ks & 1) * 1024),
                        ("vm", "buffer_load_dwordx4 %s, v%d, s[%d:%d], s%d offen" % (xreg(ks, t), V_LANE16, S_X, S_X + 3, S_OFF2), ("X", ks))])
        return out
    NPRE = R - 1
    XA = OPT["xahead"]
    for s_ in range(NPRE):
        row_entry(s_)
        for grp in dma_items(s_): emit_group(grp)
        for ks in (2 * s_, 2 * s_ + 1):
            if ks < XA:
                for it in xload_items(ks): emit_item(it)
    for s_ in range(NPRE, 18): row_entry(s_)
    srd(a, S_P, 26, PART_BYTES, WS_PART)
    srd(a, S_DF, 26, DF_BYTES, WS_DF)
    srd(a, S_CF, 26, CF_BYTES, WS_CF)
    a("s_lshl_b32 s%d, s%d, 10" % (S_LDS2, S_WAVE))
    a("s_mov_b32 s%d, 0x%08x" % (S_C1, f2u(-2.0 * 0.7978845608028654 * 1.4426950408889634 * 0.044715)))
    a("v_mov_b32 v%d, 0x%08x" % (V_C0, f2u(-2.0 * 0.7978845608028654 * 1.4426950408889634)))
    a("v_lshrrev_b32 v24, 1, v24")
    a("s_and_b32 s%d, s%d, 1" % (S_T0, S_J))
    a("v_cmp_eq_u32 vcc, s%d, v24" % S_T0)
    a("v_mov_b32 v26, 0x7ff00000")
    a("s_nop 0")
    a("v_cndmask_b32 v%d, v26, v%d, vcc" % (V_DH0, V_DM0))
    a("v_cndmask_b32 v%d, v26, v%d, vcc" % (V_DH1, V_DM1))
    a("v_bfe_u32 v22, v21, 4, 1")
    a("v_bfe_u32 v23, v21, 5, 1")
    a("v_bfe_u32 v24, v21, 2, 2")
    a("v_and_b32 v25, 3, v21")
    a("v_lshlrev_b32 v26, 12, v22")
    a("v_lshl_add_u32 v27, v23, 3, v24")
    a("v_lshl_add_u32 v26, v27, 7, v26")
    a("v_lshl_add_u32 v26, v25, 3, v26")
    a("v_lshrrev_b32 v27, 1, v24")
    a("v_lshl_or_b32 v27, v22, 1, v27")
    a("s_lshl_b32 s%d, s%d, 1" % (S_T0, S_FH))
    a("v_xor_b32 v28, s%d, v27" % S_T0)
    a("v_lshl_add_u32 v%d, v28, 5, v26" % V_TR[0])
    a("v_xor_b32 v28, 1, v28")
    a("v_lshl_add_u32 v%d, v28, 5, v26" % V_TR[1])
    a("v_add_u32 v%d, 49152, v%d" % (V_TR[2], V_TR[0]))
    a("v_add_u32 v%d, 49152, v%d" % (V_TR[3], V_TR[1]))
    a("s_and_b32 s%d, s%d, 1" % (S_T0, S_J))
    a("s_lshl_b32 s%d, s%d, 1" % (S_T0, S_T0))
    a("s_add_u32 s%d, s%d, s%d" % (S_T0, S_T0, S_FH))
    a("v_xor_b32 v28, s%d, v27" % S_T0)
    a("v_lshl_add_u32 v%d, v28, 5, v26" % V_TRH[0])
    a("v_add_u32 v%d, 49152, v%d" % (V_TRH[1], V_TRH[0]))
    a("s_mul_i32 s%d, s%d, 36" % (S_T0, S_TM))
    a("s_lshl_b32 s%d, s%d, 1" % (S_T1, S_FH))
    a("s_add_u32 s%d, s%d, s%d" % (S_T1, S_T1, S_T0))
    a("s_lshl_b32 s%d, s%d, 10" % (S_T1, S_T1))
    a("s_add_u32 s%d, s%d, %d" % (S_T1, S_T1, HB))
    a("v_add_u32 v%d, s%d, v%d" % (V_H, S_T1, V_LANE16))
    a("s_add_u32 s%d, s%d, 16" % (S_T1, S_T0))
    a("s_add_u32 s%d, s%d, s%d" % (S_T1, S_T1, S_FH))
    a("s_lshl_b32 s%d, s%d, 10" % (S_T1, S_T1))
    a("s_add_u32 s%d, s%d, %d" % (S_T1, S_T1, HB))
    a("v_add_u32 v%d, s%d, v%d" % (V_HH, S_T1, V_LANE16))
    a("s_lshl_b32 s%d, s%d, 10" % (S_T1, S_T0))
    a("s_add_u32 s%d, s%d, %d" % (S_T1, S_T1, HB))
    a("v_add_u32 v%d, s%d, v%d" % (V_HR, S_T1, V_LANE16))
    a("v_lshrrev_b32 v22, 3, v21")
    a("s_lshl_b32 s%d, s%d, 3" % (S_T0, S_WAVE))
    a("v_add_u32 v22, s%d, v22" % S_T0)
    a("s_movk_i32 s%d, 1152" % S_T0)
    a("v_mul_lo_u32 v22, v22, s%d" % S_T0)
    a("v_bfe_u32 v23, v21, 4, 1")
    a("v_lshlrev_b32 v23, 1, v23")
    a("v_bfe_u32 v24, v21, 1, 2")
    a("v_xor_b32 v24, v24, v23")
    a("v_and_b32 v25, 1, v21")
    a("v_lshlrev_b32 v25, 4, v25")
    a("v_lshl_add_u32 v25, v24, 5, v25")
    a("v_add_u32 v%d, v22, v25" % V_D2)
    a("v_bfe_u32 v22, v21, 4, 1")
    a("v_bfe_u32 v23, v21, 5, 1")
    a("v_bfe_u32 v24, v21, 2, 2")
    a("v_and_b32 v25, 3, v21")
    a("v_lshl_add_u32 v26, v23, 2, v24")
    a("v_lshlrev_b32 v26, 7, v26")
    a("v_lshl_add_u32 v26, v25, 3, v26")
    a("v_and_b32 v27, 2, v24")
    a("s_lshl_b32 s%d, s%d, 1" % (S_T0, S_FH))
    a("v_or_b32 v28, s%d, v22" % S_T0)
    a("v_xor_b32 v28, v28, v27")
    a("v_lshl_add_u32 v%d, v28, 5, v26" % V_TR2[0])
    for b in range(1, 4):
        a("v_add_u32 v%d, %d, v%d" % (V_TR2[b], 36864 * b, V_TR2[0]))
    a("s_lshl_b32 s%d, s%d, 4" % (S_T0, S_J))
    a("s_add_u32 s%d, s%d, s%d" % (S_T0, S_T0, S_M))
    a("s_lshl_b32 s%d, s%d, 2" % (S_T0, S_T0))
    a("s_lshl_b32 s%d, s%d, 1" % (S_T1, S_TM))
    a("s_add_u32 s%d, s%d, s%d" % (S_T0, S_T0, S_T1))
    a("s_mul_i32 s%d, s%d, %d" % (S_PB, S_T0, 18 * 2048))
    a("s_lshl_b32 s%d, s%d, 11" % (S_T1, S_FH))
    a("s_add_u32 s%d, s%d, s%d" % (S_PB, S_PB, S_T1))
    a("s_mul_i32 s%d, s%d, 1152" % (S_WD0, S_FB))
    a("s_mul_i32 s%d, s%d, 1152" % (S_WD1, S_FHB))
    if OPT.get("rot", 1):
        a("s_mul_i32 s%d, s%d, 9" % (S_RB, S_M))
        a("s_lshr_b32 s%d, s%d, 4" % (S_RB, S_RB))
    else:
        a("s_mov_b32 s%d, 0" % S_RB)
    a("s_lshl_b32 s%d, s%d, 1" % (S_T0, S_J))
    a("s_add_u32 s%d, s%d, s%d" % (S_T0, S_T0, S_FH))
    a("s_mul_i32 s%d, s%d, 36864" % (S_DFB, S_T0))
    a("s_cmp_ge_u32 s%d, 9" % S_T0)
    a("s_cselect_b32 s%d, 9, 0" % S_T1)
    a("s_sub_u32 s%d, s%d, s%d" % (S_T0, S_T0, S_T1))
    a("s_lshl_b32 s%d, s%d, 18" % (S_CFB, S_T0))
    a("s_cselect_b32 s%d, 4096, 0" % S_T1)
    a("s_lshl_b32 s%d, s%d, 1" % (S_T0, S_J))
    a("s_add_u32 s%d, s%d, s%d" % (S_T0, S_T0, S_FH))
    a("s_cmp_ge_u32 s%d, 9" % S_T0)
    a("s_cselect_b32 s%d, 4096, 0" % S_T1)
    a("s_add_u32 s%d, s%d, s%d" % (S_CFB, S_CFB, S_T1))
    a("s_lshl_b32 s%d, s%d, 8" % (S_T0, S_M))
    a("s_add_u32 s%d, s%d, s%d" % (S_CFB, S_CFB, S_T0))
    a("s_lshl_b32 s%d, s%d, 7" % (S_T0, S_TM))
    a("s_add_u32 s%d, s%d, s%d" % (S_CFB, S_CFB, S_T0))
    a("s_lshl_b32 s%d, s%d, 12" % (S_T0, S_WAVE))
    a("s_add_u32 s%d, s%d, 147456" % (S_T0, S_T0))
    a("v_and_b32 v22, 31, v21")
    a("v_lshlrev_b32 v22, 7, v22")
    a("v_lshrrev_b32 v23, 5, v21")
    a("v_lshl_add_u32 v22, v23, 4, v22")
    a("v_add_u32 v%d, s%d, v22" % (V_CF, S_T0))
    a("v_add_u32 v%d, s%d, v%d" % (V_CR, S_T0, V_LANE16))
    a("v_lshrrev_b32 v22, 3, v21")
    a("v_lshlrev_b32 v22, 13, v22")
    a("v_and_b32 v23, 7, v21")
    a("v_lshl_add_u32 v%d, v23, 4, v22" % V_CG)
    a("v_mov_b32 v%d, v21" % V_LN)
    srd(a, S_DBG, 26, 288 * 4, WS_FLAG)
    a("s_lshl_b32 s%d, s%d, 1" % (S_T0, S_J))
    a("s_add_u32 s%d, s%d, s%d" % (S_T0, S_T0, S_FH))
    a("s_lshl_b32 s%d, s%d, 4" % (S_T0, S_T0))
    a("s_add_u32 s%d, s%d, s%d" % (S_T0, S_T0, S_M))
    a("s_lshl_b32 s%d, s%d, 2" % (S_CNT, S_T0))
    a("s_cmp_lg_u32 s%d, 0" % S_TM)
    a("s_cselect_b32 s%d, 0x7ff00000, s%d" % (S_CNT, S_CNT))
    stamp(a, 1, 1)
    dstamp(a, 1, 3)

    HI = 49152
    def trread(g, kk, half):
        slot = g % R
        gks = g * 2 + kk
        buf = gks % 3
        out = []
        ncs = 1 if half else 2
        for c in range(ncs):
            for q in range(2):
                off = slot * 8192 + kk * 2048 + q * 512
                hi = off >= HI
                if half: areg = V_TRH[1 if hi else 0]
                else: areg = V_TR[c + (2 if hi else 0)]
                if hi: off -= HI
                r = AF + (buf * 2 + c) * 4 + q * 2
                out.append(("lds", "ds_read_b64_tr_b16 v[%d:%d], v%d offset:%d" % (r, r + 1, areg, off), ("A", gks)))
        return out
    B = OPT["B"]
    NG = 5 * 18
    st.wait(vm=[("W", i) for i in range(B)])
    st("s_barrier")
    for kk in range(2):
        for it in trread(0, kk, False): emit_item(it)
    next_dma = [NPRE]
    dma_pending = []
    S_BC = 84
    def blk_items(dst, b, mul):
        return ["s_add_u32 s%d, s%d, %d" % (dst, S_RB, b),
                "s_cmp_ge_u32 s%d, 9" % dst,
                "s_cselect_b32 s%d, 9, 0" % S_T0,
                "s_sub_u32 s%d, s%d, s%d" % (dst, dst, S_T0),
                "s_mul_i32 s%d, s%d, %d" % (dst, dst, mul)]
    def stage(stg, accset, gelu_q):
        half = stg == 4
        ncs = 1 if half else 2
        gq = list(gelu_q) if "nogelu" not in ABLS else []
        nm_total = 36 * ncs * 2
        per = len(gq) / float(nm_total - 6)
        state = {"acc": 0.0, "em": 0}
        def pop_gelu():
            if gq:
                emit_item(gq.pop(0)); state["em"] += 1
                return True
            return False
        mi = 0
        since_dma = 99
        xq = []
        for ks in range(36):
            g = stg * 18 + ks // 2
            gks = stg * 36 + ks
            buf = gks % 3
            g2, kk2 = divmod(gks + 2, 2)
            bar = None
            if kk2 == 0 and g2 % B == 0 and g2 < NG:
                bar = [("W", i) for i in range(g2, min(g2 + B, NG))]
            reads = trread(g2, kk2, g2 // 18 == 4) if (g2 < NG and "notr" not in ABLS) else []
            if stg == 0 and ks + XA < 36: xq.extend(xload_items(ks + XA))
            if stg == 4 and ks == 22 and OPT.get("wdpf", 1):
                assert next_dma[0] >= NG and not dma_pending
                st("v_mov_b32 v%d, v0" % V_T1)
                st("v_mul_u32_u24 v%d, 1152, v%d" % (V_T1, V_T1))
                for bb in range(2):
                    for x in blk_items(S_BC, bb, 128): st(x)
                    st("s_add_u32 s%d, s%d, s%d" % (S_OFF, S_WD0, S_BC))
                    st.vmem("buffer_load_dword v%d, v%d, s[%d:%d], s%d offen" % (V_T2, V_T1, S_D, S_D + 3, S_OFF), "PF")
                    st("s_add_u32 s%d, s%d, s%d" % (S_OFF, S_WD1, S_BC))
                    st("v_and_b32 v%d, 31, v%d" % (V_T2 + 5, V_LN))
                    st("v_mul_u32_u24 v%d, 1152, v%d" % (V_T2 + 5, V_T2 + 5))
                    st.vmem("buffer_load_dword v%d, v%d, s[%d:%d], s%d offen" % (V_T2, V_T2 + 5, S_D, S_D + 3, S_OFF), "PF")
            st.wait(vm=[("X", ks)] if stg == 0 else [], lg=[("A", gks)])
            ng = ncs * 2
            k = 0
            for c in range(ncs):
                for t in range(2):
                    ti = c * 2 + t
                    d = ACC[accset] + 16 * ti
                    ar = AF + (buf * 2 + c) * 4
                    src = "0" if ks == 0 else "v[%d:%d]" % (d, d + 15)
                    st("v_mfma_f32_32x32x16_bf16 v[%d:%d], v[%d:%d], %s, %s" % (d, d + 15, ar, ar + 3, xreg(ks, t), src))
                    mi += 1
                    if k == 0 and bar is not None:
                        emit_item(("bar", bar))
                        while next_dma[0] < NG and next_dma[0] - R <= g2 - 2:
                            dma_pending.extend(dma_items(next_dma[0])); next_dma[0] += 1
                    lo = k * len(reads) // ng; hi_ = (k + 1) * len(reads) // ng
                    for it in reads[lo:hi_]: emit_item(it)
                    since_dma += 1
                    did = False
                    if xq and k in (1, 3):
                        emit_item(xq.pop(0)); did = True
                    elif dma_pending and since_dma >= OPT.get("dmagap", 4 if not half else 2) and not (k == 0 and bar is not None):
                        emit_group(dma_pending.pop(0), pop_gelu if mi > 6 else None)
                        since_dma = 0; did = True
                    if mi > 6:
                        state["acc"] += per
                        n = 0
                        cap = OPT["gcap"] - (2 if did else 0)
                        while gq and state["em"] < state["acc"] and n < cap:
                            pop_gelu(); n += 1
                    k += 1
        assert not xq
        while gq: pop_gelu()

    def full_tiles(stg):
        return [(c * 2 + t, (t * 18 + c) * 1024 + stg * 4096, V_H) for c in range(2) for t in range(2)]
    stage(0, 0, [])
    stamp(a, 1, 2)
    dstamp(a, 1, 4)
    stage(1, 1, gelu_items(ACC[0], full_tiles(0)))
    stage(2, 0, gelu_items(ACC[1], full_tiles(1)))
    if OPT.get("dfpf", 0):
        st("v_lshlrev_b32 v%d, 7, v%d" % (V_T1, V_LN))
        for i in range(5):
            st("s_add_u32 s%d, s%d, %d" % (S_T0, S_DFB, i * 8192))
            st.vmem("buffer_load_dword v%d, v%d, s[%d:%d], s%d offen" % (V_T2, V_T1, S_DF, S_DF + 3, S_T0), "PF")
    stage(3, 1, gelu_items(ACC[0], full_tiles(2)))
    stage(4, 0, gelu_items(ACC[1], full_tiles(3)))
    assert not dma_pending
    stamp(a, 1, 3)
    dstamp(a, 1, 5)
    def wd_groups(b):
        buf = b % 4
        out = []
        for i in range(9):
            base = S_WD0 if i < 8 else S_WD1
            off = (32 * i * 1152 if i < 8 else 0)
            pre = blk_items(S_BC, b, 128) if i == 0 else []
            out.append(pre + ["s_add_u32 s%d, s%d, s%d" % (S_OFF, base, S_BC),
                        "s_add_u32 s%d, s%d, %d" % (S_OFF, S_OFF, off),
                        "s_add_u32 m0, s%d, %d" % (S_LDS2, buf * 36864 + i * 4096),
                        "NOPSLOT",
                        ("vm", "buffer_load_dwordx4 v%d, s[%d:%d], s%d offen lds" % (V_D2, S_D, S_D + 3, S_OFF), ("D", b))])
        return out
    st.wait_all(vm=False, lg=True)
    st("s_barrier")
    tail = gelu_items(ACC[0], [(t, t * 18 * 1024, V_HH) for t in range(2)])
    a("s_cmp_ge_u32 s%d, 9" % S_J)
    a("s_cbranch_scc1 L_ffn_noa1")
    stamp(a, 6, 0)
    vm_save, lg_save = list(st.vm), list(st.lg)
    NB = 18
    def breg(ks):
        i = ks % NB
        r = (AF + 4 * i) if i < 6 else (BR + 4 * (i - 6)) if i < 10 else (112 + 4 * (i - 10))
        return r
    def bload(ks):
        r = breg(ks)
        return ["s_mul_hi_u32 s%d, s%d, %d" % (S_OFF2, S_ROW + ks // 2, -(-(1 << 32) // 144)),
                "s_add_u32 s%d, s%d, s%d" % (S_OFF2, S_OFF2, S_DFB),
                "s_add_u32 s%d, s%d, %d" % (S_OFF2, S_OFF2, (ks & 1) * 1024),
                ("vm", "buffer_load_dwordx4 v[%d:%d], v%d, s[%d:%d], s%d offen" % (r, r + 3, V_LANE16, S_DF, S_DF + 3, S_OFF2), ("B", ks))]
    for ks in range(NB - 1): emit_item(bload(ks))
    wdq = wd_groups(0) + wd_groups(1)
    stamp(a, 6, 1)
    A1ACC = ACC[1]
    tq = list(tail)
    for ks in range(36):
        st.wait(vm=[("B", ks)])
        if ks == 0: stamp(a, 6, 2)
        for t in range(2):
            d = A1ACC + 16 * t
            br = breg(ks)
            src = "0" if ks == 0 else "v[%d:%d]" % (d, d + 15)
            st("v_mfma_f32_32x32x16_bf16 v[%d:%d], %s, v[%d:%d], %s" % (d, d + 15, xreg(ks, t), br, br + 3, src))
            if t == 0 and ks + NB - 1 < 36:
                emit_item(bload(ks + NB - 1))
            elif wdq and ks + NB - 1 >= 36:
                emit_group(wdq.pop(0))
            if ks >= 2:
                for _ in range(3):
                    if tq: emit_item(tq.pop(0))
    assert not tq and not wdq, (len(tq), len(wdq))
    stamp(a, 6, 3)
    st("s_nop 15"); st("s_nop 3")
    for t in range(2):
        pk = GT + 8 * 0 if t == 0 else HP
        for dd in range(8):
            st("v_cvt_pk_bf16_f32 v%d, v%d, v%d" % (pk + dd, A1ACC + 16 * t + 2 * dd, A1ACC + 16 * t + 2 * dd + 1))
        st("s_nop 1")
        st("v_permlane32_swap_b32 v%d, v%d" % (pk + 0, pk + 2))
        st("v_permlane32_swap_b32 v%d, v%d" % (pk + 1, pk + 3))
        st("v_permlane32_swap_b32 v%d, v%d" % (pk + 4, pk + 6))
        st("v_permlane32_swap_b32 v%d, v%d" % (pk + 5, pk + 7))
        st.lds("ds_write_b128 v%d, v[%d:%d] offset:%d" % (V_CF, pk, pk + 3, t * 64), "cw")
        st.lds("ds_write_b128 v%d, v[%d:%d] offset:%d" % (V_CF, pk + 4, pk + 7, t * 64 + 32), "cw")
    st.wait_all(vm=False, lg=True)
    for k in range(4):
        st.lds("ds_read_b128 v[%d:%d], v%d offset:%d" % (112 + 4 * k, 115 + 4 * k, V_CR, k * 1024), ("cr", k))
    for k in range(4):
        st.wait(lg=[("cr", k)])
        st("s_add_u32 s%d, s%d, %d" % (S_OFF2, S_CFB, k * 8 * 8192))
        st.vmem("buffer_store_dwordx4 v[%d:%d], v%d, s[%d:%d], s%d offen sc1" % (112 + 4 * k, 115 + 4 * k, V_CG, S_CF, S_CF + 3, S_OFF2), "CF")
    stamp(a, 6, 4)
    a("s_branch L_ffn_join")
    vm_a = list(st.vm)
    a.label("L_ffn_noa1")
    st.vm, st.lg = vm_save, lg_save
    for grp in wd_groups(0) + wd_groups(1): emit_group(grp)
    for it in tail: emit_item(it)
    a.label("L_ffn_join")
    st.wait_all(vm=False, lg=True)
    st("s_barrier")
    stamp(a, 6, 5)
    for t in range(2):
        for ci in range(18):
            i = t * 18 + ci
            st.lds("ds_read_b128 a[%d:%d], v%d offset:%d" % (4 * i, 4 * i + 3, V_HR, i * 1024), ("H", i))
    st.wait_all(vm=False, lg=True)
    stamp(a, 6, 6)
    st("s_waitcnt vmcnt(4)")
    st("s_barrier")
    st.vm = [("D", 1)] * 4
    for grp in wd_groups(2): emit_group(grp)
    stamp(a, 1, 4)
    dstamp(a, 1, 6)
    A2 = 176; ACC2 = [16, 48]; PK = 200
    def trread2(b, ci):
        gk = b * 18 + ci
        r = A2 + (gk % 4) * 4
        return [("lds", "ds_read_b64_tr_b16 v[%d:%d], v%d offset:%d" % (r + 2 * q, r + 2 * q + 1, V_TR2[b % 4], ci * 2048 + q * 1024), ("A2", gk)) for q in range(2)]
    def epi_items(b):
        items = []
        acc = ACC2[b % 2]
        for t in range(2):
            pk = PK + 8 * t
            for d in range(8):
                items.append("v_cvt_pk_bf16_f32 v%d, v%d, v%d" % (pk + d, acc + 16 * t + 2 * d, acc + 16 * t + 2 * d + 1))
            for q in range(2):
                pre = blk_items(S_BC + 1, b, 4096) if (t == 0 and q == 0) else []
                items.append(pre + ["s_add_u32 s%d, s%d, s%d" % (S_OFF2, S_PB, S_BC + 1),
                              "s_add_u32 s%d, s%d, %d" % (S_OFF2, S_OFF2, t * 18 * 2048),
                              ("vm", "buffer_store_dwordx4 v[%d:%d], v%d, s[%d:%d], s%d offen offset:%d %s" % (pk + 4 * q, pk + 4 * q + 3, V_LANE16, S_P, S_P + 3, S_OFF2, q * 1024, OPT["stflags"]), ("P", b))])
        return items
    for ci in range(3):
        for it in trread2(0, ci): emit_item(it)
    pend = list(wd_groups(3))
    for b in range(9):
        eq = epi_items(b - 1) if b > 0 else []
        if b == 5 and OPT.get("cpf3", 1):
            st("s_getpc_b64 s[%d:%d]" % (S_DF, S_DF + 1))
            a.label("L_k2_pc")
            st("s_add_u32 s%d, s%d, fin_kernel-L_k2_pc" % (S_DF, S_DF))
            st("s_addc_u32 s%d, s%d, 0" % (S_DF + 1, S_DF + 1))
            st("v_lshlrev_b32 v%d, 6, v0" % (BR + 1))
            st("v_min_u32 v%d, L_code_end-fin_kernel-64, v%d" % (BR + 1, BR + 1))
            st.vmem("global_load_dword v%d, v%d, s[%d:%d]" % (BR, BR + 1, S_DF, S_DF + 1), "PF")
        mi = 0
        since = 99
        for ci in range(18):
            gk = b * 18 + ci
            nb, nci = divmod(gk + 3, 18)
            reads = trread2(nb, nci) if nb < 9 else []
            st.wait(lg=[("A2", gk)])
            for t in range(2):
                d = ACC2[b % 2] + 16 * t
                ar = A2 + (gk % 4) * 4
                hr = (t * 18 + ci) * 4
                src = "0" if ci == 0 else "v[%d:%d]" % (d, d + 15)
                st("v_mfma_f32_32x32x16_bf16 v[%d:%d], v[%d:%d], a[%d:%d], %s" % (d, d + 15, ar, ar + 3, hr, hr + 3, src))
                mi += 1
                isbar = (t == 0 and ci == 15 and b + 1 < 9)
                if isbar:
                    emit_item(("bar", [("D", b + 1)]))
                    if b == 0:
                        st("v_lshlrev_b32 v%d, 20, v%d" % (V_T1, V_LN))
                        st("v_add_u32 v%d, s%d, v%d" % (V_T1, S_CNT, V_T1))
                        st("v_mov_b32 v%d, 1" % V_T2)
                        st.vmem("buffer_store_dword v%d, v%d, s[%d:%d], 0 offen sc1" % (V_T2, V_T1, S_DBG, S_DBG + 3), "SIG")
                    if b >= 1 and b + 3 <= 8:
                        pend.extend(wd_groups(b + 3))
                if reads: emit_item(reads[t])
                since += 1
                vm_done = False
                if pend and since >= 3 and not isbar:
                    emit_group(pend.pop(0)); since = 0; vm_done = True
                if mi > 4 and eq and not vm_done:
                    it = eq.pop(0)
                    if isinstance(it, list):
                        if since >= 2:
                            emit_item(it); since = 0
                        else: eq.insert(0, it)
                    else:
                        emit_item(it)
                        if eq and not isinstance(eq[0], list): emit_item(eq.pop(0))
        while eq: emit_item(eq.pop(0))
    assert not pend
    st("s_nop 15"); st("s_nop 3")
    for it in epi_items(8): emit_item(it)
    stamp(a, 1, 5)
    dstamp(a, 1, 7)
    a("s_cmp_lt_u32 s%d, 9" % S_J); a("s_cbranch_scc1 L_ffn_done")
    a("s_cmp_ge_u32 s%d, 3" % S_WAVE); a("s_cbranch_scc1 L_ffn_done")
    a("s_sub_u32 s49, s%d, 9" % S_J)
    a("s_lshl_b32 s49, s49, 4")
    a("s_add_u32 s49, s49, s%d" % S_M)
    a("s_mul_i32 s49, s49, 3")
    a("s_add_u32 s49, s49, s%d" % S_WAVE)
    a("s_cmp_gt_u32 s49, 288"); a("s_cbranch_scc1 L_ffn_done")
    a("s_lshl_b32 s51, s%d, 13" % S_WAVE)
    a("s_add_u32 s51, s51, 36864")
    a("v_mov_b32 v2, v%d" % V_LN)
    a("s_cmp_eq_u32 s49, 288"); a("s_cbranch_scc1 L_ffn_fgo")
    a("s_lshr_b32 s52, s49, 5"); a("s_lshl_b32 s52, s52, 6")
    a("v_and_b32 v3, 15, v2"); a("v_lshlrev_b32 v3, 2, v3")
    a("v_bfe_u32 v4, v2, 4, 1"); a("v_mul_u32_u24 v4, 576, v4")
    a("v_add_u32 v3, v3, v4"); a("v_add_u32 v3, s52, v3")
    a("s_mov_b32 s53, 0")
    a.label("L_ffn_fpoll")
    a("buffer_load_dword v4, v3, s[%d:%d], 0 offen sc1" % (S_DBG, S_DBG + 3))
    a("s_waitcnt vmcnt(0)")
    a("v_cmp_eq_u32 vcc, 1, v4")
    a("s_nop 1")
    a("s_cmp_eq_u64 vcc, exec"); a("s_cbranch_scc1 L_ffn_fgo")
    a("s_sleep 8")
    a("s_add_u32 s53, s53, 1")
    a("s_cmp_lt_u32 s53, 100000"); a("s_cbranch_scc1 L_ffn_fpoll")
    a.label("L_ffn_fgo")
    fft_column(a, 1)
    stamp(a, 1, 6, vb=251)
    dstamp(a, 1, 13, mask=0)
    a.label("L_ffn_done")
    a("s_endpgm")
    return name, max(R * 8192 + 73728, 147456)

K3_WAVES = 9
K3_LDS_COL = 0
K3_LDS_TAB = 16384
K3_LDS = 16384 + 22 * 1024
def k3(a):
    name = "fin_kernel"
    kernel_begin(a, name)
    a("s_cmp_ge_u32 s2, 256"); a("s_cbranch_scc1 L_k3_done")
    load_ptrs(a)
    stamp(a, 2, 0, vb=151)
    dstamp(a, 2, 8, mn=True, vb=151)
    a("v_lshrrev_b32 v1, 6, v0")
    a("v_and_b32 v2, 63, v0")
    a("v_readfirstlane_b32 s48, v1")
    srd(a, 32, 26, PART_BYTES, WS_PART)
    srd(a, 36, 26, YT_BYTES, WS_YT)
    srd(a, 40, 4, S * D * 2)
    srd(a, 44, 22, S * D * 2)
    a("s_mul_i32 s49, s2, 9")
    a("s_add_u32 s49, s49, s48")
    a("v_lshlrev_b32 v3, 4, v2")
    a("s_lshl_b32 s53, s49, 10")
    for j in range(16):
        r = 32 + j * 4
        a("buffer_load_dwordx4 v[%d:%d], v3, s[32:35], s53 offen" % (r, r + 3))
        if j < 15: a("s_add_u32 s53, s53, %d" % (64 * 18 * 2048))
    a("s_mul_hi_u32 s51, s49, %d" % (-(-(1 << 32) // 36)))
    a("s_mul_i32 s52, s51, 36")
    a("s_sub_u32 s52, s49, s52")
    a("s_and_b32 s50, s52, 1")
    a("s_lshr_b32 s52, s52, 1")
    a("v_and_b32 v4, 31, v2")
    a("v_lshrrev_b32 v5, 5, v2")
    a("s_lshl_b32 s55, s51, 5")
    a("v_add_u32 v12, s55, v4")
    a("s_movk_i32 s56, 1152")
    a("v_mul_lo_u32 v7, v12, s56")
    a("s_lshl_b32 s57, s52, 6")
    a("s_lshl_b32 s58, s50, 5")
    a("s_add_u32 s57, s57, s58")
    a("v_add_u32 v7, s57, v7")
    a("v_lshl_add_u32 v8, v5, 3, v7")
    for g in range(2):
        a("buffer_load_dwordx2 v[%d:%d], v8, s[40:43], 0 offen offset:%d" % (100 + 2 * g, 101 + 2 * g, g * 16))
    a("v_lshl_add_u32 v9, v5, 4, v7")
    a("s_lshl_b32 s59, s52, 5")
    a("s_lshl_b32 s58, s50, 4")
    a("s_add_u32 s59, s59, s58")
    a("s_cmp_le_u32 s52, 8"); a("s_cbranch_scc0 L_k3_mir")
    a("v_lshlrev_b32 v6, 15, v5")
    a("v_lshl_add_u32 v6, v12, 2, v6")
    a("s_lshl_b32 s54, s59, 13")
    a("s_movk_i32 s58, 8192")
    a("s_branch L_k3_yad")
    a.label("L_k3_mir")
    a("v_sub_u32 v6, 2048, v12")
    a("v_and_b32 v6, 2047, v6")
    a("v_lshlrev_b32 v6, 2, v6")
    a("v_xor_b32 v13, 1, v5")
    a("v_lshl_add_u32 v6, v13, 15, v6")
    a("s_sub_u32 s54, 572, s59")
    a("s_lshl_b32 s54, s54, 13")
    a("s_mov_b32 s58, %d" % (-8192 & 0xffffffff))
    a.label("L_k3_yad")
    for r in range(8):
        off = 8 * (r >> 2) + (r & 3)
        a("s_mul_i32 s55, s58, %d" % off)
        a("s_add_u32 s55, s55, s54")
        a("buffer_load_dword v%d, v6, s[36:39], s55 offen" % (104 + r))
    n = 16 + 2 + 8
    for j in range(16):
        a("s_waitcnt vmcnt(%d)" % (n - (j + 1)))
        for d in range(4):
            src = 32 + j * 4 + d
            e = 2 * d
            if j == 0:
                a("v_lshlrev_b32 v%d, 16, v%d" % (16 + e, src))
                a("v_and_b32 v%d, 0xffff0000, v%d" % (17 + e, src))
            else:
                a("v_lshlrev_b32 v10, 16, v%d" % src)
                a("v_and_b32 v11, 0xffff0000, v%d" % src)
                a("v_add_f32 v%d, v%d, v10" % (16 + e, 16 + e))
                a("v_add_f32 v%d, v%d, v11" % (17 + e, 17 + e))
    a("s_waitcnt vmcnt(0)")
    for g in range(2):
        for h in range(2):
            src = 100 + 2 * g + h
            e = 4 * g + 2 * h
            a("v_lshlrev_b32 v10, 16, v%d" % src)
            a("v_and_b32 v11, 0xffff0000, v%d" % src)
            a("v_add_f32 v%d, v%d, v10" % (16 + e, 16 + e))
            a("v_add_f32 v%d, v%d, v11" % (17 + e, 17 + e))
    stamp(a, 2, 1, vb=151, tid=0)
    dstamp(a, 2, 9, vb=151, tid=0)
    stamp(a, 2, 2, vb=151, tid=0)
    dstamp(a, 2, 10, vb=151, tid=0)
    a("s_waitcnt vmcnt(0)")
    for r in range(8):
        a("v_add_f32 v%d, v%d, v%d" % (16 + r, 16 + r, 104 + r))
    for d in range(4):
        a("v_cvt_pk_bf16_f32 v%d, v%d, v%d" % (32 + d, 16 + 2 * d, 17 + 2 * d))
    a("s_nop 1")
    a("v_permlane32_swap_b32 v32, v34")
    a("v_permlane32_swap_b32 v33, v35")
    a("s_nop 1")
    a("buffer_store_dwordx4 v[32:35], v9, s[44:47], 0 offen")
    stamp(a, 2, 3, vb=151, tid=0)
    dstamp(a, 2, 11, vb=151, tid=0)
    a.label("L_k3_done")
    a("s_endpgm")
    return name

def main():
    out = sys.argv[1]
    for o in sys.argv[2:]:
        if o == "stamps": OPT["stamps"] = 1
        elif o.startswith("abl="): OPT["abl"].update(o[4:].split(","))
        elif "=" in o:
            k, v = o.split("=", 1)
            OPT[k] = int(v) if v.lstrip("-").isdigit() else v.replace("+", " ")
    lds = 163840
    a = Asm()
    a.raw(HEADER.rstrip("\n"))
    a.raw("; @launch kernel=prep_kernel grid=(%d,1,1) block=(256,1,1) lds=0" % (N_LN + N_DF + N_TAB))
    a.raw("; @launch kernel=ffn_kernel grid=(256,1,1) block=(256,1,1) lds=%d" % lds)
    a.raw("; @launch kernel=fin_kernel grid=(256,1,1) block=(%d,1,1) lds=0" % (64 * K3_WAVES))
    a.raw('.amdgcn_target "amdgcn-amd-amdhsa--gfx950"')
    k1(a); k2(a); k3(a)
    a.label("L_code_end")
    big = OPT["stamps"] or OPT.get("dbgst")
    kernel_desc(a, "prep_kernel", 256 if big else 128, 96, 256 if big else 128)
    kernel_desc(a, "ffn_kernel", 512, 102, 256)
    kernel_desc(a, "fin_kernel", 160, 96, 160)
    open(out, "w").write(a.text())
if __name__ == "__main__":
    main()
```

```python
import sys, math
from asmgen import *
from sched import *

S, D, F = 2048, 576, 4608
OPT = {"B": 2, "R": 9, "abl": set(), "gcap": 3, "stamps": 0, "pf": 2, "stflags": "sc1", "xahead": 6, "pert": 0.0}
WS_XNF   = 0
WS_CF    = 4 << 20
CF_BYTES = 289 * 8192
WS_DF    = 8 << 20
DF_BYTES = 18 * 36864
WS_TAB   = 9 << 20
TAB_BYTES = 38 * 1024
WS_YT    = 12 << 20
YT_BYTES = 289 * 8192
WS_FLAG  = 10 << 20
FLAG_BYTES = 289 * 4
WS_PART  = 24 << 20
PART_BYTES = 16 * S * D * 2
WS_STAMP = 128 << 20
N_LN, N_DF, N_TAB = 128, 162, 10
PF0 = 304
N_K1 = PF0 + 256
N_FFT, N_RED = 73, 288

def srd(a, sd, sp, nbytes, off=0):
    if off:
        a("s_add_u32 s%d, s%d, %d" % (sd, sp, off))
        a("s_addc_u32 s%d, s%d, 0" % (sd + 1, sp + 1))
    else:
        a("s_mov_b32 s%d, s%d" % (sd, sp))
        a("s_mov_b32 s%d, s%d" % (sd + 1, sp + 1))
    a("s_mov_b32 s%d, %d" % (sd + 2, nbytes))
    a("s_mov_b32 s%d, 0x00020000" % (sd + 3))

def load_ptrs(a):
    a("s_load_dwordx2 s[4:5], s[0:1], 0")
    a("s_load_dwordx4 s[8:11], s[0:1], 16")
    a("s_load_dwordx2 s[12:13], s[0:1], 32")
    a("s_load_dwordx8 s[16:23], s[0:1], 48")
    a("s_load_dwordx4 s[24:27], s[0:1], 80")
    a("s_waitcnt lgkmcnt(0)")

def stamp(a, kidx, slot, sreg=88, vb=251, tid=0):
    if not OPT["stamps"]: return
    lab = a.newlabel("L_st")
    a("s_memrealtime s[%d:%d]" % (sreg, sreg + 1))
    a("s_memtime s[%d:%d]" % (sreg + 6, sreg + 7))
    a("s_waitcnt lgkmcnt(0)")
    a("v_cmp_eq_u32 vcc, %d, v0" % tid if tid <= 64 else "v_mov_b32 v%d, %d\n    v_cmp_eq_u32 vcc, v%d, v0" % (vb, tid, vb))
    a("s_and_saveexec_b64 s[%d:%d], vcc" % (sreg + 2, sreg + 3))
    a("s_cbranch_execz %s" % lab)
    a("s_lshl_b32 s%d, s2, 7" % (sreg + 4))
    a("s_add_u32 s%d, s%d, %d" % (sreg + 4, sreg + 4, WS_STAMP + kidx * 65536 + slot * 8))
    a("s_add_u32 s%d, s26, s%d" % (sreg + 4, sreg + 4))
    a("s_addc_u32 s%d, s27, 0" % (sreg + 5))
    a("v_mov_b32 v%d, s%d" % (vb + 1, sreg)); a("v_mov_b32 v%d, s%d" % (vb + 2, sreg + 1))
    a("v_mov_b32 v%d, 0" % vb)
    a("global_store_dwordx2 v%d, v[%d:%d], s[%d:%d]" % (vb, vb + 1, vb + 2, sreg + 4, sreg + 5))
    a("s_nop 1")
    a("v_mov_b32 v%d, s%d" % (vb + 1, sreg + 6)); a("v_mov_b32 v%d, s%d" % (vb + 2, sreg + 7))
    a("s_nop 1")
    a("global_store_dwordx2 v%d, v[%d:%d], s[%d:%d] offset:64" % (vb, vb + 1, vb + 2, sreg + 4, sreg + 5))
    a.label(lab)
    a("s_mov_b64 exec, s[%d:%d]" % (sreg + 2, sreg + 3))

def dstamp(a, kl, word, mn=False, sreg=88, vb=251, tid=0, mask=31):
    if not OPT.get("dbgst"): return
    lab = a.newlabel("L_ds")
    a("s_and_b32 s%d, s2, %d" % (sreg, mask))
    a("s_cmp_lg_u32 s%d, 0" % sreg)
    a("s_cbranch_scc1 %s" % lab)
    a("s_memrealtime s[%d:%d]" % (sreg, sreg + 1))
    a("s_waitcnt lgkmcnt(0)")
    if mn: a("s_not_b32 s%d, s%d" % (sreg, sreg))
    if tid <= 64: a("v_cmp_eq_u32 vcc, %d, v0" % tid)
    else:
        a("v_mov_b32 v%d, %d" % (vb, tid)); a("v_cmp_eq_u32 vcc, v%d, v0" % vb)
    a("s_and_saveexec_b64 s[%d:%d], vcc" % (sreg + 2, sreg + 3))
    a("s_cbranch_execz %s_r" % lab)
    a("s_add_u32 s%d, s24, %d" % (sreg + 4, (2 - kl) * 512))
    a("s_addc_u32 s%d, s25, 0" % (sreg + 5))
    a("v_mov_b32 v%d, %d" % (vb, word * 4))
    a("v_mov_b32 v%d, s%d" % (vb + 1, sreg))
    a("global_atomic_umax v%d, v%d, s[%d:%d]" % (vb, vb + 1, sreg + 4, sreg + 5))
    a.label("%s_r" % lab)
    a("s_mov_b64 exec, s[%d:%d]" % (sreg + 2, sreg + 3))
    a.label(lab)

def prefetch_w(a, sM, sJ, sW, vl, sector, sa, sb, srdg, srdu, srdd, vdst, vt):
    t0, t1, t2, t3 = vt, vt + 1, vt + 2, vt + 3
    a("v_mul_u32_u24 v%d, 52, v%d" % (t0, vl))
    a("v_lshrrev_b32 v%d, 8, v%d" % (t0, t0))
    a("v_mul_u32_u24 v%d, 5, v%d" % (t1, t0))
    a("v_sub_u32 v%d, v%d, v%d" % (t1, vl, t1))
    a("s_lshl_b32 s%d, s%d, 2" % (sa, sM))
    a("s_add_u32 s%d, s%d, s%d" % (sa, sa, sW))
    a("s_mul_i32 s%d, s%d, 9" % (sa, sa))
    a("v_add_u32 v%d, s%d, v%d" % (t2, sa, t0))
    a("s_movk_i32 s%d, 9216" % sb)
    a("v_mul_lo_u32 v%d, v%d, s%d" % (t2, t2, sb))
    a("v_lshl_add_u32 v%d, v%d, 7, v%d" % (t2, t1, t2))
    a("v_cmp_gt_u32 vcc, 9, v%d" % t0)
    a("v_mov_b32 v%d, 0x7ff00000" % t3)
    a("s_nop 0")
    a("v_cndmask_b32 v%d, v%d, v%d, vcc" % (t2, t3, t2))
    a("s_mul_i32 s%d, s%d, 288" % (sa, sJ))
    a("s_and_b32 s%d, s%d, 1" % (sb, sJ))
    a("s_lshl_b32 s%d, s%d, 5" % (sb, sb))
    a("s_sub_u32 s%d, s%d, s%d" % (sa, sa, sb))
    a("s_lshl_b32 s%d, s%d, 1" % (sa, sa))
    n = 0
    for srd_ in (srdg, srdu):
        a("buffer_load_dword v%d, v%d, s[%d:%d], s%d offen" % (vdst, t2, srd_, srd_ + 3, sa)); n += 1
        if sector: a("buffer_load_dword v%d, v%d, s[%d:%d], s%d offen offset:64" % (vdst, t2, srd_, srd_ + 3, sa)); n += 1
    a("v_mul_u32_u24 v%d, 57, v0" % t0)
    a("v_lshrrev_b32 v%d, 9, v%d" % (t0, t0))
    a("v_mul_u32_u24 v%d, 9, v%d" % (t1, t0))
    a("v_sub_u32 v%d, v0, v%d" % (t1, t1))
    a("s_mul_i32 s%d, s%d, 288" % (sa, sJ))
    a("s_mul_i32 s%d, s%d, 18" % (sb, sM))
    a("s_add_u32 s%d, s%d, s%d" % (sa, sa, sb))
    a("v_add_u32 v%d, s%d, v%d" % (t2, sa, t0))
    a("s_movk_i32 s%d, 1152" % sb)
    a("v_mul_lo_u32 v%d, v%d, s%d" % (t2, t2, sb))
    a("v_lshl_add_u32 v%d, v%d, 7, v%d" % (t2, t1, t2))
    a("v_cmp_gt_u32 vcc, 18, v%d" % t0)
    a("s_nop 1")
    a("v_cndmask_b32 v%d, v%d, v%d, vcc" % (t2, t3, t2))
    a("buffer_load_dword v%d, v%d, s[%d:%d], 0 offen" % (vdst, t2, srdd, srdd + 3)); n += 1
    if sector: a("buffer_load_dword v%d, v%d, s[%d:%d], 0 offen offset:64" % (vdst, t2, srdd, srdd + 3)); n += 1
    return n

def mj_from_wg(a, sM, sJ, t0, t1):
    a("s_and_b32 s%d, s2, 7" % t0)
    a("s_lshr_b32 s%d, s2, 3" % t1)
    a("s_lshr_b32 s%d, s%d, 1" % (sM, t1))
    a("s_and_b32 s%d, s%d, 1" % (t1, t1))
    a("s_lshl_b32 s%d, s%d, 1" % (sJ, t0))
    a("s_add_u32 s%d, s%d, s%d" % (sJ, sJ, t1))

def k1(a):
    name = "prep_kernel"
    kernel_begin(a, name)
    NT = N_LN + N_DF + N_TAB
    a("s_cmp_ge_u32 s2, %d" % NT); a("s_cbranch_scc1 L_k1_done")
    load_ptrs(a)
    stamp(a, 0, 0)
    dstamp(a, 0, 0, mn=True)
    if OPT.get("pad"):
        a("s_cmp_lg_u32 s2, 0"); a("s_cbranch_scc1 L_k1_nopad")
        a("s_memrealtime s[60:61]"); a("s_waitcnt lgkmcnt(0)")
        a("s_add_u32 s62, s26, %d" % (11 << 20)); a("s_addc_u32 s63, s27, 0")
        a("v_mov_b32 v10, 0"); a("v_mov_b32 v11, s60")
        a("global_store_dword v10, v11, s[62:63]")
        a.label("L_k1_nopad")
    if OPT.get("k1delay"):
        a("s_cmp_lg_u32 s2, 299"); a("s_cbranch_scc1 L_k1_nodelay")
        a("s_memrealtime s[60:61]"); a("s_waitcnt lgkmcnt(0)")
        a.label("L_k1_dl")
        a("s_memrealtime s[62:63]"); a("s_waitcnt lgkmcnt(0)")
        a("s_sub_u32 s64, s62, s60")
        a("s_cmp_lt_u32 s64, %d" % OPT["k1delay"]); a("s_cbranch_scc1 L_k1_dl")
        a.label("L_k1_nodelay")
    a("v_lshrrev_b32 v20, 6, v0")
    a("v_and_b32 v21, 63, v0")
    a("v_readfirstlane_b32 s48, v20")
    def do_prefetch(): pass
    def code_prefetch():
        lab = a.newlabel("L_nocpf")
        a("s_sub_u32 s60, s2, %d" % N_LN)
        a("s_lshr_b32 s60, s60, 3")
        a("s_cmp_ge_u32 s60, 4"); a("s_cbranch_scc1 %s" % lab)
        a("s_getpc_b64 s[56:57]")
        a.label("L_k1_pc")
        a("s_add_u32 s56, s56, ffn_kernel-L_k1_pc")
        a("s_addc_u32 s57, s57, 0")
        a("s_lshl_b32 s60, s60, 14")
        a("v_lshlrev_b32 v30, 6, v0")
        a("v_add_u32 v30, s60, v30")
        a("v_cmp_gt_u32 vcc, L_code_end-ffn_kernel, v30")
        a("s_and_saveexec_b64 s[58:59], vcc")
        a("s_cbranch_execz %s_r" % lab)
        a("global_load_dword v31, v30, s[56:57]")
        a.label("%s_r" % lab)
        a("s_mov_b64 exec, s[58:59]")
        a.label(lab)
    def w_prefetch():
        srd(a, 68, 16, D * F * 2); srd(a, 72, 18, D * F * 2); srd(a, 76, 20, D * F * 2)
        a("s_and_b32 s60, s2, 7"); a("s_lshr_b32 s61, s2, 3")
        a("v_mul_u32_u24 v90, 57, v21"); a("v_lshrrev_b32 v90, 9, v90")
        a("v_mul_u32_u24 v91, 9, v90"); a("v_sub_u32 v91, v21, v91")
        a("s_lshl_b32 s62, s61, 2"); a("s_add_u32 s62, s62, s48"); a("s_mul_i32 s62, s62, 9")
        a("v_add_u32 v91, s62, v91")
        a("s_movk_i32 s63, 9216")
        a("v_mul_lo_u32 v91, v91, s63")
        a("v_and_b32 v92, 1, v90")
        a("v_lshrrev_b32 v93, 1, v90")
        a("s_mul_i32 s63, s60, 576")
        a("v_mul_u32_u24 v94, 320, v93")
        a("v_add_u32 v94, s63, v94")
        a("v_lshl_add_u32 v95, v94, 1, v91")
        a("v_mul_u32_u24 v96, 640, v93")
        a("v_sub_u32 v96, 512, v96")
        a("v_add_u32 v96, v95, v96")
        a("v_cmp_gt_u32 vcc, 2, v93")
        a("v_mov_b32 v97, 0x7ff00000")
        a("v_cmp_eq_u32 s[64:65], 0, v92")
        a("s_nop 1")
        a("v_cndmask_b32 v95, v97, v95, vcc")
        a("v_cndmask_b32 v96, v97, v96, vcc")
        a("v_cndmask_b32 v98, v97, v95, s[64:65]")
        a("v_cndmask_b32 v99, v95, v97, s[64:65]")
        a("v_cndmask_b32 v100, v97, v96, s[64:65]")
        a("v_cndmask_b32 v101, v96, v97, s[64:65]")
        for stg in range(4):
            a("buffer_load_dword v102, v98, s[68:71], 0 offen offset:%d" % (128 * stg))
            a("buffer_load_dword v102, v99, s[72:75], 0 offen offset:%d" % (128 * stg))
        a("buffer_load_dword v102, v100, s[68:71], 0 offen")
        a("buffer_load_dword v102, v101, s[72:75], 0 offen")
        a("v_mul_u32_u24 v90, 57, v0"); a("v_lshrrev_b32 v90, 9, v90")
        a("v_mul_u32_u24 v91, 9, v90"); a("v_sub_u32 v91, v0, v91")
        a("s_mul_i32 s62, s61, 18"); a("s_mul_i32 s63, s60, 576"); a("s_add_u32 s62, s62, s63")
        a("v_add_u32 v92, s62, v90")
        a("s_movk_i32 s63, 1152")
        a("v_mul_lo_u32 v92, v92, s63")
        a("v_lshl_add_u32 v92, v91, 7, v92")
        a("v_cmp_gt_u32 vcc, 18, v90")
        a("s_nop 1")
        a("v_cndmask_b32 v92, v97, v92, vcc")
        a("buffer_load_dword v102, v92, s[76:79], 0 offen")
        a("s_mov_b32 s63, %d" % (288 * 1152))
        a("buffer_load_dword v102, v92, s[76:79], s63 offen")
    a("s_cmp_ge_u32 s2, %d" % (N_LN + N_DF + N_TAB)); a("s_cbranch_scc1 L_k1_done")
    a("s_cmp_ge_u32 s2, %d" % N_LN); a("s_cbranch_scc1 L_k1_df")
    srd(a, 32, 4, S * D * 2)
    srd(a, 36, 26, S * D * 2, WS_XNF)
    srd(a, 40, 26, CF_BYTES, WS_CF)
    a("v_lshrrev_b32 v1, 4, v0")
    a("v_and_b32 v2, 15, v0")
    a("s_lshl_b32 s3, s2, 4")
    a("v_add_u32 v1, s3, v1")
    a("s_movk_i32 s28, 1152")
    a("v_mul_lo_u32 v3, v1, s28")
    a("v_lshl_add_u32 v3, v2, 3, v3")
    for i in range(9):
        a("buffer_load_dwordx2 v[%d:%d], v3, s[32:35], 0 offen offset:%d" % (8 + 2 * i, 9 + 2 * i, i * 128))
    do_prefetch()
    a("v_lshrrev_b32 v4, 5, v1")
    a("s_mov_b32 s29, 36864")
    a("v_mul_lo_u32 v4, v4, s29")
    a("v_lshrrev_b32 v5, 2, v2")
    a("v_lshl_add_u32 v4, v5, 10, v4")
    a("v_bfe_u32 v5, v2, 1, 1")
    a("v_lshl_add_u32 v4, v5, 9, v4")
    a("v_and_b32 v5, 31, v1")
    a("v_lshl_add_u32 v4, v5, 4, v4")
    a("v_and_b32 v5, 1, v2")
    a("v_lshl_add_u32 v4, v5, 3, v4")
    npf = 0
    stamp(a, 4, 0)
    a("s_waitcnt vmcnt(%d)" % npf)
    stamp(a, 4, 1)
    if OPT["pf"]: w_prefetch()
    for i in range(18):
        a("v_lshlrev_b32 v%d, 16, v%d" % (32 + 2 * i, 8 + i))
        a("v_and_b32 v%d, 0xffff0000, v%d" % (33 + 2 * i, 8 + i))
    a("v_add_f32 v70, v32, v33")
    a("v_add_f32 v71, v34, v35")
    for i in range(4, 36, 2):
        a("v_add_f32 v70, v70, v%d" % (32 + i))
        a("v_add_f32 v71, v71, v%d" % (33 + i))
    a("v_add_f32 v70, v70, v71")
    def row_sum(r):
        for sh in (8, 4, 2, 1):
            a("s_nop 1")
            a("v_add_f32_dpp v%d, v%d, v%d row_ror:%d row_mask:0xf bank_mask:0xf" % (r, r, r, sh))
    row_sum(70)
    a("v_mul_f32 v70, 0x%08x, v70" % f2u(1.0 / 576))
    a("v_mov_b32 v72, 0"); a("v_mov_b32 v73, 0")
    for i in range(0, 36, 2):
        a("v_sub_f32 v74, v%d, v70" % (32 + i))
        a("v_sub_f32 v75, v%d, v70" % (33 + i))
        a("v_fmac_f32 v72, v74, v74")
        a("v_fmac_f32 v73, v75, v75")
    a("v_add_f32 v72, v72, v73")
    row_sum(72)
    a("v_mul_f32 v72, 0x%08x, v72" % f2u(1.0 / 576))
    a("v_cvt_pk_bf16_f32 v76, v70, v72")
    a("v_lshlrev_b32 v70, 16, v76")
    a("v_and_b32 v72, 0xffff0000, v76")
    a("v_add_f32 v72, 0x%08x, v72" % f2u(1e-5))
    a("v_cvt_pk_bf16_f32 v76, v72, v72")
    a("v_lshlrev_b32 v72, 16, v76")
    a("v_sqrt_f32 v72, v72")
    a("s_nop 0")
    a("v_cvt_pk_bf16_f32 v76, v72, v72")
    a("v_lshlrev_b32 v72, 16, v76")
    a("v_rcp_f32 v72, v72")
    a("v_mov_b32 v77, 0")
    for i in range(18):
        x0, x1 = 32 + 2 * i, 33 + 2 * i
        a("v_sub_f32 v%d, v%d, v70" % (x0, x0))
        a("v_sub_f32 v%d, v%d, v70" % (x1, x1))
        a("v_cvt_pk_bf16_f32 v76, v%d, v%d" % (x0, x1))
        a("v_lshlrev_b32 v%d, 16, v76" % x0)
        a("v_and_b32 v%d, 0xffff0000, v76" % x1)
        a("v_mul_f32 v%d, v%d, v72" % (x0, x0))
        a("v_mul_f32 v%d, v%d, v72" % (x1, x1))
        a("v_cvt_pk_bf16_f32 v%d, v%d, v%d" % (8 + i, x0, x1))
        a("v_lshlrev_b32 v%d, 16, v%d" % (x0, 8 + i))
        a("v_and_b32 v%d, 0xffff0000, v%d" % (x1, 8 + i))
        a("v_sub_f32 v%d, v%d, v%d" % (x0, x0, x1))
        a("v_add_f32 v77, v77, v%d" % x0)
    stamp(a, 4, 2)
    for i in range(9):
        a("s_mov_b32 s30, %d" % (i * 4096))
        a("buffer_store_dwordx2 v[%d:%d], v4, s[36:39], s30 offen %s" % (8 + 2 * i, 9 + 2 * i, OPT.get("k1st", "")))
    row_sum(77)
    a("v_cvt_pk_bf16_f32 v77, v77, v77")
    a("v_mov_b32 v78, 0")
    a("v_lshlrev_b32 v79, 1, v1")
    a("v_add_u32 v79, %d, v79" % (288 * 8192))
    a("v_cmp_eq_u32 vcc, 0, v2")
    a("v_mov_b32 v80, 0x7ff00000")
    a("s_nop 0")
    a("v_cndmask_b32 v79, v80, v79, vcc")
    a("buffer_store_short v77, v79, s[40:43], 0 offen")
    a("s_movk_i32 s30, 4096")
    a("buffer_store_short v78, v79, s[40:43], s30 offen")
    stamp(a, 0, 1)
    dstamp(a, 0, 1)
    stamp(a, 4, 3)
    a("s_branch L_k1_done")
    a.label("L_k1_df")
    a("s_cmp_ge_u32 s2, %d" % (N_LN + N_DF)); a("s_cbranch_scc1 L_k1_tab")
    a("s_sub_u32 s28, s2, %d" % N_LN)
    a("s_lshl_b32 s28, s28, 2")
    a("s_add_u32 s28, s28, s48")
    a("s_mul_hi_u32 s29, s28, %d" % (-(-(1 << 32) // 36)))
    a("s_mul_i32 s30, s29, 36")
    a("s_sub_u32 s30, s28, s30")
    a("s_cmp_ge_u32 s29, 9")
    a("s_cselect_b32 s32, s12, s10")
    a("s_cselect_b32 s33, s13, s11")
    a("s_cselect_b32 s31, 9, 0")
    a("s_mov_b32 s34, %d" % (D * D * 2)); a("s_mov_b32 s35, 0x00020000")
    a("s_sub_u32 s29, s29, s31")
    srd(a, 36, 26, DF_BYTES, WS_DF)
    a("v_and_b32 v1, 31, v21")
    a("s_lshl_b32 s29, s29, 5")
    a("v_add_u32 v1, s29, v1")
    a("s_movk_i32 s31, 1152")
    a("v_mul_lo_u32 v1, v1, s31")
    a("v_lshrrev_b32 v2, 5, v21")
    a("v_lshl_add_u32 v1, v2, 4, v1")
    a("s_lshl_b32 s30, s30, 5")
    a("buffer_load_dwordx4 v[8:11], v1, s[32:35], s30 offen")
    if OPT.get("cpf", 1): code_prefetch()
    a("v_lshlrev_b32 v3, 4, v21")
    a("s_lshl_b32 s28, s28, 10")
    a("s_waitcnt vmcnt(0)")
    a("buffer_store_dwordx4 v[8:11], v3, s[36:39], s28 offen %s" % OPT.get("k1st", ""))
    stamp(a, 0, 2)
    a("s_branch L_k1_done")
    a.label("L_k1_tab")
    a("s_sub_u32 s28, s2, %d" % (N_LN + N_DF))
    a("s_lshl_b32 s28, s28, 2")
    a("s_add_u32 s28, s28, s48")
    a("s_cmp_eq_u32 s28, 38"); a("s_cbranch_scc0 L_k1_tab2")
    srd(a, 36, 26, 2048, WS_FLAG)
    a("v_lshlrev_b32 v3, 4, v21")
    a("v_mov_b32 v8, 0"); a("v_mov_b32 v9, 0"); a("v_mov_b32 v10, 0"); a("v_mov_b32 v11, 0")
    a("buffer_store_dwordx4 v[8:11], v3, s[36:39], 0 offen")
    a("buffer_store_dwordx4 v[8:11], v3, s[36:39], 0 offen offset:1024")
    a("s_branch L_k1_done")
    a.label("L_k1_tab2")
    a("s_cmp_ge_u32 s28, 38"); a("s_cbranch_scc1 L_k1_done")
    srd(a, 36, 26, TAB_BYTES, WS_TAB)
    a("v_and_b32 v1, 31, v21")
    a("v_lshrrev_b32 v2, 5, v21")
    a("v_lshlrev_b32 v3, 4, v21")
    a("s_lshl_b32 s29, s28, 10")
    a("s_cmp_ge_u32 s28, 22"); a("s_cbranch_scc1 L_k1_t3")
    a("s_cmp_ge_u32 s28, 6"); a("s_cbranch_scc1 L_k1_t2")
    a("s_and_b32 s30, s28, 1")
    a("s_lshl_b32 s30, s30, 4")
    a("v_lshl_add_u32 v4, v2, 3, s30")
    for j in range(8):
        a("v_add_u32 v5, %d, v4" % j)
        a("v_mul_u32_u24 v5, v5, v1")
        a("v_and_b32 v5, 31, v5")
        a("v_cvt_f32_u32 v5, v5")
        a("v_mul_f32 v5, 0x%08x, v5" % f2u(1.0 / 32))
        a("v_cos_f32 v%d, v5" % (8 + j))
        a("v_sin_f32 v%d, v5" % (16 + j))
    a("s_nop 0")
    a("s_cmp_lt_u32 s28, 2"); a("s_cbranch_scc1 L_k1_t1p")
    for j in range(8): a("v_mov_b32 v%d, v%d" % (8 + j, 16 + j))
    a("s_cmp_lt_u32 s28, 4"); a("s_cbranch_scc1 L_k1_t1p")
    for j in range(8): a("v_sub_f32 v%d, 0, v%d" % (8 + j, 16 + j))
    a.label("L_k1_t1p")
    for d in range(4): a("v_cvt_pk_bf16_f32 v%d, v%d, v%d" % (24 + d, 8 + 2 * d, 9 + 2 * d))
    a("buffer_store_dwordx4 v[24:27], v3, s[36:39], s29 offen")
    a("s_branch L_k1_done")
    a.label("L_k1_t2")
    a("s_sub_u32 s30, s28, 6")
    a("s_lshr_b32 s31, s30, 3")
    a("s_and_b32 s30, s30, 7")
    a("s_lshl_b32 s31, s31, 5")
    a("s_lshr_b32 s40, s30, 1"); a("s_lshl_b32 s40, s40, 3")
    a("s_add_u32 s31, s31, s40")
    a("s_and_b32 s40, s30, 1"); a("s_lshl_b32 s40, s40, 1")
    a("s_add_u32 s31, s31, s40")
    a("v_lshl_add_u32 v4, v2, 2, s31")
    for i in range(2):
        a("v_add_u32 v5, %d, v4" % i)
        a("v_mul_u32_u24 v5, v5, v1")
        a("v_cvt_f32_u32 v5, v5")
        a("v_mul_f32 v5, 0x%08x, v5" % f2u(1.0 / 2048))
        a("v_cos_f32 v%d, v5" % (24 + 2 * i))
        a("v_sin_f32 v%d, v5" % (25 + 2 * i))
    a("s_nop 1")
    a("buffer_store_dwordx4 v[24:27], v3, s[36:39], s29 offen")
    a("s_branch L_k1_done")
    a.label("L_k1_t3")
    a("s_sub_u32 s30, s28, 22")
    a("s_lshr_b32 s31, s30, 3")
    a("s_bfe_u32 s40, s30, 0x10002")
    a("s_and_b32 s30, s30, 3")
    a("s_lshl_b32 s40, s40, 5")
    a("v_add_u32 v1, s40, v1")
    a("s_lshl_b32 s30, s30, 4")
    a("v_lshl_add_u32 v4, v2, 2, s30")
    for j in range(8):
        a("v_add_u32 v5, %d, v4" % (j if j < 4 else 8 + j - 4))
        a("v_mul_u32_u24 v5, v5, v1")
        a("v_and_b32 v5, 63, v5")
        a("v_cvt_f32_u32 v5, v5")
        a("v_mul_f32 v5, 0x%08x, v5" % f2u(1.0 / 64))
        a("v_cos_f32 v%d, v5" % (8 + j))
        a("v_sin_f32 v%d, v5" % (16 + j))
    a("s_nop 0")
    a("s_cmp_eq_u32 s31, 0"); a("s_cbranch_scc1 L_k1_t3p")
    for j in range(8): a("v_mov_b32 v%d, v%d" % (8 + j, 16 + j))
    a.label("L_k1_t3p")
    for d in range(4): a("v_cvt_pk_bf16_f32 v%d, v%d, v%d" % (24 + d, 8 + 2 * d, 9 + 2 * d))
    a("buffer_store_dwordx4 v[24:27], v3, s[36:39], s29 offen")
    a.label("L_k1_done")
    a("s_endpgm")
    return name


def fft_column(a, kidx):
    srd(a, 32, 26, CF_BYTES, WS_CF)
    srd(a, 36, 26, TAB_BYTES, WS_TAB)
    srd(a, 40, 26, YT_BYTES, WS_YT)
    a("v_lshrrev_b32 v3, 3, v2")
    a("v_lshlrev_b32 v3, 7, v3")
    a("v_bfe_u32 v4, v2, 4, 1")
    a("v_lshlrev_b32 v4, 1, v4")
    a("v_bfe_u32 v5, v2, 1, 2")
    a("v_xor_b32 v5, v5, v4")
    a("v_lshl_add_u32 v3, v5, 5, v3")
    a("v_and_b32 v5, 1, v2")
    a("v_lshl_add_u32 v3, v5, 4, v3")
    a("s_lshl_b32 s50, s49, 13")
    for i in range(8):
        a("s_add_u32 s52, s50, %d" % (i * 1024))
        a("s_add_u32 m0, s51, %d" % (i * 1024))
        a("s_nop 0")
        a("buffer_load_dwordx4 v3, s[32:35], s52 offen sc1 lds")
    a("v_lshlrev_b32 v6, 4, v2")
    for i in range(6):
        a("s_movk_i32 s52, %d" % (i * 1024))
        a("buffer_load_dwordx4 v[%d:%d], v6, s[36:39], s52 offen" % (64 + 4 * i, 67 + 4 * i))
    for i in range(16):
        a("s_mov_b32 s52, %d" % ((22 + i) * 1024))
        a("buffer_load_dwordx4 v[%d:%d], v6, s[36:39], s52 offen" % (136 + 4 * i, 139 + 4 * i))
    a("v_bfe_u32 v8, v2, 4, 1")
    a("v_bfe_u32 v9, v2, 5, 1")
    a("v_bfe_u32 v10, v2, 2, 2")
    a("v_and_b32 v11, 3, v2")
    a("v_lshl_add_u32 v12, v9, 3, v10")
    a("v_lshlrev_b32 v12, 7, v12")
    a("v_lshl_add_u32 v12, v11, 3, v12")
    a("v_add_u32 v12, s51, v12")
    a("v_and_b32 v13, 2, v10")
    a("v_xor_b32 v14, v8, v13")
    a("v_lshl_add_u32 v16, v14, 5, v12")
    a("v_xor_b32 v14, 2, v14")
    a("v_lshl_add_u32 v17, v14, 5, v12")
    a("v_and_b32 v18, 31, v2")
    a("v_cvt_f32_u32 v18, v18")
    a("v_mul_f32 v18, 0x%08x, v18" % f2u(1.0 / 2048))
    a("v_cvt_f32_u32 v19, v9")
    a("v_mul_f32 v19, 4.0, v19")
    a("v_mul_f32 v19, v19, v18")
    a("s_waitcnt vmcnt(22)")
    C0, C1, S0, S1, N0, N1 = 64, 68, 72, 76, 80, 84
    for rt in range(2):
        for kk in range(4):
            p, h = kk >> 1, kk & 1
            for q in range(2):
                r = 200 + 16 * rt + 4 * kk + 2 * q
                a("ds_read_b64_tr_b16 v[%d:%d], v%d offset:%d" % (r, r + 1, 16 + rt, p * 4096 + h * 2048 + q * 512))
    a("s_waitcnt vmcnt(16) lgkmcnt(0)")
    br = [C0, C1, S0, S1]; bi = [N0, N1, C0, C1]
    UR = [88, 232]
    UI = [104, 120]
    for rt in range(2):
        ur, ui = UR[rt], UI[rt]
        for kk in range(4):
            ar = 200 + 16 * rt + 4 * kk
            a("v_mfma_f32_32x32x16_bf16 v[%d:%d], v[%d:%d], v[%d:%d], %s" % (ur, ur + 15, ar, ar + 3, br[kk], br[kk] + 3, "0" if kk == 0 else "v[%d:%d]" % (ur, ur + 15)))
            a("v_mfma_f32_32x32x16_bf16 v[%d:%d], v[%d:%d], v[%d:%d], %s" % (ui, ui + 15, ar, ar + 3, bi[kk], bi[kk] + 3, "0" if kk == 0 else "v[%d:%d]" % (ui, ui + 15)))
    for rt in range(2):
        ur, ui = UR[rt], UI[rt]
        if rt == 1: a("s_nop 7")
        for r in range(0, 16, 2):
            for i in range(2):
                rr = r + i
                s2c = 32 * rt + 8 * (rr >> 2) + (rr & 3)
                a("v_fmamk_f32 v%d, v18, 0x%08x, v19" % (52 + i, f2u(float(s2c))))
            a("v_cos_f32 v54, v52"); a("v_sin_f32 v56, v52")
            a("v_cos_f32 v55, v53"); a("v_sin_f32 v57, v53")
            for i in range(2):
                rr = r + i
                a("v_mul_f32 v%d, v%d, v%d" % (58 + i, ur + rr, 54 + i))
                a("v_mul_f32 v%d, v%d, v%d" % (62 + i, ui + rr, 54 + i))
            for i in range(2):
                rr = r + i
                a("v_fma_f32 v%d, v%d, v%d, v%d" % (58 + i, ui + rr, 56 + i, 58 + i))
                a("v_fma_f32 v%d, -v%d, v%d, v%d" % (62 + i, ur + rr, 56 + i, 62 + i))
            half, dd = r >> 3, (r >> 1) & 3
            base = 20 + 8 * (rt * 2 + half)
            a("v_cvt_pk_bf16_f32 v%d, v58, v59" % (base + dd))
            a("v_cvt_pk_bf16_f32 v%d, v62, v63" % (base + 4 + dd))
    a("s_waitcnt vmcnt(0)")
    a("s_nop 1")
    for part in range(2):
        for tt in range(2):
            y = 88 + 16 * tt
            for rh in range(4):
                ac = 136 + 4 * (part * 8 + tt * 4 + rh)
                vb = 20 + 8 * rh + 4 * part
                a("v_mfma_f32_32x32x16_bf16 v[%d:%d], v[%d:%d], v[%d:%d], %s" % (y, y + 15, ac, ac + 3, vb, vb + 3, "0" if (part == 0 and rh == 0) else "v[%d:%d]" % (y, y + 15)))
    a("v_and_b32 v4, 31, v2")
    a("v_lshlrev_b32 v4, 2, v4")
    a("v_lshrrev_b32 v5, 5, v2")
    a("v_lshl_add_u32 v4, v5, 9, v4")
    a("v_add_u32 v4, s51, v4")
    a("v_add_u32 v7, s51, v6")
    a("s_nop 15"); a("s_nop 3")
    for tt in range(2):
        for r in range(16):
            a("ds_write_b32 v4, v%d offset:%d" % (88 + 16 * tt + r, tt * 4096 + (8 * (r >> 2) + (r & 3)) * 128))
    a("s_waitcnt lgkmcnt(0)")
    for i in range(8):
        a("ds_read_b128 v[%d:%d], v7 offset:%d" % (136 + 4 * i, 139 + 4 * i, i * 1024))
    for i in range(8):
        a("s_waitcnt lgkmcnt(%d)" % (7 - i))
        a("s_add_u32 s52, s50, %d" % (i * 1024))
        a("buffer_store_dwordx4 v[%d:%d], v6, s[40:43], s52 offen %s" % (136 + 4 * i, 139 + 4 * i, OPT.get("ytst", "sc1")))

ACC = [16, 80]
XOV = 144
AF = 176
GT = 200
HP = 216
V_LANE16 = 1
V_DM0, V_DM1 = 2, 3
V_DH0, V_DH1 = 4, 5
V_TR = [6, 7, 8, 9]
V_TRH = [10, 11]
V_H = 12
V_HH = 13
V_C0 = 14
V_D2 = 224
V_TR2 = [225, 226, 227, 228]
V_HR = 229
V_CR, V_CG = 231, 254
V_CF = 230
V_LN, V_T1, V_T2 = 248, 249, 250
BR = 232
S_W = 32; S_X = 36; S_D = 40; S_P = 44
S_WAVE, S_TM, S_FH, S_M, S_J = 48, 49, 50, 51, 52
S_FB, S_FHB = 53, 54
S_LDSW = 55
S_COL = [56, 57, 58, 59, 60]
S_OFF = 61; S_T0 = 62; S_T1 = 63; S_C1 = 64
S_PB = 65; S_LDS2 = 66
S_WD0, S_WD1, S_OFF2 = 67, 68, 69
S_XB = 70
S_DF = 72
S_CF = 76
S_DFB = 80; S_CFB = 81
S_ROW = 4
S_ROT = 82; S_RB = 83
S_CNT = 86; S_DBG = 96

def xreg(ks, t):
    i = ks * 2 + t
    if i < 64: return "a[%d:%d]" % (4 * i, 4 * i + 3)
    r = XOV + 4 * (i - 64)
    return "v[%d:%d]" % (r, r + 3)

def gelu_items(accbase, tiles):
    items = []
    c1 = "s%d" % S_C1
    for n, (ti, off, areg) in enumerate(tiles):
        base = accbase + 16 * ti
        hp = HP + 4 * (n & 1)
        for pr in range(4):
            g0, g1 = base + 2 * pr, base + 2 * pr + 1
            u0, u1 = g0 + 8, g1 + 8
            t0, t1 = GT + 4 * (pr & 1), GT + 4 * (pr & 1) + 1
            m0, m1 = t0 + 2, t0 + 3
            items += [
                "v_mul_f32 v%d, v%d, v%d" % (t0, g0, g0),
                "v_mul_f32 v%d, v%d, v%d" % (t1, g1, g1),
                "v_fma_f32 v%d, v%d, %s, v%d" % (t0, t0, c1, V_C0),
                "v_fma_f32 v%d, v%d, %s, v%d" % (t1, t1, c1, V_C0),
                "v_mul_f32 v%d, v%d, v%d" % (t0, t0, g0),
                "v_mul_f32 v%d, v%d, v%d" % (t1, t1, g1),
                "v_exp_f32 v%d, v%d" % (t0, t0),
                "v_exp_f32 v%d, v%d" % (t1, t1),
                "v_mul_f32 v%d, v%d, v%d" % (m0, g0, u0),
                "v_mul_f32 v%d, v%d, v%d" % (m1, g1, u1),
                "v_add_f32 v%d, 1.0, v%d" % (t0, t0),
                "v_add_f32 v%d, 1.0, v%d" % (t1, t1),
                "v_rcp_f32 v%d, v%d" % (t0, t0),
                "v_rcp_f32 v%d, v%d" % (t1, t1),
                "v_mul_f32 v%d, v%d, v%d" % (m0, m0, t0),
                "v_mul_f32 v%d, v%d, v%d" % (m1, m1, t1),
                "v_cvt_pk_bf16_f32 v%d, v%d, v%d" % (hp + pr, m0, m1),
            ]
        items.append(("lds", "ds_write_b128 v%d, v[%d:%d] offset:%d" % (areg, hp, hp + 3, off), "hw"))
    return items

def k2(a):
    R = OPT["R"]; ABLS = OPT["abl"]
    HB = R * 8192
    name = "ffn_kernel"
    kernel_begin(a, name)
    a("s_cmp_ge_u32 s2, 256"); a("s_cbranch_scc1 L_ffn_done")
    load_ptrs(a)
    stamp(a, 1, 0)
    dstamp(a, 1, 2, mn=True)
    st = Stream(a)
    def emit_item(it):
        if isinstance(it, tuple):
            kind = it[0]
            if kind == "lds": st.lds(it[1], it[2])
            elif kind == "vm": st.vmem(it[1], it[2])
            elif kind == "bar":
                st.wait(vm=it[1])
                if "nobar" not in ABLS: st("s_barrier")
            else: raise ValueError(kind)
        elif isinstance(it, list):
            for x in it: emit_item(x)
        else:
            st(it)
    a("v_lshrrev_b32 v20, 6, v0")
    a("v_and_b32 v21, 63, v0")
    a("v_readfirstlane_b32 s%d, v20" % S_WAVE)
    mj_from_wg(a, S_M, S_J, S_T0, S_T1)
    a("s_lshr_b32 s%d, s%d, 1" % (S_TM, S_WAVE))
    a("s_and_b32 s%d, s%d, 1" % (S_FH, S_WAVE))
    a("s_mul_i32 s%d, s%d, 288" % (S_T0, S_J))
    a("s_lshl_b32 s%d, s%d, 5" % (S_FB, S_T1))
    a("s_add_u32 s%d, s%d, s%d" % (S_FB, S_FB, S_T0))
    a("s_cmp_eq_u32 s%d, 0" % S_T1)
    a("s_cselect_b32 s%d, 256, 0" % S_FHB)
    a("s_add_u32 s%d, s%d, s%d" % (S_FHB, S_FHB, S_T0))
    for s_ in range(4):
        a("s_add_u32 s%d, s%d, %d" % (S_COL[s_], S_FB, 64 * s_))
        a("s_lshl_b32 s%d, s%d, 1" % (S_COL[s_], S_COL[s_]))
    a("s_lshl_b32 s%d, s%d, 5" % (S_COL[4], S_T1))
    a("s_sub_u32 s%d, s%d, s%d" % (S_COL[4], S_FHB, S_COL[4]))
    a("s_lshl_b32 s%d, s%d, 1" % (S_COL[4], S_COL[4]))
    a("s_cmp_ge_u32 s%d, 2" % S_WAVE)
    a("s_cselect_b32 s%d, s18, s16" % S_W)
    a("s_cselect_b32 s%d, s19, s17" % (S_W + 1))
    a("s_mov_b32 s%d, %d" % (S_W + 2, D * F * 2)); a("s_mov_b32 s%d, 0x00020000" % (S_W + 3))
    srd(a, S_X, 26, S * D * 2, WS_XNF)
    a("s_lshl_b32 s%d, s%d, 11" % (S_LDSW, S_WAVE))
    a("v_lshlrev_b32 v%d, 4, v21" % V_LANE16)
    a("v_lshrrev_b32 v22, 3, v21")
    a("s_lshl_b32 s%d, s%d, 4" % (S_T0, S_FH))
    a("v_add_u32 v22, s%d, v22" % S_T0)
    a("s_movk_i32 s%d, 9216" % S_T0)
    a("v_mul_lo_u32 v22, v22, s%d" % S_T0)
    a("v_bfe_u32 v23, v21, 4, 1")
    a("s_lshl_b32 s%d, s%d, 1" % (S_T0, S_TM))
    a("v_or_b32 v23, s%d, v23" % S_T0)
    a("v_bfe_u32 v24, v21, 1, 2")
    a("v_xor_b32 v24, v24, v23")
    a("v_and_b32 v25, 1, v21")
    a("v_lshlrev_b32 v25, 4, v25")
    a("v_lshl_add_u32 v25, v24, 5, v25")
    a("v_add_u32 v%d, v22, v25" % V_DM0)
    a("v_add_u32 v%d, %d, v%d" % (V_DM1, 8 * 9216, V_DM0))
    a("s_lshl_b32 s%d, s%d, 2" % (S_T0, S_M))
    a("s_lshl_b32 s%d, s%d, 1" % (S_T1, S_TM))
    a("s_add_u32 s%d, s%d, s%d" % (S_T0, S_T0, S_T1))
    a("s_mul_i32 s%d, s%d, 36864" % (S_XB, S_T0))
    srd(a, S_D, 20, D * F * 2)
    if OPT.get("rot", 1):
        a("s_mul_i32 s%d, s%d, 18" % (S_ROT, S_M))
        a("s_lshr_b32 s%d, s%d, 4" % (S_ROT, S_ROT))
    else:
        a("s_mov_b32 s%d, 0" % S_ROT)
    def row_entry(s_):
        if s_ == 0:
            a("s_mul_i32 s%d, s%d, %d" % (S_ROW, S_ROT, 32 * 9216))
        else:
            a("s_add_u32 s%d, s%d, %d" % (S_ROW + s_, S_ROW + s_ - 1, 32 * 9216))
            a("s_cmp_eq_u32 s%d, %d" % (S_ROW + s_, 18 * 32 * 9216))
            a("s_cselect_b32 s%d, 0, s%d" % (S_ROW + s_, S_ROW + s_))

    def dma_items(g):
        stg, s_ = divmod(g, 18)
        if stg > 4: return []
        if "nodma" in ABLS and g >= 8: return []
        slot = g % R
        v0_, v1_ = (V_DH0, V_DH1) if stg == 4 else (V_DM0, V_DM1)
        g0 = ["s_add_u32 s%d, s%d, s%d" % (S_OFF, S_COL[stg], S_ROW + s_),
              "s_add_u32 m0, s%d, %d" % (S_LDSW, slot * 8192),
              "NOPSLOT",
              ("vm", "buffer_load_dwordx4 v%d, s[%d:%d], s%d offen lds" % (v0_, S_W, S_W + 3, S_OFF), ("W", g))]
        g1 = ["s_add_u32 m0, s%d, %d" % (S_LDSW, slot * 8192 + 1024),
              "NOPSLOT",
              ("vm", "buffer_load_dwordx4 v%d, s[%d:%d], s%d offen lds" % (v1_, S_W, S_W + 3, S_OFF), ("W", g))]
        return [g0, g1]
    def emit_group(grp, filler=None):
        for it in grp:
            if it == "NOPSLOT":
                if not (filler and filler()): st("s_nop 0")
            else: emit_item(it)
    def xload_items(ks):
        out = []
        for t in range(2):
            sl = ks // 2
            out.append(["s_mul_hi_u32 s%d, s%d, %d" % (S_OFF2, S_ROW + sl, -(-(1 << 32) // 144)),
                        "s_add_u32 s%d, s%d, s%d" % (S_OFF2, S_OFF2, S_XB),
                        "s_add_u32 s%d, s%d, %d" % (S_OFF2, S_OFF2, t * 36864 + (ks & 1) * 1024),
                        ("vm", "buffer_load_dwordx4 %s, v%d, s[%d:%d], s%d offen" % (xreg(ks, t), V_LANE16, S_X, S_X + 3, S_OFF2), ("X", ks))])
        return out
    NPRE = R - 1
    XA = OPT["xahead"]
    for s_ in range(NPRE):
        row_entry(s_)
        for grp in dma_items(s_): emit_group(grp)
        for ks in (2 * s_, 2 * s_ + 1):
            if ks < XA:
                for it in xload_items(ks): emit_item(it)
    for s_ in range(NPRE, 18): row_entry(s_)
    srd(a, S_P, 26, PART_BYTES, WS_PART)
    srd(a, S_DF, 26, DF_BYTES, WS_DF)
    srd(a, S_CF, 26, CF_BYTES, WS_CF)
    a("s_lshl_b32 s%d, s%d, 10" % (S_LDS2, S_WAVE))
    a("s_mov_b32 s%d, 0x%08x" % (S_C1, f2u(-2.0 * 0.7978845608028654 * 1.4426950408889634 * 0.044715)))
    a("v_mov_b32 v%d, 0x%08x" % (V_C0, f2u(-2.0 * 0.7978845608028654 * 1.4426950408889634)))
    a("v_lshrrev_b32 v24, 1, v24")
    a("s_and_b32 s%d, s%d, 1" % (S_T0, S_J))
    a("v_cmp_eq_u32 vcc, s%d, v24" % S_T0)
    a("v_mov_b32 v26, 0x7ff00000")
    a("s_nop 0")
    a("v_cndmask_b32 v%d, v26, v%d, vcc" % (V_DH0, V_DM0))
    a("v_cndmask_b32 v%d, v26, v%d, vcc" % (V_DH1, V_DM1))
    a("v_bfe_u32 v22, v21, 4, 1")
    a("v_bfe_u32 v23, v21, 5, 1")
    a("v_bfe_u32 v24, v21, 2, 2")
    a("v_and_b32 v25, 3, v21")
    a("v_lshlrev_b32 v26, 12, v22")
    a("v_lshl_add_u32 v27, v23, 3, v24")
    a("v_lshl_add_u32 v26, v27, 7, v26")
    a("v_lshl_add_u32 v26, v25, 3, v26")
    a("v_lshrrev_b32 v27, 1, v24")
    a("v_lshl_or_b32 v27, v22, 1, v27")
    a("s_lshl_b32 s%d, s%d, 1" % (S_T0, S_FH))
    a("v_xor_b32 v28, s%d, v27" % S_T0)
    a("v_lshl_add_u32 v%d, v28, 5, v26" % V_TR[0])
    a("v_xor_b32 v28, 1, v28")
    a("v_lshl_add_u32 v%d, v28, 5, v26" % V_TR[1])
    a("v_add_u32 v%d, 49152, v%d" % (V_TR[2], V_TR[0]))
    a("v_add_u32 v%d, 49152, v%d" % (V_TR[3], V_TR[1]))
    a("s_and_b32 s%d, s%d, 1" % (S_T0, S_J))
    a("s_lshl_b32 s%d, s%d, 1" % (S_T0, S_T0))
    a("s_add_u32 s%d, s%d, s%d" % (S_T0, S_T0, S_FH))
    a("v_xor_b32 v28, s%d, v27" % S_T0)
    a("v_lshl_add_u32 v%d, v28, 5, v26" % V_TRH[0])
    a("v_add_u32 v%d, 49152, v%d" % (V_TRH[1], V_TRH[0]))
    a("s_mul_i32 s%d, s%d, 36" % (S_T0, S_TM))
    a("s_lshl_b32 s%d, s%d, 1" % (S_T1, S_FH))
    a("s_add_u32 s%d, s%d, s%d" % (S_T1, S_T1, S_T0))
    a("s_lshl_b32 s%d, s%d, 10" % (S_T1, S_T1))
    a("s_add_u32 s%d, s%d, %d" % (S_T1, S_T1, HB))
    a("v_add_u32 v%d, s%d, v%d" % (V_H, S_T1, V_LANE16))
    a("s_add_u32 s%d, s%d, 16" % (S_T1, S_T0))
    a("s_add_u32 s%d, s%d, s%d" % (S_T1, S_T1, S_FH))
    a("s_lshl_b32 s%d, s%d, 10" % (S_T1, S_T1))
    a("s_add_u32 s%d, s%d, %d" % (S_T1, S_T1, HB))
    a("v_add_u32 v%d, s%d, v%d" % (V_HH, S_T1, V_LANE16))
    a("s_lshl_b32 s%d, s%d, 10" % (S_T1, S_T0))
    a("s_add_u32 s%d, s%d, %d" % (S_T1, S_T1, HB))
    a("v_add_u32 v%d, s%d, v%d" % (V_HR, S_T1, V_LANE16))
    a("v_lshrrev_b32 v22, 3, v21")
    a("s_lshl_b32 s%d, s%d, 3" % (S_T0, S_WAVE))
    a("v_add_u32 v22, s%d, v22" % S_T0)
    a("s_movk_i32 s%d, 1152" % S_T0)
    a("v_mul_lo_u32 v22, v22, s%d" % S_T0)
    a("v_bfe_u32 v23, v21, 4, 1")
    a("v_lshlrev_b32 v23, 1, v23")
    a("v_bfe_u32 v24, v21, 1, 2")
    a("v_xor_b32 v24, v24, v23")
    a("v_and_b32 v25, 1, v21")
    a("v_lshlrev_b32 v25, 4, v25")
    a("v_lshl_add_u32 v25, v24, 5, v25")
    a("v_add_u32 v%d, v22, v25" % V_D2)
    a("v_bfe_u32 v22, v21, 4, 1")
    a("v_bfe_u32 v23, v21, 5, 1")
    a("v_bfe_u32 v24, v21, 2, 2")
    a("v_and_b32 v25, 3, v21")
    a("v_lshl_add_u32 v26, v23, 2, v24")
    a("v_lshlrev_b32 v26, 7, v26")
    a("v_lshl_add_u32 v26, v25, 3, v26")
    a("v_and_b32 v27, 2, v24")
    a("s_lshl_b32 s%d, s%d, 1" % (S_T0, S_FH))
    a("v_or_b32 v28, s%d, v22" % S_T0)
    a("v_xor_b32 v28, v28, v27")
    a("v_lshl_add_u32 v%d, v28, 5, v26" % V_TR2[0])
    for b in range(1, 4):
        a("v_add_u32 v%d, %d, v%d" % (V_TR2[b], 36864 * b, V_TR2[0]))
    a("s_lshl_b32 s%d, s%d, 4" % (S_T0, S_J))
    a("s_add_u32 s%d, s%d, s%d" % (S_T0, S_T0, S_M))
    a("s_lshl_b32 s%d, s%d, 2" % (S_T0, S_T0))
    a("s_lshl_b32 s%d, s%d, 1" % (S_T1, S_TM))
    a("s_add_u32 s%d, s%d, s%d" % (S_T0, S_T0, S_T1))
    a("s_mul_i32 s%d, s%d, %d" % (S_PB, S_T0, 18 * 2048))
    a("s_lshl_b32 s%d, s%d, 11" % (S_T1, S_FH))
    a("s_add_u32 s%d, s%d, s%d" % (S_PB, S_PB, S_T1))
    a("s_mul_i32 s%d, s%d, 1152" % (S_WD0, S_FB))
    a("s_mul_i32 s%d, s%d, 1152" % (S_WD1, S_FHB))
    if OPT.get("rot", 1):
        a("s_mul_i32 s%d, s%d, 9" % (S_RB, S_M))
        a("s_lshr_b32 s%d, s%d, 4" % (S_RB, S_RB))
    else:
        a("s_mov_b32 s%d, 0" % S_RB)
    a("s_lshl_b32 s%d, s%d, 1" % (S_T0, S_J))
    a("s_add_u32 s%d, s%d, s%d" % (S_T0, S_T0, S_FH))
    a("s_mul_i32 s%d, s%d, 36864" % (S_DFB, S_T0))
    a("s_cmp_ge_u32 s%d, 9" % S_T0)
    a("s_cselect_b32 s%d, 9, 0" % S_T1)
    a("s_sub_u32 s%d, s%d, s%d" % (S_T0, S_T0, S_T1))
    a("s_lshl_b32 s%d, s%d, 18" % (S_CFB, S_T0))
    a("s_cselect_b32 s%d, 4096, 0" % S_T1)
    a("s_lshl_b32 s%d, s%d, 1" % (S_T0, S_J))
    a("s_add_u32 s%d, s%d, s%d" % (S_T0, S_T0, S_FH))
    a("s_cmp_ge_u32 s%d, 9" % S_T0)
    a("s_cselect_b32 s%d, 4096, 0" % S_T1)
    a("s_add_u32 s%d, s%d, s%d" % (S_CFB, S_CFB, S_T1))
    a("s_lshl_b32 s%d, s%d, 8" % (S_T0, S_M))
    a("s_add_u32 s%d, s%d, s%d" % (S_CFB, S_CFB, S_T0))
    a("s_lshl_b32 s%d, s%d, 7" % (S_T0, S_TM))
    a("s_add_u32 s%d, s%d, s%d" % (S_CFB, S_CFB, S_T0))
    a("s_lshl_b32 s%d, s%d, 12" % (S_T0, S_WAVE))
    a("s_add_u32 s%d, s%d, 147456" % (S_T0, S_T0))
    a("v_and_b32 v22, 31, v21")
    a("v_lshlrev_b32 v22, 7, v22")
    a("v_lshrrev_b32 v23, 5, v21")
    a("v_lshl_add_u32 v22, v23, 4, v22")
    a("v_add_u32 v%d, s%d, v22" % (V_CF, S_T0))
    a("v_add_u32 v%d, s%d, v%d" % (V_CR, S_T0, V_LANE16))
    a("v_lshrrev_b32 v22, 3, v21")
    a("v_lshlrev_b32 v22, 13, v22")
    a("v_and_b32 v23, 7, v21")
    a("v_lshl_add_u32 v%d, v23, 4, v22" % V_CG)
    a("v_mov_b32 v%d, v21" % V_LN)
    srd(a, S_DBG, 26, 288 * 4, WS_FLAG)
    a("s_lshl_b32 s%d, s%d, 1" % (S_T0, S_J))
    a("s_add_u32 s%d, s%d, s%d" % (S_T0, S_T0, S_FH))
    a("s_lshl_b32 s%d, s%d, 4" % (S_T0, S_T0))
    a("s_add_u32 s%d, s%d, s%d" % (S_T0, S_T0, S_M))
    a("s_lshl_b32 s%d, s%d, 2" % (S_CNT, S_T0))
    a("s_cmp_lg_u32 s%d, 0" % S_TM)
    a("s_cselect_b32 s%d, 0x7ff00000, s%d" % (S_CNT, S_CNT))
    stamp(a, 1, 1)
    dstamp(a, 1, 3)

    HI = 49152
    def trread(g, kk, half):
        slot = g % R
        gks = g * 2 + kk
        buf = gks % 3
        out = []
        ncs = 1 if half else 2
        for c in range(ncs):
            for q in range(2):
                off = slot * 8192 + kk * 2048 + q * 512
                hi = off >= HI
                if half: areg = V_TRH[1 if hi else 0]
                else: areg = V_TR[c + (2 if hi else 0)]
                if hi: off -= HI
                r = AF + (buf * 2 + c) * 4 + q * 2
                out.append(("lds", "ds_read_b64_tr_b16 v[%d:%d], v%d offset:%d" % (r, r + 1, areg, off), ("A", gks)))
        return out
    B = OPT["B"]
    NG = 5 * 18
    st.wait(vm=[("W", i) for i in range(B)])
    st("s_barrier")
    for kk in range(2):
        for it in trread(0, kk, False): emit_item(it)
    next_dma = [NPRE]
    dma_pending = []
    S_BC = 84
    def blk_items(dst, b, mul):
        return ["s_add_u32 s%d, s%d, %d" % (dst, S_RB, b),
                "s_cmp_ge_u32 s%d, 9" % dst,
                "s_cselect_b32 s%d, 9, 0" % S_T0,
                "s_sub_u32 s%d, s%d, s%d" % (dst, dst, S_T0),
                "s_mul_i32 s%d, s%d, %d" % (dst, dst, mul)]
    def stage(stg, accset, gelu_q):
        half = stg == 4
        ncs = 1 if half else 2
        gq = list(gelu_q) if "nogelu" not in ABLS else []
        nm_total = 36 * ncs * 2
        per = len(gq) / float(nm_total - 6)
        state = {"acc": 0.0, "em": 0}
        def pop_gelu():
            if gq:
                emit_item(gq.pop(0)); state["em"] += 1
                return True
            return False
        mi = 0
        since_dma = 99
        xq = []
        for ks in range(36):
            g = stg * 18 + ks // 2
            gks = stg * 36 + ks
            buf = gks % 3
            g2, kk2 = divmod(gks + 2, 2)
            bar = None
            if kk2 == 0 and g2 % B == 0 and g2 < NG:
                bar = [("W", i) for i in range(g2, min(g2 + B, NG))]
            reads = trread(g2, kk2, g2 // 18 == 4) if (g2 < NG and "notr" not in ABLS) else []
            if stg == 0 and ks + XA < 36: xq.extend(xload_items(ks + XA))
            if stg == 4 and ks == 22 and OPT.get("wdpf", 1):
                assert next_dma[0] >= NG and not dma_pending
                st("v_mov_b32 v%d, v0" % V_T1)
                st("v_mul_u32_u24 v%d, 1152, v%d" % (V_T1, V_T1))
                for bb in range(2):
                    for x in blk_items(S_BC, bb, 128): st(x)
                    st("s_add_u32 s%d, s%d, s%d" % (S_OFF, S_WD0, S_BC))
                    st.vmem("buffer_load_dword v%d, v%d, s[%d:%d], s%d offen" % (V_T2, V_T1, S_D, S_D + 3, S_OFF), "PF")
                    st("s_add_u32 s%d, s%d, s%d" % (S_OFF, S_WD1, S_BC))
                    st("v_and_b32 v%d, 31, v%d" % (V_T2 + 5, V_LN))
                    st("v_mul_u32_u24 v%d, 1152, v%d" % (V_T2 + 5, V_T2 + 5))
                    st.vmem("buffer_load_dword v%d, v%d, s[%d:%d], s%d offen" % (V_T2, V_T2 + 5, S_D, S_D + 3, S_OFF), "PF")
            st.wait(vm=[("X", ks)] if stg == 0 else [], lg=[("A", gks)])
            ng = ncs * 2
            k = 0
            for c in range(ncs):
                for t in range(2):
                    ti = c * 2 + t
                    d = ACC[accset] + 16 * ti
                    ar = AF + (buf * 2 + c) * 4
                    src = "0" if ks == 0 else "v[%d:%d]" % (d, d + 15)
                    st("v_mfma_f32_32x32x16_bf16 v[%d:%d], v[%d:%d], %s, %s" % (d, d + 15, ar, ar + 3, xreg(ks, t), src))
                    mi += 1
                    if k == 0 and bar is not None:
                        emit_item(("bar", bar))
                        while next_dma[0] < NG and next_dma[0] - R <= g2 - 2:
                            dma_pending.extend(dma_items(next_dma[0])); next_dma[0] += 1
                    lo = k * len(reads) // ng; hi_ = (k + 1) * len(reads) // ng
                    for it in reads[lo:hi_]: emit_item(it)
                    since_dma += 1
                    did = False
                    if xq and k in (1, 3):
                        emit_item(xq.pop(0)); did = True
                    elif dma_pending and since_dma >= OPT.get("dmagap", 4 if not half else 2) and not (k == 0 and bar is not None):
                        emit_group(dma_pending.pop(0), pop_gelu if mi > 6 else None)
                        since_dma = 0; did = True
                    if mi > 6:
                        state["acc"] += per
                        n = 0
                        cap = OPT["gcap"] - (2 if did else 0)
                        while gq and state["em"] < state["acc"] and n < cap:
                            pop_gelu(); n += 1
                    k += 1
        assert not xq
        while gq: pop_gelu()

    def full_tiles(stg):
        return [(c * 2 + t, (t * 18 + c) * 1024 + stg * 4096, V_H) for c in range(2) for t in range(2)]
    stage(0, 0, [])
    stamp(a, 1, 2)
    dstamp(a, 1, 4)
    stage(1, 1, gelu_items(ACC[0], full_tiles(0)))
    stage(2, 0, gelu_items(ACC[1], full_tiles(1)))
    if OPT.get("dfpf", 0):
        st("v_lshlrev_b32 v%d, 7, v%d" % (V_T1, V_LN))
        for i in range(5):
            st("s_add_u32 s%d, s%d, %d" % (S_T0, S_DFB, i * 8192))
            st.vmem("buffer_load_dword v%d, v%d, s[%d:%d], s%d offen" % (V_T2, V_T1, S_DF, S_DF + 3, S_T0), "PF")
    stage(3, 1, gelu_items(ACC[0], full_tiles(2)))
    stage(4, 0, gelu_items(ACC[1], full_tiles(3)))
    assert not dma_pending
    stamp(a, 1, 3)
    dstamp(a, 1, 5)
    def wd_groups(b):
        buf = b % 4
        out = []
        for i in range(9):
            base = S_WD0 if i < 8 else S_WD1
            off = (32 * i * 1152 if i < 8 else 0)
            pre = blk_items(S_BC, b, 128) if i == 0 else []
            out.append(pre + ["s_add_u32 s%d, s%d, s%d" % (S_OFF, base, S_BC),
                        "s_add_u32 s%d, s%d, %d" % (S_OFF, S_OFF, off),
                        "s_add_u32 m0, s%d, %d" % (S_LDS2, buf * 36864 + i * 4096),
                        "NOPSLOT",
                        ("vm", "buffer_load_dwordx4 v%d, s[%d:%d], s%d offen lds" % (V_D2, S_D, S_D + 3, S_OFF), ("D", b))])
        return out
    st.wait_all(vm=False, lg=True)
    st("s_barrier")
    tail = gelu_items(ACC[0], [(t, t * 18 * 1024, V_HH) for t in range(2)])
    a("s_cmp_ge_u32 s%d, 9" % S_J)
    a("s_cbranch_scc1 L_ffn_noa1")
    stamp(a, 6, 0)
    vm_save, lg_save = list(st.vm), list(st.lg)
    NB = 18
    def breg(ks):
        i = ks % NB
        r = (AF + 4 * i) if i < 6 else (BR + 4 * (i - 6)) if i < 10 else (112 + 4 * (i - 10))
        return r
    def bload(ks):
        r = breg(ks)
        return ["s_mul_hi_u32 s%d, s%d, %d" % (S_OFF2, S_ROW + ks // 2, -(-(1 << 32) // 144)),
                "s_add_u32 s%d, s%d, s%d" % (S_OFF2, S_OFF2, S_DFB),
                "s_add_u32 s%d, s%d, %d" % (S_OFF2, S_OFF2, (ks & 1) * 1024),
                ("vm", "buffer_load_dwordx4 v[%d:%d], v%d, s[%d:%d], s%d offen" % (r, r + 3, V_LANE16, S_DF, S_DF + 3, S_OFF2), ("B", ks))]
    for ks in range(NB - 1): emit_item(bload(ks))
    wdq = wd_groups(0) + wd_groups(1)
    stamp(a, 6, 1)
    A1ACC = ACC[1]
    tq = list(tail)
    for ks in range(36):
        st.wait(vm=[("B", ks)])
        if ks == 0: stamp(a, 6, 2)
        for t in range(2):
            d = A1ACC + 16 * t
            br = breg(ks)
            src = "0" if ks == 0 else "v[%d:%d]" % (d, d + 15)
            st("v_mfma_f32_32x32x16_bf16 v[%d:%d], %s, v[%d:%d], %s" % (d, d + 15, xreg(ks, t), br, br + 3, src))
            if t == 0 and ks + NB - 1 < 36:
                emit_item(bload(ks + NB - 1))
            elif wdq and ks + NB - 1 >= 36:
                emit_group(wdq.pop(0))
            if ks >= 2:
                for _ in range(3):
                    if tq: emit_item(tq.pop(0))
    assert not tq and not wdq, (len(tq), len(wdq))
    stamp(a, 6, 3)
    st("s_nop 15"); st("s_nop 3")
    for t in range(2):
        pk = GT + 8 * 0 if t == 0 else HP
        for dd in range(8):
            st("v_cvt_pk_bf16_f32 v%d, v%d, v%d" % (pk + dd, A1ACC + 16 * t + 2 * dd, A1ACC + 16 * t + 2 * dd + 1))
        st("s_nop 1")
        st("v_permlane32_swap_b32 v%d, v%d" % (pk + 0, pk + 2))
        st("v_permlane32_swap_b32 v%d, v%d" % (pk + 1, pk + 3))
        st("v_permlane32_swap_b32 v%d, v%d" % (pk + 4, pk + 6))
        st("v_permlane32_swap_b32 v%d, v%d" % (pk + 5, pk + 7))
        st.lds("ds_write_b128 v%d, v[%d:%d] offset:%d" % (V_CF, pk, pk + 3, t * 64), "cw")
        st.lds("ds_write_b128 v%d, v[%d:%d] offset:%d" % (V_CF, pk + 4, pk + 7, t * 64 + 32), "cw")
    st.wait_all(vm=False, lg=True)
    for k in range(4):
        st.lds("ds_read_b128 v[%d:%d], v%d offset:%d" % (112 + 4 * k, 115 + 4 * k, V_CR, k * 1024), ("cr", k))
    for k in range(4):
        st.wait(lg=[("cr", k)])
        st("s_add_u32 s%d, s%d, %d" % (S_OFF2, S_CFB, k * 8 * 8192))
        st.vmem("buffer_store_dwordx4 v[%d:%d], v%d, s[%d:%d], s%d offen sc1" % (112 + 4 * k, 115 + 4 * k, V_CG, S_CF, S_CF + 3, S_OFF2), "CF")
    stamp(a, 6, 4)
    a("s_branch L_ffn_join")
    vm_a = list(st.vm)
    a.label("L_ffn_noa1")
    st.vm, st.lg = vm_save, lg_save
    for grp in wd_groups(0) + wd_groups(1): emit_group(grp)
    for it in tail: emit_item(it)
    a.label("L_ffn_join")
    st.wait_all(vm=False, lg=True)
    st("s_barrier")
    stamp(a, 6, 5)
    for t in range(2):
        for ci in range(18):
            i = t * 18 + ci
            st.lds("ds_read_b128 a[%d:%d], v%d offset:%d" % (4 * i, 4 * i + 3, V_HR, i * 1024), ("H", i))
    st.wait_all(vm=False, lg=True)
    stamp(a, 6, 6)
    st("s_waitcnt vmcnt(4)")
    st("s_barrier")
    st.vm = [("D", 1)] * 4
    for grp in wd_groups(2): emit_group(grp)
    stamp(a, 1, 4)
    dstamp(a, 1, 6)
    A2 = 176; ACC2 = [16, 48]; PK = 200
    def trread2(b, ci):
        gk = b * 18 + ci
        r = A2 + (gk % 4) * 4
        return [("lds", "ds_read_b64_tr_b16 v[%d:%d], v%d offset:%d" % (r + 2 * q, r + 2 * q + 1, V_TR2[b % 4], ci * 2048 + q * 1024), ("A2", gk)) for q in range(2)]
    def epi_items(b):
        items = []
        acc = ACC2[b % 2]
        for t in range(2):
            pk = PK + 8 * t
            for d in range(8):
                items.append("v_cvt_pk_bf16_f32 v%d, v%d, v%d" % (pk + d, acc + 16 * t + 2 * d, acc + 16 * t + 2 * d + 1))
            for q in range(2):
                pre = blk_items(S_BC + 1, b, 4096) if (t == 0 and q == 0) else []
                items.append(pre + ["s_add_u32 s%d, s%d, s%d" % (S_OFF2, S_PB, S_BC + 1),
                              "s_add_u32 s%d, s%d, %d" % (S_OFF2, S_OFF2, t * 18 * 2048),
                              ("vm", "buffer_store_dwordx4 v[%d:%d], v%d, s[%d:%d], s%d offen offset:%d %s" % (pk + 4 * q, pk + 4 * q + 3, V_LANE16, S_P, S_P + 3, S_OFF2, q * 1024, OPT["stflags"]), ("P", b))])
        return items
    for ci in range(3):
        for it in trread2(0, ci): emit_item(it)
    pend = list(wd_groups(3))
    for b in range(9):
        eq = epi_items(b - 1) if b > 0 else []
        if b == 5 and OPT.get("cpf3", 1):
            st("s_getpc_b64 s[%d:%d]" % (S_DF, S_DF + 1))
            a.label("L_k2_pc")
            st("s_add_u32 s%d, s%d, fin_kernel-L_k2_pc" % (S_DF, S_DF))
            st("s_addc_u32 s%d, s%d, 0" % (S_DF + 1, S_DF + 1))
            st("v_lshlrev_b32 v%d, 6, v0" % (BR + 1))
            st("v_min_u32 v%d, L_code_end-fin_kernel-64, v%d" % (BR + 1, BR + 1))
            st.vmem("global_load_dword v%d, v%d, s[%d:%d]" % (BR, BR + 1, S_DF, S_DF + 1), "PF")
        mi = 0
        since = 99
        for ci in range(18):
            gk = b * 18 + ci
            nb, nci = divmod(gk + 3, 18)
            reads = trread2(nb, nci) if nb < 9 else []
            st.wait(lg=[("A2", gk)])
            for t in range(2):
                d = ACC2[b % 2] + 16 * t
                ar = A2 + (gk % 4) * 4
                hr = (t * 18 + ci) * 4
                src = "0" if ci == 0 else "v[%d:%d]" % (d, d + 15)
                st("v_mfma_f32_32x32x16_bf16 v[%d:%d], v[%d:%d], a[%d:%d], %s" % (d, d + 15, ar, ar + 3, hr, hr + 3, src))
                mi += 1
                isbar = (t == 0 and ci == 15 and b + 1 < 9)
                if isbar:
                    emit_item(("bar", [("D", b + 1)]))
                    if b == 0:
                        st("v_lshlrev_b32 v%d, 20, v%d" % (V_T1, V_LN))
                        st("v_add_u32 v%d, s%d, v%d" % (V_T1, S_CNT, V_T1))
                        st("v_mov_b32 v%d, 1" % V_T2)
                        st.vmem("buffer_store_dword v%d, v%d, s[%d:%d], 0 offen sc1" % (V_T2, V_T1, S_DBG, S_DBG + 3), "SIG")
                    if b >= 1 and b + 3 <= 8:
                        pend.extend(wd_groups(b + 3))
                if reads: emit_item(reads[t])
                since += 1
                vm_done = False
                if pend and since >= 3 and not isbar:
                    emit_group(pend.pop(0)); since = 0; vm_done = True
                if mi > 4 and eq and not vm_done:
                    it = eq.pop(0)
                    if isinstance(it, list):
                        if since >= 2:
                            emit_item(it); since = 0
                        else: eq.insert(0, it)
                    else:
                        emit_item(it)
                        if eq and not isinstance(eq[0], list): emit_item(eq.pop(0))
        while eq: emit_item(eq.pop(0))
    assert not pend
    st("s_nop 15"); st("s_nop 3")
    for it in epi_items(8): emit_item(it)
    stamp(a, 1, 5)
    dstamp(a, 1, 7)
    a("s_cmp_lt_u32 s%d, 9" % S_J); a("s_cbranch_scc1 L_ffn_done")
    a("s_cmp_ge_u32 s%d, 3" % S_WAVE); a("s_cbranch_scc1 L_ffn_done")
    a("s_sub_u32 s49, s%d, 9" % S_J)
    a("s_lshl_b32 s49, s49, 4")
    a("s_add_u32 s49, s49, s%d" % S_M)
    a("s_mul_i32 s49, s49, 3")
    a("s_add_u32 s49, s49, s%d" % S_WAVE)
    a("s_cmp_gt_u32 s49, 288"); a("s_cbranch_scc1 L_ffn_done")
    a("s_lshl_b32 s51, s%d, 13" % S_WAVE)
    a("s_add_u32 s51, s51, 36864")
    a("v_mov_b32 v2, v%d" % V_LN)
    a("s_cmp_eq_u32 s49, 288"); a("s_cbranch_scc1 L_ffn_fgo")
    a("s_lshr_b32 s52, s49, 5"); a("s_lshl_b32 s52, s52, 6")
    a("v_and_b32 v3, 15, v2"); a("v_lshlrev_b32 v3, 2, v3")
    a("v_bfe_u32 v4, v2, 4, 1"); a("v_mul_u32_u24 v4, 576, v4")
    a("v_add_u32 v3, v3, v4"); a("v_add_u32 v3, s52, v3")
    a("s_mov_b32 s53, 0")
    a.label("L_ffn_fpoll")
    a("buffer_load_dword v4, v3, s[%d:%d], 0 offen sc1" % (S_DBG, S_DBG + 3))
    a("s_waitcnt vmcnt(0)")
    a("v_cmp_eq_u32 vcc, 1, v4")
    a("s_nop 1")
    a("s_cmp_eq_u64 vcc, exec"); a("s_cbranch_scc1 L_ffn_fgo")
    a("s_sleep 8")
    a("s_add_u32 s53, s53, 1")
    a("s_cmp_lt_u32 s53, 100000"); a("s_cbranch_scc1 L_ffn_fpoll")
    a.label("L_ffn_fgo")
    fft_column(a, 1)
    stamp(a, 1, 6, vb=251)
    dstamp(a, 1, 13, mask=0)
    a.label("L_ffn_done")
    a("s_endpgm")
    return name, max(R * 8192 + 73728, 147456)

K3_WAVES = 9
K3_LDS_COL = 0
K3_LDS_TAB = 16384
K3_LDS = 16384 + 22 * 1024
def k3(a):
    name = "fin_kernel"
    kernel_begin(a, name)
    a("s_cmp_ge_u32 s2, 256"); a("s_cbranch_scc1 L_k3_done")
    load_ptrs(a)
    stamp(a, 2, 0, vb=151)
    dstamp(a, 2, 8, mn=True, vb=151)
    a("v_lshrrev_b32 v1, 6, v0")
    a("v_and_b32 v2, 63, v0")
    a("v_readfirstlane_b32 s48, v1")
    srd(a, 32, 26, PART_BYTES, WS_PART)
    srd(a, 36, 26, YT_BYTES, WS_YT)
    srd(a, 40, 4, S * D * 2)
    srd(a, 44, 22, S * D * 2)
    a("s_mul_i32 s49, s2, 9")
    a("s_add_u32 s49, s49, s48")
    a("v_lshlrev_b32 v3, 4, v2")
    a("s_lshl_b32 s53, s49, 10")
    for j in range(16):
        r = 32 + j * 4
        a("buffer_load_dwordx4 v[%d:%d], v3, s[32:35], s53 offen" % (r, r + 3))
        if j < 15: a("s_add_u32 s53, s53, %d" % (64 * 18 * 2048))
    a("s_mul_hi_u32 s51, s49, %d" % (-(-(1 << 32) // 36)))
    a("s_mul_i32 s52, s51, 36")
    a("s_sub_u32 s52, s49, s52")
    a("s_and_b32 s50, s52, 1")
    a("s_lshr_b32 s52, s52, 1")
    a("v_and_b32 v4, 31, v2")
    a("v_lshrrev_b32 v5, 5, v2")
    a("s_lshl_b32 s55, s51, 5")
    a("v_add_u32 v12, s55, v4")
    a("s_movk_i32 s56, 1152")
    a("v_mul_lo_u32 v7, v12, s56")
    a("s_lshl_b32 s57, s52, 6")
    a("s_lshl_b32 s58, s50, 5")
    a("s_add_u32 s57, s57, s58")
    a("v_add_u32 v7, s57, v7")
    a("v_lshl_add_u32 v8, v5, 3, v7")
    for g in range(2):
        a("buffer_load_dwordx2 v[%d:%d], v8, s[40:43], 0 offen offset:%d" % (100 + 2 * g, 101 + 2 * g, g * 16))
    a("v_lshl_add_u32 v9, v5, 4, v7")
    a("s_lshl_b32 s59, s52, 5")
    a("s_lshl_b32 s58, s50, 4")
    a("s_add_u32 s59, s59, s58")
    a("s_cmp_le_u32 s52, 8"); a("s_cbranch_scc0 L_k3_mir")
    a("v_lshlrev_b32 v6, 15, v5")
    a("v_lshl_add_u32 v6, v12, 2, v6")
    a("s_lshl_b32 s54, s59, 13")
    a("s_movk_i32 s58, 8192")
    a("s_branch L_k3_yad")
    a.label("L_k3_mir")
    a("v_sub_u32 v6, 2048, v12")
    a("v_and_b32 v6, 2047, v6")
    a("v_lshlrev_b32 v6, 2, v6")
    a("v_xor_b32 v13, 1, v5")
    a("v_lshl_add_u32 v6, v13, 15, v6")
    a("s_sub_u32 s54, 572, s59")
    a("s_lshl_b32 s54, s54, 13")
    a("s_mov_b32 s58, %d" % (-8192 & 0xffffffff))
    a.label("L_k3_yad")
    for r in range(8):
        off = 8 * (r >> 2) + (r & 3)
        a("s_mul_i32 s55, s58, %d" % off)
        a("s_add_u32 s55, s55, s54")
        a("buffer_load_dword v%d, v6, s[36:39], s55 offen" % (104 + r))
    n = 16 + 2 + 8
    for j in range(16):
        a("s_waitcnt vmcnt(%d)" % (n - (j + 1)))
        for d in range(4):
            src = 32 + j * 4 + d
            e = 2 * d
            if j == 0:
                a("v_lshlrev_b32 v%d, 16, v%d" % (16 + e, src))
                a("v_and_b32 v%d, 0xffff0000, v%d" % (17 + e, src))
            else:
                a("v_lshlrev_b32 v10, 16, v%d" % src)
                a("v_and_b32 v11, 0xffff0000, v%d" % src)
                a("v_add_f32 v%d, v%d, v10" % (16 + e, 16 + e))
                a("v_add_f32 v%d, v%d, v11" % (17 + e, 17 + e))
    a("s_waitcnt vmcnt(0)")
    for g in range(2):
        for h in range(2):
            src = 100 + 2 * g + h
            e = 4 * g + 2 * h
            a("v_lshlrev_b32 v10, 16, v%d" % src)
            a("v_and_b32 v11, 0xffff0000, v%d" % src)
            a("v_add_f32 v%d, v%d, v10" % (16 + e, 16 + e))
            a("v_add_f32 v%d, v%d, v11" % (17 + e, 17 + e))
    stamp(a, 2, 1, vb=151, tid=0)
    dstamp(a, 2, 9, vb=151, tid=0)
    stamp(a, 2, 2, vb=151, tid=0)
    dstamp(a, 2, 10, vb=151, tid=0)
    a("s_waitcnt vmcnt(0)")
    for r in range(8):
        a("v_add_f32 v%d, v%d, v%d" % (16 + r, 16 + r, 104 + r))
    for d in range(4):
        a("v_cvt_pk_bf16_f32 v%d, v%d, v%d" % (32 + d, 16 + 2 * d, 17 + 2 * d))
    a("s_nop 1")
    a("v_permlane32_swap_b32 v32, v34")
    a("v_permlane32_swap_b32 v33, v35")
    a("s_nop 1")
    a("buffer_store_dwordx4 v[32:35], v9, s[44:47], 0 offen")
    if OPT.get("pad"):
        a("s_cmp_lg_u32 s2, 0"); a("s_cbranch_scc1 L_k3_done")
        a("s_add_u32 s62, s26, %d" % (11 << 20)); a("s_addc_u32 s63, s27, 0")
        a("s_load_dword s64, s[62:63], 0"); a("s_waitcnt lgkmcnt(0)")
        a("s_mov_b32 s66, 0")
        a.label("L_k3_pd")
        a("s_memrealtime s[60:61]"); a("s_waitcnt lgkmcnt(0)")
        a("s_sub_u32 s65, s60, s64")
        a("s_add_u32 s66, s66, 1")
        a("s_cmp_gt_u32 s66, 2000000"); a("s_cbranch_scc1 L_k3_done")
        a("s_cmp_lt_u32 s65, %d" % OPT["pad"]); a("s_cbranch_scc1 L_k3_pd")
    stamp(a, 2, 3, vb=151, tid=0)
    dstamp(a, 2, 11, vb=151, tid=0)
    a.label("L_k3_done")
    a("s_endpgm")
    return name

def main():
    out = sys.argv[1]
    for o in sys.argv[2:]:
        if o == "stamps": OPT["stamps"] = 1
        elif o.startswith("abl="): OPT["abl"].update(o[4:].split(","))
        elif "=" in o:
            k, v = o.split("=", 1)
            OPT[k] = int(v) if v.lstrip("-").isdigit() else v.replace("+", " ")
    lds = 163840
    a = Asm()
    a.raw(HEADER.rstrip("\n"))
    a.raw("; @launch kernel=prep_kernel grid=(%d,1,1) block=(256,1,1) lds=0" % (N_LN + N_DF + N_TAB))
    a.raw("; @launch kernel=ffn_kernel grid=(256,1,1) block=(256,1,1) lds=%d" % lds)
    a.raw("; @launch kernel=fin_kernel grid=(256,1,1) block=(%d,1,1) lds=0" % (64 * K3_WAVES))
    a.raw('.amdgcn_target "amdgcn-amd-amdhsa--gfx950"')
    k1(a); k2(a); k3(a)
    a.label("L_code_end")
    big = OPT["stamps"] or OPT.get("dbgst")
    kernel_desc(a, "prep_kernel", 256 if big else 128, 96, 256 if big else 128)
    kernel_desc(a, "ffn_kernel", 512, 102, 256)
    kernel_desc(a, "fin_kernel", 160, 96, 160)
    open(out, "w").write(a.text())
if __name__ == "__main__":
    main()
```

```python
import sys, math
from asmgen import *
from sched import *

S, D, F = 2048, 576, 4608
OPT = {"B": 2, "R": 9, "abl": set(), "gcap": 3, "stamps": 0, "pf": 2, "stflags": "sc1", "xahead": 6, "pert": 0.0}
WS_XNF   = 0
WS_CF    = 4 << 20
CF_BYTES = 289 * 8192
WS_DF    = 8 << 20
DF_BYTES = 18 * 36864
WS_TAB   = (9 << 20) + (512 << 10)
TAB_BYTES = 38 * 1024
WS_YT    = 12 << 20
YT_BYTES = 289 * 8192
WS_FLAG  = 10 << 20
FLAG_BYTES = 289 * 4
WS_PART  = 24 << 20
PART_BYTES = 16 * S * D * 2
WS_STAMP = 128 << 20
N_LN, N_DF, N_TAB = 128, 162, 10
PF0 = 304
N_K1 = PF0 + 256
N_FFT, N_RED = 73, 288

def srd(a, sd, sp, nbytes, off=0):
    if off:
        a("s_add_u32 s%d, s%d, %d" % (sd, sp, off))
        a("s_addc_u32 s%d, s%d, 0" % (sd + 1, sp + 1))
    else:
        a("s_mov_b32 s%d, s%d" % (sd, sp))
        a("s_mov_b32 s%d, s%d" % (sd + 1, sp + 1))
    a("s_mov_b32 s%d, %d" % (sd + 2, nbytes))
    a("s_mov_b32 s%d, 0x00020000" % (sd + 3))

def load_ptrs(a):
    a("s_load_dwordx2 s[4:5], s[0:1], 0")
    a("s_load_dwordx4 s[8:11], s[0:1], 16")
    a("s_load_dwordx2 s[12:13], s[0:1], 32")
    a("s_load_dwordx8 s[16:23], s[0:1], 48")
    a("s_load_dwordx4 s[24:27], s[0:1], 80")
    a("s_waitcnt lgkmcnt(0)")

def stamp(a, kidx, slot, sreg=88, vb=251, tid=0):
    if not OPT["stamps"]: return
    lab = a.newlabel("L_st")
    a("s_memrealtime s[%d:%d]" % (sreg, sreg + 1))
    a("s_memtime s[%d:%d]" % (sreg + 6, sreg + 7))
    a("s_waitcnt lgkmcnt(0)")
    a("v_cmp_eq_u32 vcc, %d, v0" % tid if tid <= 64 else "v_mov_b32 v%d, %d\n    v_cmp_eq_u32 vcc, v%d, v0" % (vb, tid, vb))
    a("s_and_saveexec_b64 s[%d:%d], vcc" % (sreg + 2, sreg + 3))
    a("s_cbranch_execz %s" % lab)
    a("s_lshl_b32 s%d, s2, 7" % (sreg + 4))
    a("s_add_u32 s%d, s%d, %d" % (sreg + 4, sreg + 4, WS_STAMP + kidx * 65536 + slot * 8))
    a("s_add_u32 s%d, s26, s%d" % (sreg + 4, sreg + 4))
    a("s_addc_u32 s%d, s27, 0" % (sreg + 5))
    a("v_mov_b32 v%d, s%d" % (vb + 1, sreg)); a("v_mov_b32 v%d, s%d" % (vb + 2, sreg + 1))
    a("v_mov_b32 v%d, 0" % vb)
    a("global_store_dwordx2 v%d, v[%d:%d], s[%d:%d]" % (vb, vb + 1, vb + 2, sreg + 4, sreg + 5))
    a("s_nop 1")
    a("v_mov_b32 v%d, s%d" % (vb + 1, sreg + 6)); a("v_mov_b32 v%d, s%d" % (vb + 2, sreg + 7))
    a("s_nop 1")
    a("global_store_dwordx2 v%d, v[%d:%d], s[%d:%d] offset:64" % (vb, vb + 1, vb + 2, sreg + 4, sreg + 5))
    a.label(lab)
    a("s_mov_b64 exec, s[%d:%d]" % (sreg + 2, sreg + 3))

def dstamp(a, kl, word, mn=False, sreg=88, vb=251, tid=0, mask=31):
    if not OPT.get("dbgst"): return
    lab = a.newlabel("L_ds")
    a("s_and_b32 s%d, s2, %d" % (sreg, mask))
    a("s_cmp_lg_u32 s%d, 0" % sreg)
    a("s_cbranch_scc1 %s" % lab)
    a("s_memrealtime s[%d:%d]" % (sreg, sreg + 1))
    a("s_waitcnt lgkmcnt(0)")
    if mn: a("s_not_b32 s%d, s%d" % (sreg, sreg))
    if tid <= 64: a("v_cmp_eq_u32 vcc, %d, v0" % tid)
    else:
        a("v_mov_b32 v%d, %d" % (vb, tid)); a("v_cmp_eq_u32 vcc, v%d, v0" % vb)
    a("s_and_saveexec_b64 s[%d:%d], vcc" % (sreg + 2, sreg + 3))
    a("s_cbranch_execz %s_r" % lab)
    a("s_add_u32 s%d, s24, %d" % (sreg + 4, (2 - kl) * 512))
    a("s_addc_u32 s%d, s25, 0" % (sreg + 5))
    a("v_mov_b32 v%d, %d" % (vb, word * 4))
    a("v_mov_b32 v%d, s%d" % (vb + 1, sreg))
    a("global_atomic_umax v%d, v%d, s[%d:%d]" % (vb, vb + 1, sreg + 4, sreg + 5))
    a.label("%s_r" % lab)
    a("s_mov_b64 exec, s[%d:%d]" % (sreg + 2, sreg + 3))
    a.label(lab)

def prefetch_w(a, sM, sJ, sW, vl, sector, sa, sb, srdg, srdu, srdd, vdst, vt):
    t0, t1, t2, t3 = vt, vt + 1, vt + 2, vt + 3
    a("v_mul_u32_u24 v%d, 52, v%d" % (t0, vl))
    a("v_lshrrev_b32 v%d, 8, v%d" % (t0, t0))
    a("v_mul_u32_u24 v%d, 5, v%d" % (t1, t0))
    a("v_sub_u32 v%d, v%d, v%d" % (t1, vl, t1))
    a("s_lshl_b32 s%d, s%d, 2" % (sa, sM))
    a("s_add_u32 s%d, s%d, s%d" % (sa, sa, sW))
    a("s_mul_i32 s%d, s%d, 9" % (sa, sa))
    a("v_add_u32 v%d, s%d, v%d" % (t2, sa, t0))
    a("s_movk_i32 s%d, 9216" % sb)
    a("v_mul_lo_u32 v%d, v%d, s%d" % (t2, t2, sb))
    a("v_lshl_add_u32 v%d, v%d, 7, v%d" % (t2, t1, t2))
    a("v_cmp_gt_u32 vcc, 9, v%d" % t0)
    a("v_mov_b32 v%d, 0x7ff00000" % t3)
    a("s_nop 0")
    a("v_cndmask_b32 v%d, v%d, v%d, vcc" % (t2, t3, t2))
    a("s_mul_i32 s%d, s%d, 288" % (sa, sJ))
    a("s_and_b32 s%d, s%d, 1" % (sb, sJ))
    a("s_lshl_b32 s%d, s%d, 5" % (sb, sb))
    a("s_sub_u32 s%d, s%d, s%d" % (sa, sa, sb))
    a("s_lshl_b32 s%d, s%d, 1" % (sa, sa))
    n = 0
    for srd_ in (srdg, srdu):
        a("buffer_load_dword v%d, v%d, s[%d:%d], s%d offen" % (vdst, t2, srd_, srd_ + 3, sa)); n += 1
        if sector: a("buffer_load_dword v%d, v%d, s[%d:%d], s%d offen offset:64" % (vdst, t2, srd_, srd_ + 3, sa)); n += 1
    a("v_mul_u32_u24 v%d, 57, v0" % t0)
    a("v_lshrrev_b32 v%d, 9, v%d" % (t0, t0))
    a("v_mul_u32_u24 v%d, 9, v%d" % (t1, t0))
    a("v_sub_u32 v%d, v0, v%d" % (t1, t1))
    a("s_mul_i32 s%d, s%d, 288" % (sa, sJ))
    a("s_mul_i32 s%d, s%d, 18" % (sb, sM))
    a("s_add_u32 s%d, s%d, s%d" % (sa, sa, sb))
    a("v_add_u32 v%d, s%d, v%d" % (t2, sa, t0))
    a("s_movk_i32 s%d, 1152" % sb)
    a("v_mul_lo_u32 v%d, v%d, s%d" % (t2, t2, sb))
    a("v_lshl_add_u32 v%d, v%d, 7, v%d" % (t2, t1, t2))
    a("v_cmp_gt_u32 vcc, 18, v%d" % t0)
    a("s_nop 1")
    a("v_cndmask_b32 v%d, v%d, v%d, vcc" % (t2, t3, t2))
    a("buffer_load_dword v%d, v%d, s[%d:%d], 0 offen" % (vdst, t2, srdd, srdd + 3)); n += 1
    if sector: a("buffer_load_dword v%d, v%d, s[%d:%d], 0 offen offset:64" % (vdst, t2, srdd, srdd + 3)); n += 1
    return n

def mj_from_wg(a, sM, sJ, t0, t1):
    a("s_and_b32 s%d, s2, 7" % t0)
    a("s_lshr_b32 s%d, s2, 3" % t1)
    a("s_lshr_b32 s%d, s%d, 1" % (sM, t1))
    a("s_and_b32 s%d, s%d, 1" % (t1, t1))
    a("s_lshl_b32 s%d, s%d, 1" % (sJ, t0))
    a("s_add_u32 s%d, s%d, s%d" % (sJ, sJ, t1))

def k1(a):
    name = "prep_kernel"
    kernel_begin(a, name)
    NT = N_LN + N_DF + N_TAB
    a("s_cmp_ge_u32 s2, %d" % NT); a("s_cbranch_scc1 L_k1_done")
    load_ptrs(a)
    stamp(a, 0, 0)
    dstamp(a, 0, 0, mn=True)
    if OPT.get("pad"):
        a("s_cmp_lg_u32 s2, 0"); a("s_cbranch_scc1 L_k1_nopad")
        a("s_memrealtime s[60:61]"); a("s_waitcnt lgkmcnt(0)")
        a("s_add_u32 s62, s26, %d" % (11 << 20)); a("s_addc_u32 s63, s27, 0")
        a("v_mov_b32 v10, 0"); a("v_mov_b32 v11, s60")
        a("global_store_dword v10, v11, s[62:63]")
        a.label("L_k1_nopad")
    if OPT.get("k1delay"):
        a("s_cmp_lg_u32 s2, 299"); a("s_cbranch_scc1 L_k1_nodelay")
        a("s_memrealtime s[60:61]"); a("s_waitcnt lgkmcnt(0)")
        a.label("L_k1_dl")
        a("s_memrealtime s[62:63]"); a("s_waitcnt lgkmcnt(0)")
        a("s_sub_u32 s64, s62, s60")
        a("s_cmp_lt_u32 s64, %d" % OPT["k1delay"]); a("s_cbranch_scc1 L_k1_dl")
        a.label("L_k1_nodelay")
    a("v_lshrrev_b32 v20, 6, v0")
    a("v_and_b32 v21, 63, v0")
    a("v_readfirstlane_b32 s48, v20")
    def do_prefetch(): pass
    def code_prefetch():
        lab = a.newlabel("L_nocpf")
        a("s_sub_u32 s60, s2, %d" % N_LN)
        a("s_lshr_b32 s60, s60, 3")
        a("s_cmp_ge_u32 s60, 4"); a("s_cbranch_scc1 %s" % lab)
        a("s_getpc_b64 s[56:57]")
        a.label("L_k1_pc")
        a("s_add_u32 s56, s56, ffn_kernel-L_k1_pc")
        a("s_addc_u32 s57, s57, 0")
        a("s_lshl_b32 s60, s60, 14")
        a("v_lshlrev_b32 v30, 6, v0")
        a("v_add_u32 v30, s60, v30")
        a("v_cmp_gt_u32 vcc, L_code_end-ffn_kernel, v30")
        a("s_and_saveexec_b64 s[58:59], vcc")
        a("s_cbranch_execz %s_r" % lab)
        a("global_load_dword v31, v30, s[56:57]")
        a.label("%s_r" % lab)
        a("s_mov_b64 exec, s[58:59]")
        a.label(lab)
    def w_prefetch():
        srd(a, 68, 16, D * F * 2); srd(a, 72, 18, D * F * 2); srd(a, 76, 20, D * F * 2)
        a("s_and_b32 s60, s2, 7"); a("s_lshr_b32 s61, s2, 3")
        a("v_mul_u32_u24 v90, 57, v21"); a("v_lshrrev_b32 v90, 9, v90")
        a("v_mul_u32_u24 v91, 9, v90"); a("v_sub_u32 v91, v21, v91")
        a("s_lshl_b32 s62, s61, 2"); a("s_add_u32 s62, s62, s48"); a("s_mul_i32 s62, s62, 9")
        a("v_add_u32 v91, s62, v91")
        a("s_movk_i32 s63, 9216")
        a("v_mul_lo_u32 v91, v91, s63")
        a("v_and_b32 v92, 1, v90")
        a("v_lshrrev_b32 v93, 1, v90")
        a("s_mul_i32 s63, s60, 576")
        a("v_mul_u32_u24 v94, 320, v93")
        a("v_add_u32 v94, s63, v94")
        a("v_lshl_add_u32 v95, v94, 1, v91")
        a("v_mul_u32_u24 v96, 640, v93")
        a("v_sub_u32 v96, 512, v96")
        a("v_add_u32 v96, v95, v96")
        a("v_cmp_gt_u32 vcc, 2, v93")
        a("v_mov_b32 v97, 0x7ff00000")
        a("v_cmp_eq_u32 s[64:65], 0, v92")
        a("s_nop 1")
        a("v_cndmask_b32 v95, v97, v95, vcc")
        a("v_cndmask_b32 v96, v97, v96, vcc")
        a("v_cndmask_b32 v98, v97, v95, s[64:65]")
        a("v_cndmask_b32 v99, v95, v97, s[64:65]")
        a("v_cndmask_b32 v100, v97, v96, s[64:65]")
        a("v_cndmask_b32 v101, v96, v97, s[64:65]")
        for stg in range(4):
            a("buffer_load_dword v102, v98, s[68:71], 0 offen offset:%d" % (128 * stg))
            a("buffer_load_dword v102, v99, s[72:75], 0 offen offset:%d" % (128 * stg))
        a("buffer_load_dword v102, v100, s[68:71], 0 offen")
        a("buffer_load_dword v102, v101, s[72:75], 0 offen")
        a("v_mul_u32_u24 v90, 57, v0"); a("v_lshrrev_b32 v90, 9, v90")
        a("v_mul_u32_u24 v91, 9, v90"); a("v_sub_u32 v91, v0, v91")
        a("s_mul_i32 s62, s61, 18"); a("s_mul_i32 s63, s60, 576"); a("s_add_u32 s62, s62, s63")
        a("v_add_u32 v92, s62, v90")
        a("s_movk_i32 s63, 1152")
        a("v_mul_lo_u32 v92, v92, s63")
        a("v_lshl_add_u32 v92, v91, 7, v92")
        a("v_cmp_gt_u32 vcc, 18, v90")
        a("s_nop 1")
        a("v_cndmask_b32 v92, v97, v92, vcc")
        a("buffer_load_dword v102, v92, s[76:79], 0 offen")
        a("s_mov_b32 s63, %d" % (288 * 1152))
        a("buffer_load_dword v102, v92, s[76:79], s63 offen")
    a("s_cmp_ge_u32 s2, %d" % (N_LN + N_DF + N_TAB)); a("s_cbranch_scc1 L_k1_done")
    a("s_cmp_ge_u32 s2, %d" % N_LN); a("s_cbranch_scc1 L_k1_df")
    srd(a, 32, 4, S * D * 2)
    srd(a, 36, 26, S * D * 2, WS_XNF)
    srd(a, 40, 26, CF_BYTES, WS_CF)
    a("v_lshrrev_b32 v1, 4, v0")
    a("v_and_b32 v2, 15, v0")
    a("s_lshl_b32 s3, s2, 4")
    a("v_add_u32 v1, s3, v1")
    a("s_movk_i32 s28, 1152")
    a("v_mul_lo_u32 v3, v1, s28")
    a("v_lshl_add_u32 v3, v2, 3, v3")
    for i in range(9):
        a("buffer_load_dwordx2 v[%d:%d], v3, s[32:35], 0 offen offset:%d" % (8 + 2 * i, 9 + 2 * i, i * 128))
    do_prefetch()
    a("v_lshrrev_b32 v4, 5, v1")
    a("s_mov_b32 s29, 36864")
    a("v_mul_lo_u32 v4, v4, s29")
    a("v_lshrrev_b32 v5, 2, v2")
    a("v_lshl_add_u32 v4, v5, 10, v4")
    a("v_bfe_u32 v5, v2, 1, 1")
    a("v_lshl_add_u32 v4, v5, 9, v4")
    a("v_and_b32 v5, 31, v1")
    a("v_lshl_add_u32 v4, v5, 4, v4")
    a("v_and_b32 v5, 1, v2")
    a("v_lshl_add_u32 v4, v5, 3, v4")
    npf = 0
    stamp(a, 4, 0)
    a("s_waitcnt vmcnt(%d)" % npf)
    stamp(a, 4, 1)
    if OPT["pf"]: w_prefetch()
    for i in range(18):
        a("v_lshlrev_b32 v%d, 16, v%d" % (32 + 2 * i, 8 + i))
        a("v_and_b32 v%d, 0xffff0000, v%d" % (33 + 2 * i, 8 + i))
    a("v_add_f32 v70, v32, v33")
    a("v_add_f32 v71, v34, v35")
    for i in range(4, 36, 2):
        a("v_add_f32 v70, v70, v%d" % (32 + i))
        a("v_add_f32 v71, v71, v%d" % (33 + i))
    a("v_add_f32 v70, v70, v71")
    def row_sum(r):
        for sh in (8, 4, 2, 1):
            a("s_nop 1")
            a("v_add_f32_dpp v%d, v%d, v%d row_ror:%d row_mask:0xf bank_mask:0xf" % (r, r, r, sh))
    row_sum(70)
    a("v_mul_f32 v70, 0x%08x, v70" % f2u(1.0 / 576))
    a("v_mov_b32 v72, 0"); a("v_mov_b32 v73, 0")
    for i in range(0, 36, 2):
        a("v_sub_f32 v74, v%d, v70" % (32 + i))
        a("v_sub_f32 v75, v%d, v70" % (33 + i))
        a("v_fmac_f32 v72, v74, v74")
        a("v_fmac_f32 v73, v75, v75")
    a("v_add_f32 v72, v72, v73")
    row_sum(72)
    a("v_mul_f32 v72, 0x%08x, v72" % f2u(1.0 / 576))
    a("v_cvt_pk_bf16_f32 v76, v70, v72")
    a("v_lshlrev_b32 v70, 16, v76")
    a("v_and_b32 v72, 0xffff0000, v76")
    a("v_add_f32 v72, 0x%08x, v72" % f2u(1e-5))
    a("v_cvt_pk_bf16_f32 v76, v72, v72")
    a("v_lshlrev_b32 v72, 16, v76")
    a("v_sqrt_f32 v72, v72")
    a("s_nop 0")
    a("v_cvt_pk_bf16_f32 v76, v72, v72")
    a("v_lshlrev_b32 v72, 16, v76")
    a("v_rcp_f32 v72, v72")
    a("v_mov_b32 v77, 0")
    for i in range(18):
        x0, x1 = 32 + 2 * i, 33 + 2 * i
        a("v_sub_f32 v%d, v%d, v70" % (x0, x0))
        a("v_sub_f32 v%d, v%d, v70" % (x1, x1))
        a("v_cvt_pk_bf16_f32 v76, v%d, v%d" % (x0, x1))
        a("v_lshlrev_b32 v%d, 16, v76" % x0)
        a("v_and_b32 v%d, 0xffff0000, v76" % x1)
        a("v_mul_f32 v%d, v%d, v72" % (x0, x0))
        a("v_mul_f32 v%d, v%d, v72" % (x1, x1))
        a("v_cvt_pk_bf16_f32 v%d, v%d, v%d" % (8 + i, x0, x1))
        a("v_lshlrev_b32 v%d, 16, v%d" % (x0, 8 + i))
        a("v_and_b32 v%d, 0xffff0000, v%d" % (x1, 8 + i))
        a("v_sub_f32 v%d, v%d, v%d" % (x0, x0, x1))
        a("v_add_f32 v77, v77, v%d" % x0)
    stamp(a, 4, 2)
    for i in range(9):
        a("s_mov_b32 s30, %d" % (i * 4096))
        a("buffer_store_dwordx2 v[%d:%d], v4, s[36:39], s30 offen %s" % (8 + 2 * i, 9 + 2 * i, OPT.get("k1st", "")))
    row_sum(77)
    a("v_cvt_pk_bf16_f32 v77, v77, v77")
    a("v_mov_b32 v78, 0")
    a("v_lshlrev_b32 v79, 1, v1")
    a("v_add_u32 v79, %d, v79" % (288 * 8192))
    a("v_cmp_eq_u32 vcc, 0, v2")
    a("v_mov_b32 v80, 0x7ff00000")
    a("s_nop 0")
    a("v_cndmask_b32 v79, v80, v79, vcc")
    a("buffer_store_short v77, v79, s[40:43], 0 offen")
    a("s_movk_i32 s30, 4096")
    a("buffer_store_short v78, v79, s[40:43], s30 offen")
    stamp(a, 0, 1)
    dstamp(a, 0, 1)
    stamp(a, 4, 3)
    a("s_branch L_k1_done")
    a.label("L_k1_df")
    a("s_cmp_ge_u32 s2, %d" % (N_LN + N_DF)); a("s_cbranch_scc1 L_k1_tab")
    a("s_sub_u32 s28, s2, %d" % N_LN)
    a("s_lshl_b32 s28, s28, 2")
    a("s_add_u32 s28, s28, s48")
    a("s_mul_hi_u32 s29, s28, %d" % (-(-(1 << 32) // 36)))
    a("s_mul_i32 s30, s29, 36")
    a("s_sub_u32 s30, s28, s30")
    a("s_cmp_ge_u32 s29, 9")
    a("s_cselect_b32 s32, s12, s10")
    a("s_cselect_b32 s33, s13, s11")
    a("s_cselect_b32 s31, 9, 0")
    a("s_mov_b32 s34, %d" % (D * D * 2)); a("s_mov_b32 s35, 0x00020000")
    a("s_sub_u32 s29, s29, s31")
    srd(a, 36, 26, DF_BYTES * (2 if OPT.get("df2") else 1), WS_DF)
    a("v_and_b32 v1, 31, v21")
    a("s_lshl_b32 s29, s29, 5")
    a("v_add_u32 v1, s29, v1")
    a("s_movk_i32 s31, 1152")
    a("v_mul_lo_u32 v1, v1, s31")
    a("v_lshrrev_b32 v2, 5, v21")
    a("v_lshl_add_u32 v1, v2, 4, v1")
    a("s_lshl_b32 s30, s30, 5")
    a("buffer_load_dwordx4 v[8:11], v1, s[32:35], s30 offen")
    if OPT.get("cpf", 1): code_prefetch()
    a("v_lshlrev_b32 v3, 4, v21")
    if OPT.get("df2"):
        a("s_lshr_b32 s40, s30, 5")
        a("s_sub_u32 s41, s28, s40")
        a("s_add_u32 s28, s28, s41")
    a("s_lshl_b32 s28, s28, 10")
    a("s_waitcnt vmcnt(0)")
    a("buffer_store_dwordx4 v[8:11], v3, s[36:39], s28 offen %s" % OPT.get("k1st", ""))
    if OPT.get("df2"):
        a("s_add_u32 s28, s28, 36864")
        a("buffer_store_dwordx4 v[8:11], v3, s[36:39], s28 offen %s" % OPT.get("k1st", ""))
    stamp(a, 0, 2)
    a("s_branch L_k1_done")
    a.label("L_k1_tab")
    a("s_sub_u32 s28, s2, %d" % (N_LN + N_DF))
    a("s_lshl_b32 s28, s28, 2")
    a("s_add_u32 s28, s28, s48")
    a("s_cmp_eq_u32 s28, 38"); a("s_cbranch_scc0 L_k1_tab2")
    srd(a, 36, 26, 2048, WS_FLAG)
    a("v_lshlrev_b32 v3, 4, v21")
    a("v_mov_b32 v8, 0"); a("v_mov_b32 v9, 0"); a("v_mov_b32 v10, 0"); a("v_mov_b32 v11, 0")
    a("buffer_store_dwordx4 v[8:11], v3, s[36:39], 0 offen")
    a("buffer_store_dwordx4 v[8:11], v3, s[36:39], 0 offen offset:1024")
    a("s_branch L_k1_done")
    a.label("L_k1_tab2")
    a("s_cmp_ge_u32 s28, 38"); a("s_cbranch_scc1 L_k1_done")
    srd(a, 36, 26, TAB_BYTES, WS_TAB)
    a("v_and_b32 v1, 31, v21")
    a("v_lshrrev_b32 v2, 5, v21")
    a("v_lshlrev_b32 v3, 4, v21")
    a("s_lshl_b32 s29, s28, 10")
    a("s_cmp_ge_u32 s28, 22"); a("s_cbranch_scc1 L_k1_t3")
    a("s_cmp_ge_u32 s28, 6"); a("s_cbranch_scc1 L_k1_t2")
    a("s_and_b32 s30, s28, 1")
    a("s_lshl_b32 s30, s30, 4")
    a("v_lshl_add_u32 v4, v2, 3, s30")
    for j in range(8):
        a("v_add_u32 v5, %d, v4" % j)
        a("v_mul_u32_u24 v5, v5, v1")
        a("v_and_b32 v5, 31, v5")
        a("v_cvt_f32_u32 v5, v5")
        a("v_mul_f32 v5, 0x%08x, v5" % f2u(1.0 / 32))
        a("v_cos_f32 v%d, v5" % (8 + j))
        a("v_sin_f32 v%d, v5" % (16 + j))
    a("s_nop 0")
    a("s_cmp_lt_u32 s28, 2"); a("s_cbranch_scc1 L_k1_t1p")
    for j in range(8): a("v_mov_b32 v%d, v%d" % (8 + j, 16 + j))
    a("s_cmp_lt_u32 s28, 4"); a("s_cbranch_scc1 L_k1_t1p")
    for j in range(8): a("v_sub_f32 v%d, 0, v%d" % (8 + j, 16 + j))
    a.label("L_k1_t1p")
    for d in range(4): a("v_cvt_pk_bf16_f32 v%d, v%d, v%d" % (24 + d, 8 + 2 * d, 9 + 2 * d))
    a("buffer_store_dwordx4 v[24:27], v3, s[36:39], s29 offen")
    a("s_branch L_k1_done")
    a.label("L_k1_t2")
    a("s_sub_u32 s30, s28, 6")
    a("s_lshr_b32 s31, s30, 3")
    a("s_and_b32 s30, s30, 7")
    a("s_lshl_b32 s31, s31, 5")
    a("s_lshr_b32 s40, s30, 1"); a("s_lshl_b32 s40, s40, 3")
    a("s_add_u32 s31, s31, s40")
    a("s_and_b32 s40, s30, 1"); a("s_lshl_b32 s40, s40, 1")
    a("s_add_u32 s31, s31, s40")
    a("v_lshl_add_u32 v4, v2, 2, s31")
    for i in range(2):
        a("v_add_u32 v5, %d, v4" % i)
        a("v_mul_u32_u24 v5, v5, v1")
        a("v_cvt_f32_u32 v5, v5")
        a("v_mul_f32 v5, 0x%08x, v5" % f2u(1.0 / 2048))
        a("v_cos_f32 v%d, v5" % (24 + 2 * i))
        a("v_sin_f32 v%d, v5" % (25 + 2 * i))
    a("s_nop 1")
    a("buffer_store_dwordx4 v[24:27], v3, s[36:39], s29 offen")
    a("s_branch L_k1_done")
    a.label("L_k1_t3")
    a("s_sub_u32 s30, s28, 22")
    a("s_lshr_b32 s31, s30, 3")
    a("s_bfe_u32 s40, s30, 0x10002")
    a("s_and_b32 s30, s30, 3")
    a("s_lshl_b32 s40, s40, 5")
    a("v_add_u32 v1, s40, v1")
    a("s_lshl_b32 s30, s30, 4")
    a("v_lshl_add_u32 v4, v2, 2, s30")
    for j in range(8):
        a("v_add_u32 v5, %d, v4" % (j if j < 4 else 8 + j - 4))
        a("v_mul_u32_u24 v5, v5, v1")
        a("v_and_b32 v5, 63, v5")
        a("v_cvt_f32_u32 v5, v5")
        a("v_mul_f32 v5, 0x%08x, v5" % f2u(1.0 / 64))
        a("v_cos_f32 v%d, v5" % (8 + j))
        a("v_sin_f32 v%d, v5" % (16 + j))
    a("s_nop 0")
    a("s_cmp_eq_u32 s31, 0"); a("s_cbranch_scc1 L_k1_t3p")
    for j in range(8): a("v_mov_b32 v%d, v%d" % (8 + j, 16 + j))
    a.label("L_k1_t3p")
    for d in range(4): a("v_cvt_pk_bf16_f32 v%d, v%d, v%d" % (24 + d, 8 + 2 * d, 9 + 2 * d))
    a("buffer_store_dwordx4 v[24:27], v3, s[36:39], s29 offen")
    a.label("L_k1_done")
    a("s_endpgm")
    return name


def fft_column(a, kidx):
    srd(a, 32, 26, CF_BYTES, WS_CF)
    srd(a, 36, 26, TAB_BYTES, WS_TAB)
    srd(a, 40, 26, YT_BYTES, WS_YT)
    a("v_lshrrev_b32 v3, 3, v2")
    a("v_lshlrev_b32 v3, 7, v3")
    a("v_bfe_u32 v4, v2, 4, 1")
    a("v_lshlrev_b32 v4, 1, v4")
    a("v_bfe_u32 v5, v2, 1, 2")
    a("v_xor_b32 v5, v5, v4")
    a("v_lshl_add_u32 v3, v5, 5, v3")
    a("v_and_b32 v5, 1, v2")
    a("v_lshl_add_u32 v3, v5, 4, v3")
    a("s_lshl_b32 s50, s49, 13")
    for i in range(8):
        a("s_add_u32 s52, s50, %d" % (i * 1024))
        a("s_add_u32 m0, s51, %d" % (i * 1024))
        a("s_nop 0")
        a("buffer_load_dwordx4 v3, s[32:35], s52 offen sc1 lds")
    a("v_lshlrev_b32 v6, 4, v2")
    for i in range(6):
        a("s_movk_i32 s52, %d" % (i * 1024))
        a("buffer_load_dwordx4 v[%d:%d], v6, s[36:39], s52 offen" % (64 + 4 * i, 67 + 4 * i))
    for i in range(16):
        a("s_mov_b32 s52, %d" % ((22 + i) * 1024))
        a("buffer_load_dwordx4 v[%d:%d], v6, s[36:39], s52 offen" % (136 + 4 * i, 139 + 4 * i))
    a("v_bfe_u32 v8, v2, 4, 1")
    a("v_bfe_u32 v9, v2, 5, 1")
    a("v_bfe_u32 v10, v2, 2, 2")
    a("v_and_b32 v11, 3, v2")
    a("v_lshl_add_u32 v12, v9, 3, v10")
    a("v_lshlrev_b32 v12, 7, v12")
    a("v_lshl_add_u32 v12, v11, 3, v12")
    a("v_add_u32 v12, s51, v12")
    a("v_and_b32 v13, 2, v10")
    a("v_xor_b32 v14, v8, v13")
    a("v_lshl_add_u32 v16, v14, 5, v12")
    a("v_xor_b32 v14, 2, v14")
    a("v_lshl_add_u32 v17, v14, 5, v12")
    a("v_and_b32 v18, 31, v2")
    a("v_cvt_f32_u32 v18, v18")
    a("v_mul_f32 v18, 0x%08x, v18" % f2u(1.0 / 2048))
    a("v_cvt_f32_u32 v19, v9")
    a("v_mul_f32 v19, 4.0, v19")
    a("v_mul_f32 v19, v19, v18")
    a("s_waitcnt vmcnt(22)")
    C0, C1, S0, S1, N0, N1 = 64, 68, 72, 76, 80, 84
    for rt in range(2):
        for kk in range(4):
            p, h = kk >> 1, kk & 1
            for q in range(2):
                r = 200 + 16 * rt + 4 * kk + 2 * q
                a("ds_read_b64_tr_b16 v[%d:%d], v%d offset:%d" % (r, r + 1, 16 + rt, p * 4096 + h * 2048 + q * 512))
    a("s_waitcnt vmcnt(16) lgkmcnt(0)")
    br = [C0, C1, S0, S1]; bi = [N0, N1, C0, C1]
    UR = [88, 232]
    UI = [104, 120]
    for rt in range(2):
        ur, ui = UR[rt], UI[rt]
        for kk in range(4):
            ar = 200 + 16 * rt + 4 * kk
            a("v_mfma_f32_32x32x16_bf16 v[%d:%d], v[%d:%d], v[%d:%d], %s" % (ur, ur + 15, ar, ar + 3, br[kk], br[kk] + 3, "0" if kk == 0 else "v[%d:%d]" % (ur, ur + 15)))
            a("v_mfma_f32_32x32x16_bf16 v[%d:%d], v[%d:%d], v[%d:%d], %s" % (ui, ui + 15, ar, ar + 3, bi[kk], bi[kk] + 3, "0" if kk == 0 else "v[%d:%d]" % (ui, ui + 15)))
    for rt in range(2):
        ur, ui = UR[rt], UI[rt]
        if rt == 1: a("s_nop 7")
        for r in range(0, 16, 2):
            for i in range(2):
                rr = r + i
                s2c = 32 * rt + 8 * (rr >> 2) + (rr & 3)
                a("v_fmamk_f32 v%d, v18, 0x%08x, v19" % (52 + i, f2u(float(s2c))))
            a("v_cos_f32 v54, v52"); a("v_sin_f32 v56, v52")
            a("v_cos_f32 v55, v53"); a("v_sin_f32 v57, v53")
            for i in range(2):
                rr = r + i
                a("v_mul_f32 v%d, v%d, v%d" % (58 + i, ur + rr, 54 + i))
                a("v_mul_f32 v%d, v%d, v%d" % (62 + i, ui + rr, 54 + i))
            for i in range(2):
                rr = r + i
                a("v_fma_f32 v%d, v%d, v%d, v%d" % (58 + i, ui + rr, 56 + i, 58 + i))
                a("v_fma_f32 v%d, -v%d, v%d, v%d" % (62 + i, ur + rr, 56 + i, 62 + i))
            half, dd = r >> 3, (r >> 1) & 3
            base = 20 + 8 * (rt * 2 + half)
            a("v_cvt_pk_bf16_f32 v%d, v58, v59" % (base + dd))
            a("v_cvt_pk_bf16_f32 v%d, v62, v63" % (base + 4 + dd))
    a("s_waitcnt vmcnt(0)")
    a("s_nop 1")
    for part in range(2):
        for tt in range(2):
            y = 88 + 16 * tt
            for rh in range(4):
                ac = 136 + 4 * (part * 8 + tt * 4 + rh)
                vb = 20 + 8 * rh + 4 * part
                a("v_mfma_f32_32x32x16_bf16 v[%d:%d], v[%d:%d], v[%d:%d], %s" % (y, y + 15, ac, ac + 3, vb, vb + 3, "0" if (part == 0 and rh == 0) else "v[%d:%d]" % (y, y + 15)))
    a("v_and_b32 v4, 31, v2")
    a("v_lshlrev_b32 v4, 2, v4")
    a("v_lshrrev_b32 v5, 5, v2")
    a("v_lshl_add_u32 v4, v5, 9, v4")
    a("v_add_u32 v4, s51, v4")
    a("v_add_u32 v7, s51, v6")
    a("s_nop 15"); a("s_nop 3")
    for tt in range(2):
        for r in range(16):
            a("ds_write_b32 v4, v%d offset:%d" % (88 + 16 * tt + r, tt * 4096 + (8 * (r >> 2) + (r & 3)) * 128))
    a("s_waitcnt lgkmcnt(0)")
    for i in range(8):
        a("ds_read_b128 v[%d:%d], v7 offset:%d" % (136 + 4 * i, 139 + 4 * i, i * 1024))
    for i in range(8):
        a("s_waitcnt lgkmcnt(%d)" % (7 - i))
        a("s_add_u32 s52, s50, %d" % (i * 1024))
        a("buffer_store_dwordx4 v[%d:%d], v6, s[40:43], s52 offen %s" % (136 + 4 * i, 139 + 4 * i, OPT.get("ytst", "sc1")))

ACC = [16, 80]
XOV = 144
AF = 176
GT = 200
HP = 216
V_LANE16 = 1
V_DM0, V_DM1 = 2, 3
V_DH0, V_DH1 = 4, 5
V_TR = [6, 7, 8, 9]
V_TRH = [10, 11]
V_H = 12
V_HH = 13
V_C0 = 14
V_D2 = 224
V_TR2 = [225, 226, 227, 228]
V_HR = 229
V_CR, V_CG = 231, 254
V_CF = 230
V_LN, V_T1, V_T2 = 248, 249, 250
BR = 232
S_W = 32; S_X = 36; S_D = 40; S_P = 44
S_WAVE, S_TM, S_FH, S_M, S_J = 48, 49, 50, 51, 52
S_FB, S_FHB = 53, 54
S_LDSW = 55
S_COL = [56, 57, 58, 59, 60]
S_OFF = 61; S_T0 = 62; S_T1 = 63; S_C1 = 64
S_PB = 65; S_LDS2 = 66
S_WD0, S_WD1, S_OFF2 = 67, 68, 69
S_XB = 70
S_DF = 72
S_CF = 76
S_DFB = 80; S_CFB = 81
S_ROW = 4
S_ROT = 82; S_RB = 83
S_CNT = 86; S_DBG = 96

def xreg(ks, t):
    i = ks * 2 + t
    if i < 64: return "a[%d:%d]" % (4 * i, 4 * i + 3)
    r = XOV + 4 * (i - 64)
    return "v[%d:%d]" % (r, r + 3)

def gelu_items(accbase, tiles):
    items = []
    c1 = "s%d" % S_C1
    for n, (ti, off, areg) in enumerate(tiles):
        base = accbase + 16 * ti
        hp = HP + 4 * (n & 1)
        for pr in range(4):
            g0, g1 = base + 2 * pr, base + 2 * pr + 1
            u0, u1 = g0 + 8, g1 + 8
            t0, t1 = GT + 4 * (pr & 1), GT + 4 * (pr & 1) + 1
            m0, m1 = t0 + 2, t0 + 3
            items += [
                "v_mul_f32 v%d, v%d, v%d" % (t0, g0, g0),
                "v_mul_f32 v%d, v%d, v%d" % (t1, g1, g1),
                "v_fma_f32 v%d, v%d, %s, v%d" % (t0, t0, c1, V_C0),
                "v_fma_f32 v%d, v%d, %s, v%d" % (t1, t1, c1, V_C0),
                "v_mul_f32 v%d, v%d, v%d" % (t0, t0, g0),
                "v_mul_f32 v%d, v%d, v%d" % (t1, t1, g1),
                "v_exp_f32 v%d, v%d" % (t0, t0),
                "v_exp_f32 v%d, v%d" % (t1, t1),
                "v_mul_f32 v%d, v%d, v%d" % (m0, g0, u0),
                "v_mul_f32 v%d, v%d, v%d" % (m1, g1, u1),
                "v_add_f32 v%d, 1.0, v%d" % (t0, t0),
                "v_add_f32 v%d, 1.0, v%d" % (t1, t1),
                "v_rcp_f32 v%d, v%d" % (t0, t0),
                "v_rcp_f32 v%d, v%d" % (t1, t1),
                "v_mul_f32 v%d, v%d, v%d" % (m0, m0, t0),
                "v_mul_f32 v%d, v%d, v%d" % (m1, m1, t1),
                "v_cvt_pk_bf16_f32 v%d, v%d, v%d" % (hp + pr, m0, m1),
            ]
        items.append(("lds", "ds_write_b128 v%d, v[%d:%d] offset:%d" % (areg, hp, hp + 3, off), "hw"))
    return items

def k2(a):
    R = OPT["R"]; ABLS = OPT["abl"]
    HB = R * 8192
    name = "ffn_kernel"
    kernel_begin(a, name)
    a("s_cmp_ge_u32 s2, 256"); a("s_cbranch_scc1 L_ffn_done")
    load_ptrs(a)
    stamp(a, 1, 0)
    dstamp(a, 1, 2, mn=True)
    st = Stream(a)
    def emit_item(it):
        if isinstance(it, tuple):
            kind = it[0]
            if kind == "lds": st.lds(it[1], it[2])
            elif kind == "vm": st.vmem(it[1], it[2])
            elif kind == "bar":
                st.wait(vm=it[1])
                if "nobar" not in ABLS: st("s_barrier")
            else: raise ValueError(kind)
        elif isinstance(it, list):
            for x in it: emit_item(x)
        else:
            st(it)
    a("v_lshrrev_b32 v20, 6, v0")
    a("v_and_b32 v21, 63, v0")
    a("v_readfirstlane_b32 s%d, v20" % S_WAVE)
    mj_from_wg(a, S_M, S_J, S_T0, S_T1)
    a("s_lshr_b32 s%d, s%d, 1" % (S_TM, S_WAVE))
    a("s_and_b32 s%d, s%d, 1" % (S_FH, S_WAVE))
    a("s_mul_i32 s%d, s%d, 288" % (S_T0, S_J))
    a("s_lshl_b32 s%d, s%d, 5" % (S_FB, S_T1))
    a("s_add_u32 s%d, s%d, s%d" % (S_FB, S_FB, S_T0))
    a("s_cmp_eq_u32 s%d, 0" % S_T1)
    a("s_cselect_b32 s%d, 256, 0" % S_FHB)
    a("s_add_u32 s%d, s%d, s%d" % (S_FHB, S_FHB, S_T0))
    for s_ in range(4):
        a("s_add_u32 s%d, s%d, %d" % (S_COL[s_], S_FB, 64 * s_))
        a("s_lshl_b32 s%d, s%d, 1" % (S_COL[s_], S_COL[s_]))
    a("s_lshl_b32 s%d, s%d, 5" % (S_COL[4], S_T1))
    a("s_sub_u32 s%d, s%d, s%d" % (S_COL[4], S_FHB, S_COL[4]))
    a("s_lshl_b32 s%d, s%d, 1" % (S_COL[4], S_COL[4]))
    a("s_cmp_ge_u32 s%d, 2" % S_WAVE)
    a("s_cselect_b32 s%d, s18, s16" % S_W)
    a("s_cselect_b32 s%d, s19, s17" % (S_W + 1))
    a("s_mov_b32 s%d, %d" % (S_W + 2, D * F * 2)); a("s_mov_b32 s%d, 0x00020000" % (S_W + 3))
    srd(a, S_X, 26, S * D * 2, WS_XNF)
    a("s_lshl_b32 s%d, s%d, 11" % (S_LDSW, S_WAVE))
    a("v_lshlrev_b32 v%d, 4, v21" % V_LANE16)
    a("v_lshrrev_b32 v22, 3, v21")
    a("s_lshl_b32 s%d, s%d, 4" % (S_T0, S_FH))
    a("v_add_u32 v22, s%d, v22" % S_T0)
    a("s_movk_i32 s%d, 9216" % S_T0)
    a("v_mul_lo_u32 v22, v22, s%d" % S_T0)
    a("v_bfe_u32 v23, v21, 4, 1")
    a("s_lshl_b32 s%d, s%d, 1" % (S_T0, S_TM))
    a("v_or_b32 v23, s%d, v23" % S_T0)
    a("v_bfe_u32 v24, v21, 1, 2")
    a("v_xor_b32 v24, v24, v23")
    a("v_and_b32 v25, 1, v21")
    a("v_lshlrev_b32 v25, 4, v25")
    a("v_lshl_add_u32 v25, v24, 5, v25")
    a("v_add_u32 v%d, v22, v25" % V_DM0)
    a("v_add_u32 v%d, %d, v%d" % (V_DM1, 8 * 9216, V_DM0))
    a("s_lshl_b32 s%d, s%d, 2" % (S_T0, S_M))
    a("s_lshl_b32 s%d, s%d, 1" % (S_T1, S_TM))
    a("s_add_u32 s%d, s%d, s%d" % (S_T0, S_T0, S_T1))
    a("s_mul_i32 s%d, s%d, 36864" % (S_XB, S_T0))
    srd(a, S_D, 20, D * F * 2)
    if OPT.get("rot", 1):
        a("s_mul_i32 s%d, s%d, 18" % (S_ROT, S_M))
        a("s_lshr_b32 s%d, s%d, 4" % (S_ROT, S_ROT))
    else:
        a("s_mov_b32 s%d, 0" % S_ROT)
    def row_entry(s_):
        if s_ == 0:
            a("s_mul_i32 s%d, s%d, %d" % (S_ROW, S_ROT, 32 * 9216))
        else:
            a("s_add_u32 s%d, s%d, %d" % (S_ROW + s_, S_ROW + s_ - 1, 32 * 9216))
            a("s_cmp_eq_u32 s%d, %d" % (S_ROW + s_, 18 * 32 * 9216))
            a("s_cselect_b32 s%d, 0, s%d" % (S_ROW + s_, S_ROW + s_))

    def dma_items(g):
        stg, s_ = divmod(g, 18)
        if stg > 4: return []
        if "nodma" in ABLS and g >= 8: return []
        slot = g % R
        v0_, v1_ = (V_DH0, V_DH1) if stg == 4 else (V_DM0, V_DM1)
        g0 = ["s_add_u32 s%d, s%d, s%d" % (S_OFF, S_COL[stg], S_ROW + s_),
              "s_add_u32 m0, s%d, %d" % (S_LDSW, slot * 8192),
              "NOPSLOT",
              ("vm", "buffer_load_dwordx4 v%d, s[%d:%d], s%d offen lds" % (v0_, S_W, S_W + 3, S_OFF), ("W", g))]
        g1 = ["s_add_u32 m0, s%d, %d" % (S_LDSW, slot * 8192 + 1024),
              "NOPSLOT",
              ("vm", "buffer_load_dwordx4 v%d, s[%d:%d], s%d offen lds" % (v1_, S_W, S_W + 3, S_OFF), ("W", g))]
        return [g0, g1]
    def emit_group(grp, filler=None):
        for it in grp:
            if it == "NOPSLOT":
                if not (filler and filler()): st("s_nop 0")
            else: emit_item(it)
    def xload_items(ks):
        out = []
        for t in range(2):
            sl = ks // 2
            out.append(["s_mul_hi_u32 s%d, s%d, %d" % (S_OFF2, S_ROW + sl, -(-(1 << 32) // 144)),
                        "s_add_u32 s%d, s%d, s%d" % (S_OFF2, S_OFF2, S_XB),
                        "s_add_u32 s%d, s%d, %d" % (S_OFF2, S_OFF2, t * 36864 + (ks & 1) * 1024),
                        ("vm", "buffer_load_dwordx4 %s, v%d, s[%d:%d], s%d offen" % (xreg(ks, t), V_LANE16, S_X, S_X + 3, S_OFF2), ("X", ks))])
        return out
    NPRE = R - 1
    XA = OPT["xahead"]
    for s_ in range(NPRE):
        row_entry(s_)
        for grp in dma_items(s_): emit_group(grp)
        for ks in (2 * s_, 2 * s_ + 1):
            if ks < XA:
                for it in xload_items(ks): emit_item(it)
    for s_ in range(NPRE, 18): row_entry(s_)
    srd(a, S_P, 26, PART_BYTES, WS_PART)
    srd(a, S_DF, 26, DF_BYTES, WS_DF)
    srd(a, S_CF, 26, CF_BYTES, WS_CF)
    a("s_lshl_b32 s%d, s%d, 10" % (S_LDS2, S_WAVE))
    a("s_mov_b32 s%d, 0x%08x" % (S_C1, f2u(-2.0 * 0.7978845608028654 * 1.4426950408889634 * 0.044715)))
    a("v_mov_b32 v%d, 0x%08x" % (V_C0, f2u(-2.0 * 0.7978845608028654 * 1.4426950408889634)))
    a("v_lshrrev_b32 v24, 1, v24")
    a("s_and_b32 s%d, s%d, 1" % (S_T0, S_J))
    a("v_cmp_eq_u32 vcc, s%d, v24" % S_T0)
    a("v_mov_b32 v26, 0x7ff00000")
    a("s_nop 0")
    a("v_cndmask_b32 v%d, v26, v%d, vcc" % (V_DH0, V_DM0))
    a("v_cndmask_b32 v%d, v26, v%d, vcc" % (V_DH1, V_DM1))
    a("v_bfe_u32 v22, v21, 4, 1")
    a("v_bfe_u32 v23, v21, 5, 1")
    a("v_bfe_u32 v24, v21, 2, 2")
    a("v_and_b32 v25, 3, v21")
    a("v_lshlrev_b32 v26, 12, v22")
    a("v_lshl_add_u32 v27, v23, 3, v24")
    a("v_lshl_add_u32 v26, v27, 7, v26")
    a("v_lshl_add_u32 v26, v25, 3, v26")
    a("v_lshrrev_b32 v27, 1, v24")
    a("v_lshl_or_b32 v27, v22, 1, v27")
    a("s_lshl_b32 s%d, s%d, 1" % (S_T0, S_FH))
    a("v_xor_b32 v28, s%d, v27" % S_T0)
    a("v_lshl_add_u32 v%d, v28, 5, v26" % V_TR[0])
    a("v_xor_b32 v28, 1, v28")
    a("v_lshl_add_u32 v%d, v28, 5, v26" % V_TR[1])
    a("v_add_u32 v%d, 49152, v%d" % (V_TR[2], V_TR[0]))
    a("v_add_u32 v%d, 49152, v%d" % (V_TR[3], V_TR[1]))
    a("s_and_b32 s%d, s%d, 1" % (S_T0, S_J))
    a("s_lshl_b32 s%d, s%d, 1" % (S_T0, S_T0))
    a("s_add_u32 s%d, s%d, s%d" % (S_T0, S_T0, S_FH))
    a("v_xor_b32 v28, s%d, v27" % S_T0)
    a("v_lshl_add_u32 v%d, v28, 5, v26" % V_TRH[0])
    a("v_add_u32 v%d, 49152, v%d" % (V_TRH[1], V_TRH[0]))
    a("s_mul_i32 s%d, s%d, 36" % (S_T0, S_TM))
    a("s_lshl_b32 s%d, s%d, 1" % (S_T1, S_FH))
    a("s_add_u32 s%d, s%d, s%d" % (S_T1, S_T1, S_T0))
    a("s_lshl_b32 s%d, s%d, 10" % (S_T1, S_T1))
    a("s_add_u32 s%d, s%d, %d" % (S_T1, S_T1, HB))
    a("v_add_u32 v%d, s%d, v%d" % (V_H, S_T1, V_LANE16))
    a("s_add_u32 s%d, s%d, 16" % (S_T1, S_T0))
    a("s_add_u32 s%d, s%d, s%d" % (S_T1, S_T1, S_FH))
    a("s_lshl_b32 s%d, s%d, 10" % (S_T1, S_T1))
    a("s_add_u32 s%d, s%d, %d" % (S_T1, S_T1, HB))
    a("v_add_u32 v%d, s%d, v%d" % (V_HH, S_T1, V_LANE16))
    a("s_lshl_b32 s%d, s%d, 10" % (S_T1, S_T0))
    a("s_add_u32 s%d, s%d, %d" % (S_T1, S_T1, HB))
    a("v_add_u32 v%d, s%d, v%d" % (V_HR, S_T1, V_LANE16))
    a("v_lshrrev_b32 v22, 3, v21")
    a("s_lshl_b32 s%d, s%d, 3" % (S_T0, S_WAVE))
    a("v_add_u32 v22, s%d, v22" % S_T0)
    a("s_movk_i32 s%d, 1152" % S_T0)
    a("v_mul_lo_u32 v22, v22, s%d" % S_T0)
    a("v_bfe_u32 v23, v21, 4, 1")
    a("v_lshlrev_b32 v23, 1, v23")
    a("v_bfe_u32 v24, v21, 1, 2")
    a("v_xor_b32 v24, v24, v23")
    a("v_and_b32 v25, 1, v21")
    a("v_lshlrev_b32 v25, 4, v25")
    a("v_lshl_add_u32 v25, v24, 5, v25")
    a("v_add_u32 v%d, v22, v25" % V_D2)
    a("v_bfe_u32 v22, v21, 4, 1")
    a("v_bfe_u32 v23, v21, 5, 1")
    a("v_bfe_u32 v24, v21, 2, 2")
    a("v_and_b32 v25, 3, v21")
    a("v_lshl_add_u32 v26, v23, 2, v24")
    a("v_lshlrev_b32 v26, 7, v26")
    a("v_lshl_add_u32 v26, v25, 3, v26")
    a("v_and_b32 v27, 2, v24")
    a("s_lshl_b32 s%d, s%d, 1" % (S_T0, S_FH))
    a("v_or_b32 v28, s%d, v22" % S_T0)
    a("v_xor_b32 v28, v28, v27")
    a("v_lshl_add_u32 v%d, v28, 5, v26" % V_TR2[0])
    for b in range(1, 4):
        a("v_add_u32 v%d, %d, v%d" % (V_TR2[b], 36864 * b, V_TR2[0]))
    a("s_lshl_b32 s%d, s%d, 4" % (S_T0, S_J))
    a("s_add_u32 s%d, s%d, s%d" % (S_T0, S_T0, S_M))
    a("s_lshl_b32 s%d, s%d, 2" % (S_T0, S_T0))
    a("s_lshl_b32 s%d, s%d, 1" % (S_T1, S_TM))
    a("s_add_u32 s%d, s%d, s%d" % (S_T0, S_T0, S_T1))
    a("s_mul_i32 s%d, s%d, %d" % (S_PB, S_T0, 18 * 2048))
    a("s_lshl_b32 s%d, s%d, 11" % (S_T1, S_FH))
    a("s_add_u32 s%d, s%d, s%d" % (S_PB, S_PB, S_T1))
    a("s_mul_i32 s%d, s%d, 1152" % (S_WD0, S_FB))
    a("s_mul_i32 s%d, s%d, 1152" % (S_WD1, S_FHB))
    if OPT.get("rot", 1):
        a("s_mul_i32 s%d, s%d, 9" % (S_RB, S_M))
        a("s_lshr_b32 s%d, s%d, 4" % (S_RB, S_RB))
    else:
        a("s_mov_b32 s%d, 0" % S_RB)
    a("s_lshl_b32 s%d, s%d, 1" % (S_T0, S_J))
    a("s_add_u32 s%d, s%d, s%d" % (S_T0, S_T0, S_FH))
    a("s_mul_i32 s%d, s%d, 36864" % (S_DFB, S_T0))
    a("s_cmp_ge_u32 s%d, 9" % S_T0)
    a("s_cselect_b32 s%d, 9, 0" % S_T1)
    a("s_sub_u32 s%d, s%d, s%d" % (S_T0, S_T0, S_T1))
    a("s_lshl_b32 s%d, s%d, 18" % (S_CFB, S_T0))
    a("s_cselect_b32 s%d, 4096, 0" % S_T1)
    a("s_lshl_b32 s%d, s%d, 1" % (S_T0, S_J))
    a("s_add_u32 s%d, s%d, s%d" % (S_T0, S_T0, S_FH))
    a("s_cmp_ge_u32 s%d, 9" % S_T0)
    a("s_cselect_b32 s%d, 4096, 0" % S_T1)
    a("s_add_u32 s%d, s%d, s%d" % (S_CFB, S_CFB, S_T1))
    a("s_lshl_b32 s%d, s%d, 8" % (S_T0, S_M))
    a("s_add_u32 s%d, s%d, s%d" % (S_CFB, S_CFB, S_T0))
    a("s_lshl_b32 s%d, s%d, 7" % (S_T0, S_TM))
    a("s_add_u32 s%d, s%d, s%d" % (S_CFB, S_CFB, S_T0))
    a("s_lshl_b32 s%d, s%d, 12" % (S_T0, S_WAVE))
    a("s_add_u32 s%d, s%d, 147456" % (S_T0, S_T0))
    a("v_and_b32 v22, 31, v21")
    a("v_lshlrev_b32 v22, 7, v22")
    a("v_lshrrev_b32 v23, 5, v21")
    a("v_lshl_add_u32 v22, v23, 4, v22")
    a("v_add_u32 v%d, s%d, v22" % (V_CF, S_T0))
    a("v_add_u32 v%d, s%d, v%d" % (V_CR, S_T0, V_LANE16))
    a("v_lshrrev_b32 v22, 3, v21")
    a("v_lshlrev_b32 v22, 13, v22")
    a("v_and_b32 v23, 7, v21")
    a("v_lshl_add_u32 v%d, v23, 4, v22" % V_CG)
    a("v_mov_b32 v%d, v21" % V_LN)
    srd(a, S_DBG, 26, 288 * 4, WS_FLAG)
    a("s_lshl_b32 s%d, s%d, 1" % (S_T0, S_J))
    a("s_add_u32 s%d, s%d, s%d" % (S_T0, S_T0, S_FH))
    a("s_lshl_b32 s%d, s%d, 4" % (S_T0, S_T0))
    a("s_add_u32 s%d, s%d, s%d" % (S_T0, S_T0, S_M))
    a("s_lshl_b32 s%d, s%d, 2" % (S_CNT, S_T0))
    a("s_cmp_lg_u32 s%d, 0" % S_TM)
    a("s_cselect_b32 s%d, 0x7ff00000, s%d" % (S_CNT, S_CNT))
    stamp(a, 1, 1)
    dstamp(a, 1, 3)

    HI = 49152
    def trread(g, kk, half):
        slot = g % R
        gks = g * 2 + kk
        buf = gks % 3
        out = []
        ncs = 1 if half else 2
        for c in range(ncs):
            for q in range(2):
                off = slot * 8192 + kk * 2048 + q * 512
                hi = off >= HI
                if half: areg = V_TRH[1 if hi else 0]
                else: areg = V_TR[c + (2 if hi else 0)]
                if hi: off -= HI
                r = AF + (buf * 2 + c) * 4 + q * 2
                out.append(("lds", "ds_read_b64_tr_b16 v[%d:%d], v%d offset:%d" % (r, r + 1, areg, off), ("A", gks)))
        return out
    B = OPT["B"]
    NG = 5 * 18
    st.wait(vm=[("W", i) for i in range(B)])
    st("s_barrier")
    for kk in range(2):
        for it in trread(0, kk, False): emit_item(it)
    next_dma = [NPRE]
    dma_pending = []
    S_BC = 84
    def blk_items(dst, b, mul):
        return ["s_add_u32 s%d, s%d, %d" % (dst, S_RB, b),
                "s_cmp_ge_u32 s%d, 9" % dst,
                "s_cselect_b32 s%d, 9, 0" % S_T0,
                "s_sub_u32 s%d, s%d, s%d" % (dst, dst, S_T0),
                "s_mul_i32 s%d, s%d, %d" % (dst, dst, mul)]
    def stage(stg, accset, gelu_q):
        half = stg == 4
        ncs = 1 if half else 2
        gq = list(gelu_q) if "nogelu" not in ABLS else []
        nm_total = 36 * ncs * 2
        per = len(gq) / float(nm_total - 6)
        state = {"acc": 0.0, "em": 0}
        def pop_gelu():
            if gq:
                emit_item(gq.pop(0)); state["em"] += 1
                return True
            return False
        mi = 0
        since_dma = 99
        xq = []
        for ks in range(36):
            g = stg * 18 + ks // 2
            gks = stg * 36 + ks
            buf = gks % 3
            g2, kk2 = divmod(gks + 2, 2)
            bar = None
            if kk2 == 0 and g2 % B == 0 and g2 < NG:
                bar = [("W", i) for i in range(g2, min(g2 + B, NG))]
            reads = trread(g2, kk2, g2 // 18 == 4) if (g2 < NG and "notr" not in ABLS) else []
            if stg == 0 and ks + XA < 36: xq.extend(xload_items(ks + XA))
            if stg == 4 and ks == 22 and OPT.get("wdpf", 1):
                assert next_dma[0] >= NG and not dma_pending
                st("v_mov_b32 v%d, v0" % V_T1)
                st("v_mul_u32_u24 v%d, 1152, v%d" % (V_T1, V_T1))
                for bb in range(2):
                    for x in blk_items(S_BC, bb, 128): st(x)
                    st("s_add_u32 s%d, s%d, s%d" % (S_OFF, S_WD0, S_BC))
                    st.vmem("buffer_load_dword v%d, v%d, s[%d:%d], s%d offen" % (V_T2, V_T1, S_D, S_D + 3, S_OFF), "PF")
                    st("s_add_u32 s%d, s%d, s%d" % (S_OFF, S_WD1, S_BC))
                    st("v_and_b32 v%d, 31, v%d" % (V_T2 + 5, V_LN))
                    st("v_mul_u32_u24 v%d, 1152, v%d" % (V_T2 + 5, V_T2 + 5))
                    st.vmem("buffer_load_dword v%d, v%d, s[%d:%d], s%d offen" % (V_T2, V_T2 + 5, S_D, S_D + 3, S_OFF), "PF")
            st.wait(vm=[("X", ks)] if stg == 0 else [], lg=[("A", gks)])
            ng = ncs * 2
            k = 0
            for c in range(ncs):
                for t in range(2):
                    ti = c * 2 + t
                    d = ACC[accset] + 16 * ti
                    ar = AF + (buf * 2 + c) * 4
                    src = "0" if ks == 0 else "v[%d:%d]" % (d, d + 15)
                    st("v_mfma_f32_32x32x16_bf16 v[%d:%d], v[%d:%d], %s, %s" % (d, d + 15, ar, ar + 3, xreg(ks, t), src))
                    mi += 1
                    if k == 0 and bar is not None:
                        emit_item(("bar", bar))
                        while next_dma[0] < NG and next_dma[0] - R <= g2 - 2:
                            dma_pending.extend(dma_items(next_dma[0])); next_dma[0] += 1
                    lo = k * len(reads) // ng; hi_ = (k + 1) * len(reads) // ng
                    for it in reads[lo:hi_]: emit_item(it)
                    since_dma += 1
                    did = False
                    if xq and k in (1, 3):
                        emit_item(xq.pop(0)); did = True
                    elif dma_pending and since_dma >= OPT.get("dmagap", 4 if not half else 2) and not (k == 0 and bar is not None):
                        emit_group(dma_pending.pop(0), pop_gelu if mi > 6 else None)
                        since_dma = 0; did = True
                    if mi > 6:
                        state["acc"] += per
                        n = 0
                        cap = OPT["gcap"] - (2 if did else 0)
                        while gq and state["em"] < state["acc"] and n < cap:
                            pop_gelu(); n += 1
                    k += 1
        assert not xq
        while gq: pop_gelu()

    def full_tiles(stg):
        return [(c * 2 + t, (t * 18 + c) * 1024 + stg * 4096, V_H) for c in range(2) for t in range(2)]
    stage(0, 0, [])
    stamp(a, 1, 2)
    dstamp(a, 1, 4)
    stage(1, 1, gelu_items(ACC[0], full_tiles(0)))
    stage(2, 0, gelu_items(ACC[1], full_tiles(1)))
    if OPT.get("dfpf", 0):
        st("v_lshlrev_b32 v%d, 7, v%d" % (V_T1, V_LN))
        for i in range(5):
            st("s_add_u32 s%d, s%d, %d" % (S_T0, S_DFB, i * 8192))
            st.vmem("buffer_load_dword v%d, v%d, s[%d:%d], s%d offen" % (V_T2, V_T1, S_DF, S_DF + 3, S_T0), "PF")
    stage(3, 1, gelu_items(ACC[0], full_tiles(2)))
    stage(4, 0, gelu_items(ACC[1], full_tiles(3)))
    assert not dma_pending
    stamp(a, 1, 3)
    dstamp(a, 1, 5)
    def wd_groups(b):
        buf = b % 4
        out = []
        for i in range(9):
            base = S_WD0 if i < 8 else S_WD1
            off = (32 * i * 1152 if i < 8 else 0)
            pre = blk_items(S_BC, b, 128) if i == 0 else []
            out.append(pre + ["s_add_u32 s%d, s%d, s%d" % (S_OFF, base, S_BC),
                        "s_add_u32 s%d, s%d, %d" % (S_OFF, S_OFF, off),
                        "s_add_u32 m0, s%d, %d" % (S_LDS2, buf * 36864 + i * 4096),
                        "NOPSLOT",
                        ("vm", "buffer_load_dwordx4 v%d, s[%d:%d], s%d offen lds" % (V_D2, S_D, S_D + 3, S_OFF), ("D", b))])
        return out
    st.wait_all(vm=False, lg=True)
    st("s_barrier")
    tail = gelu_items(ACC[0], [(t, t * 18 * 1024, V_HH) for t in range(2)])
    a("s_cmp_ge_u32 s%d, 9" % S_J)
    a("s_cbranch_scc1 L_ffn_noa1")
    stamp(a, 6, 0)
    vm_save, lg_save = list(st.vm), list(st.lg)
    NB = 18
    def breg(ks):
        i = ks % NB
        r = (AF + 4 * i) if i < 6 else (BR + 4 * (i - 6)) if i < 10 else (112 + 4 * (i - 10))
        return r
    def bload(ks):
        r = breg(ks)
        return ["s_mul_hi_u32 s%d, s%d, %d" % (S_OFF2, S_ROW + ks // 2, -(-(1 << 32) // 144)),
                "s_add_u32 s%d, s%d, s%d" % (S_OFF2, S_OFF2, S_DFB),
                "s_add_u32 s%d, s%d, %d" % (S_OFF2, S_OFF2, (ks & 1) * 1024),
                ("vm", "buffer_load_dwordx4 v[%d:%d], v%d, s[%d:%d], s%d offen" % (r, r + 3, V_LANE16, S_DF, S_DF + 3, S_OFF2), ("B", ks))]
    for ks in range(NB - 1): emit_item(bload(ks))
    wdq = wd_groups(0) + wd_groups(1)
    stamp(a, 6, 1)
    A1ACC = ACC[1]
    tq = list(tail)
    for ks in range(36):
        st.wait(vm=[("B", ks)])
        if ks == 0: stamp(a, 6, 2)
        for t in range(2):
            d = A1ACC + 16 * t
            br = breg(ks)
            src = "0" if ks == 0 else "v[%d:%d]" % (d, d + 15)
            st("v_mfma_f32_32x32x16_bf16 v[%d:%d], %s, v[%d:%d], %s" % (d, d + 15, xreg(ks, t), br, br + 3, src))
            if t == 0 and ks + NB - 1 < 36:
                emit_item(bload(ks + NB - 1))
            elif wdq and ks + NB - 1 >= 36:
                emit_group(wdq.pop(0))
            if ks >= 2:
                for _ in range(3):
                    if tq: emit_item(tq.pop(0))
    assert not tq and not wdq, (len(tq), len(wdq))
    stamp(a, 6, 3)
    st("s_nop 15"); st("s_nop 3")
    for t in range(2):
        pk = GT + 8 * 0 if t == 0 else HP
        for dd in range(8):
            st("v_cvt_pk_bf16_f32 v%d, v%d, v%d" % (pk + dd, A1ACC + 16 * t + 2 * dd, A1ACC + 16 * t + 2 * dd + 1))
        st("s_nop 1")
        st("v_permlane32_swap_b32 v%d, v%d" % (pk + 0, pk + 2))
        st("v_permlane32_swap_b32 v%d, v%d" % (pk + 1, pk + 3))
        st("v_permlane32_swap_b32 v%d, v%d" % (pk + 4, pk + 6))
        st("v_permlane32_swap_b32 v%d, v%d" % (pk + 5, pk + 7))
        st.lds("ds_write_b128 v%d, v[%d:%d] offset:%d" % (V_CF, pk, pk + 3, t * 64), "cw")
        st.lds("ds_write_b128 v%d, v[%d:%d] offset:%d" % (V_CF, pk + 4, pk + 7, t * 64 + 32), "cw")
    st.wait_all(vm=False, lg=True)
    for k in range(4):
        st.lds("ds_read_b128 v[%d:%d], v%d offset:%d" % (112 + 4 * k, 115 + 4 * k, V_CR, k * 1024), ("cr", k))
    for k in range(4):
        st.wait(lg=[("cr", k)])
        st("s_add_u32 s%d, s%d, %d" % (S_OFF2, S_CFB, k * 8 * 8192))
        st.vmem("buffer_store_dwordx4 v[%d:%d], v%d, s[%d:%d], s%d offen sc1" % (112 + 4 * k, 115 + 4 * k, V_CG, S_CF, S_CF + 3, S_OFF2), "CF")
    stamp(a, 6, 4)
    a("s_branch L_ffn_join")
    vm_a = list(st.vm)
    a.label("L_ffn_noa1")
    st.vm, st.lg = vm_save, lg_save
    for grp in wd_groups(0) + wd_groups(1): emit_group(grp)
    for it in tail: emit_item(it)
    a.label("L_ffn_join")
    st.wait_all(vm=False, lg=True)
    st("s_barrier")
    stamp(a, 6, 5)
    for t in range(2):
        for ci in range(18):
            i = t * 18 + ci
            st.lds("ds_read_b128 a[%d:%d], v%d offset:%d" % (4 * i, 4 * i + 3, V_HR, i * 1024), ("H", i))
    st.wait_all(vm=False, lg=True)
    stamp(a, 6, 6)
    st("s_waitcnt vmcnt(4)")
    st("s_barrier")
    st.vm = [("D", 1)] * 4
    for grp in wd_groups(2): emit_group(grp)
    stamp(a, 1, 4)
    dstamp(a, 1, 6)
    A2 = 176; ACC2 = [16, 48]; PK = 200
    def trread2(b, ci):
        gk = b * 18 + ci
        r = A2 + (gk % 4) * 4
        return [("lds", "ds_read_b64_tr_b16 v[%d:%d], v%d offset:%d" % (r + 2 * q, r + 2 * q + 1, V_TR2[b % 4], ci * 2048 + q * 1024), ("A2", gk)) for q in range(2)]
    def epi_items(b):
        items = []
        acc = ACC2[b % 2]
        for t in range(2):
            pk = PK + 8 * t
            for d in range(8):
                items.append("v_cvt_pk_bf16_f32 v%d, v%d, v%d" % (pk + d, acc + 16 * t + 2 * d, acc + 16 * t + 2 * d + 1))
            for q in range(2):
                pre = blk_items(S_BC + 1, b, 4096) if (t == 0 and q == 0) else []
                items.append(pre + ["s_add_u32 s%d, s%d, s%d" % (S_OFF2, S_PB, S_BC + 1),
                              "s_add_u32 s%d, s%d, %d" % (S_OFF2, S_OFF2, t * 18 * 2048),
                              ("vm", "buffer_store_dwordx4 v[%d:%d], v%d, s[%d:%d], s%d offen offset:%d %s" % (pk + 4 * q, pk + 4 * q + 3, V_LANE16, S_P, S_P + 3, S_OFF2, q * 1024, OPT["stflags"]), ("P", b))])
        return items
    for ci in range(3):
        for it in trread2(0, ci): emit_item(it)
    pend = list(wd_groups(3))
    for b in range(9):
        eq = epi_items(b - 1) if b > 0 else []
        if b == 5 and OPT.get("cpf3", 1):
            st("s_getpc_b64 s[%d:%d]" % (S_DF, S_DF + 1))
            a.label("L_k2_pc")
            st("s_add_u32 s%d, s%d, fin_kernel-L_k2_pc" % (S_DF, S_DF))
            st("s_addc_u32 s%d, s%d, 0" % (S_DF + 1, S_DF + 1))
            st("v_lshlrev_b32 v%d, 6, v0" % (BR + 1))
            st("v_min_u32 v%d, L_code_end-fin_kernel-64, v%d" % (BR + 1, BR + 1))
            st.vmem("global_load_dword v%d, v%d, s[%d:%d]" % (BR, BR + 1, S_DF, S_DF + 1), "PF")
        mi = 0
        since = 99
        for ci in range(18):
            gk = b * 18 + ci
            nb, nci = divmod(gk + 3, 18)
            reads = trread2(nb, nci) if nb < 9 else []
            st.wait(lg=[("A2", gk)])
            for t in range(2):
                d = ACC2[b % 2] + 16 * t
                ar = A2 + (gk % 4) * 4
                hr = (t * 18 + ci) * 4
                src = "0" if ci == 0 else "v[%d:%d]" % (d, d + 15)
                st("v_mfma_f32_32x32x16_bf16 v[%d:%d], v[%d:%d], a[%d:%d], %s" % (d, d + 15, ar, ar + 3, hr, hr + 3, src))
                mi += 1
                isbar = (t == 0 and ci == 15 and b + 1 < 9)
                if isbar:
                    emit_item(("bar", [("D", b + 1)]))
                    if b == 0:
                        st("v_lshlrev_b32 v%d, 20, v%d" % (V_T1, V_LN))
                        st("v_add_u32 v%d, s%d, v%d" % (V_T1, S_CNT, V_T1))
                        st("v_mov_b32 v%d, 1" % V_T2)
                        st.vmem("buffer_store_dword v%d, v%d, s[%d:%d], 0 offen sc1" % (V_T2, V_T1, S_DBG, S_DBG + 3), "SIG")
                    if b >= 1 and b + 3 <= 8:
                        pend.extend(wd_groups(b + 3))
                if reads: emit_item(reads[t])
                since += 1
                vm_done = False
                if pend and since >= 3 and not isbar:
                    emit_group(pend.pop(0)); since = 0; vm_done = True
                if mi > 4 and eq and not vm_done:
                    it = eq.pop(0)
                    if isinstance(it, list):
                        if since >= 2:
                            emit_item(it); since = 0
                        else: eq.insert(0, it)
                    else:
                        emit_item(it)
                        if eq and not isinstance(eq[0], list): emit_item(eq.pop(0))
        while eq: emit_item(eq.pop(0))
    assert not pend
    st("s_nop 15"); st("s_nop 3")
    for it in epi_items(8): emit_item(it)
    stamp(a, 1, 5)
    dstamp(a, 1, 7)
    a("s_cmp_lt_u32 s%d, 9" % S_J); a("s_cbranch_scc1 L_ffn_done")
    a("s_cmp_ge_u32 s%d, 3" % S_WAVE); a("s_cbranch_scc1 L_ffn_done")
    a("s_sub_u32 s49, s%d, 9" % S_J)
    a("s_lshl_b32 s49, s49, 4")
    a("s_add_u32 s49, s49, s%d" % S_M)
    a("s_mul_i32 s49, s49, 3")
    a("s_add_u32 s49, s49, s%d" % S_WAVE)
    a("s_cmp_gt_u32 s49, 288"); a("s_cbranch_scc1 L_ffn_done")
    a("s_lshl_b32 s51, s%d, 13" % S_WAVE)
    a("s_add_u32 s51, s51, 36864")
    a("v_mov_b32 v2, v%d" % V_LN)
    a("s_cmp_eq_u32 s49, 288"); a("s_cbranch_scc1 L_ffn_fgo")
    a("s_lshr_b32 s52, s49, 5"); a("s_lshl_b32 s52, s52, 6")
    a("v_and_b32 v3, 15, v2"); a("v_lshlrev_b32 v3, 2, v3")
    a("v_bfe_u32 v4, v2, 4, 1"); a("v_mul_u32_u24 v4, 576, v4")
    a("v_add_u32 v3, v3, v4"); a("v_add_u32 v3, s52, v3")
    a("s_mov_b32 s53, 0")
    a.label("L_ffn_fpoll")
    a("buffer_load_dword v4, v3, s[%d:%d], 0 offen sc1" % (S_DBG, S_DBG + 3))
    a("s_waitcnt vmcnt(0)")
    a("v_cmp_eq_u32 vcc, 1, v4")
    a("s_nop 1")
    a("s_cmp_eq_u64 vcc, exec"); a("s_cbranch_scc1 L_ffn_fgo")
    a("s_sleep 8")
    a("s_add_u32 s53, s53, 1")
    a("s_cmp_lt_u32 s53, 100000"); a("s_cbranch_scc1 L_ffn_fpoll")
    a.label("L_ffn_fgo")
    fft_column(a, 1)
    stamp(a, 1, 6, vb=251)
    dstamp(a, 1, 13, mask=0)
    a.label("L_ffn_done")
    a("s_endpgm")
    return name, max(R * 8192 + 73728, 147456)

K3_WAVES = 9
K3_LDS_COL = 0
K3_LDS_TAB = 16384
K3_LDS = 16384 + 22 * 1024
def k3(a):
    name = "fin_kernel"
    kernel_begin(a, name)
    a("s_cmp_ge_u32 s2, 256"); a("s_cbranch_scc1 L_k3_done")
    load_ptrs(a)
    stamp(a, 2, 0, vb=151)
    dstamp(a, 2, 8, mn=True, vb=151)
    a("v_lshrrev_b32 v1, 6, v0")
    a("v_and_b32 v2, 63, v0")
    a("v_readfirstlane_b32 s48, v1")
    srd(a, 32, 26, PART_BYTES, WS_PART)
    srd(a, 36, 26, YT_BYTES, WS_YT)
    srd(a, 40, 4, S * D * 2)
    srd(a, 44, 22, S * D * 2)
    a("s_mul_i32 s49, s2, 9")
    a("s_add_u32 s49, s49, s48")
    a("v_lshlrev_b32 v3, 4, v2")
    a("s_lshl_b32 s53, s49, 10")
    for j in range(16):
        r = 32 + j * 4
        a("buffer_load_dwordx4 v[%d:%d], v3, s[32:35], s53 offen" % (r, r + 3))
        if j < 15: a("s_add_u32 s53, s53, %d" % (64 * 18 * 2048))
    a("s_mul_hi_u32 s51, s49, %d" % (-(-(1 << 32) // 36)))
    a("s_mul_i32 s52, s51, 36")
    a("s_sub_u32 s52, s49, s52")
    a("s_and_b32 s50, s52, 1")
    a("s_lshr_b32 s52, s52, 1")
    a("v_and_b32 v4, 31, v2")
    a("v_lshrrev_b32 v5, 5, v2")
    a("s_lshl_b32 s55, s51, 5")
    a("v_add_u32 v12, s55, v4")
    a("s_movk_i32 s56, 1152")
    a("v_mul_lo_u32 v7, v12, s56")
    a("s_lshl_b32 s57, s52, 6")
    a("s_lshl_b32 s58, s50, 5")
    a("s_add_u32 s57, s57, s58")
    a("v_add_u32 v7, s57, v7")
    a("v_lshl_add_u32 v8, v5, 3, v7")
    for g in range(2):
        a("buffer_load_dwordx2 v[%d:%d], v8, s[40:43], 0 offen offset:%d" % (100 + 2 * g, 101 + 2 * g, g * 16))
    a("v_lshl_add_u32 v9, v5, 4, v7")
    a("s_lshl_b32 s59, s52, 5")
    a("s_lshl_b32 s58, s50, 4")
    a("s_add_u32 s59, s59, s58")
    a("s_cmp_le_u32 s52, 8"); a("s_cbranch_scc0 L_k3_mir")
    a("v_lshlrev_b32 v6, 15, v5")
    a("v_lshl_add_u32 v6, v12, 2, v6")
    a("s_lshl_b32 s54, s59, 13")
    a("s_movk_i32 s58, 8192")
    a("s_branch L_k3_yad")
    a.label("L_k3_mir")
    a("v_sub_u32 v6, 2048, v12")
    a("v_and_b32 v6, 2047, v6")
    a("v_lshlrev_b32 v6, 2, v6")
    a("v_xor_b32 v13, 1, v5")
    a("v_lshl_add_u32 v6, v13, 15, v6")
    a("s_sub_u32 s54, 572, s59")
    a("s_lshl_b32 s54, s54, 13")
    a("s_mov_b32 s58, %d" % (-8192 & 0xffffffff))
    a.label("L_k3_yad")
    for r in range(8):
        off = 8 * (r >> 2) + (r & 3)
        a("s_mul_i32 s55, s58, %d" % off)
        a("s_add_u32 s55, s55, s54")
        a("buffer_load_dword v%d, v6, s[36:39], s55 offen" % (104 + r))
    n = 16 + 2 + 8
    for j in range(16):
        a("s_waitcnt vmcnt(%d)" % (n - (j + 1)))
        for d in range(4):
            src = 32 + j * 4 + d
            e = 2 * d
            if j == 0:
                a("v_lshlrev_b32 v%d, 16, v%d" % (16 + e, src))
                a("v_and_b32 v%d, 0xffff0000, v%d" % (17 + e, src))
            else:
                a("v_lshlrev_b32 v10, 16, v%d" % src)
                a("v_and_b32 v11, 0xffff0000, v%d" % src)
                a("v_add_f32 v%d, v%d, v10" % (16 + e, 16 + e))
                a("v_add_f32 v%d, v%d, v11" % (17 + e, 17 + e))
    a("s_waitcnt vmcnt(0)")
    for g in range(2):
        for h in range(2):
            src = 100 + 2 * g + h
            e = 4 * g + 2 * h
            a("v_lshlrev_b32 v10, 16, v%d" % src)
            a("v_and_b32 v11, 0xffff0000, v%d" % src)
            a("v_add_f32 v%d, v%d, v10" % (16 + e, 16 + e))
            a("v_add_f32 v%d, v%d, v11" % (17 + e, 17 + e))
    stamp(a, 2, 1, vb=151, tid=0)
    dstamp(a, 2, 9, vb=151, tid=0)
    stamp(a, 2, 2, vb=151, tid=0)
    dstamp(a, 2, 10, vb=151, tid=0)
    a("s_waitcnt vmcnt(0)")
    for r in range(8):
        a("v_add_f32 v%d, v%d, v%d" % (16 + r, 16 + r, 104 + r))
    for d in range(4):
        a("v_cvt_pk_bf16_f32 v%d, v%d, v%d" % (32 + d, 16 + 2 * d, 17 + 2 * d))
    a("s_nop 1")
    a("v_permlane32_swap_b32 v32, v34")
    a("v_permlane32_swap_b32 v33, v35")
    a("s_nop 1")
    a("buffer_store_dwordx4 v[32:35], v9, s[44:47], 0 offen")
    if OPT.get("pad"):
        a("s_cmp_lg_u32 s2, 0"); a("s_cbranch_scc1 L_k3_done")
        a("s_add_u32 s62, s26, %d" % (11 << 20)); a("s_addc_u32 s63, s27, 0")
        a("s_load_dword s64, s[62:63], 0"); a("s_waitcnt lgkmcnt(0)")
        a("s_mov_b32 s66, 0")
        a.label("L_k3_pd")
        a("s_memrealtime s[60:61]"); a("s_waitcnt lgkmcnt(0)")
        a("s_sub_u32 s65, s60, s64")
        a("s_add_u32 s66, s66, 1")
        a("s_cmp_gt_u32 s66, 2000000"); a("s_cbranch_scc1 L_k3_done")
        a("s_cmp_lt_u32 s65, %d" % OPT["pad"]); a("s_cbranch_scc1 L_k3_pd")
    stamp(a, 2, 3, vb=151, tid=0)
    dstamp(a, 2, 11, vb=151, tid=0)
    a.label("L_k3_done")
    a("s_endpgm")
    return name

def main():
    out = sys.argv[1]
    for o in sys.argv[2:]:
        if o == "stamps": OPT["stamps"] = 1
        elif o.startswith("abl="): OPT["abl"].update(o[4:].split(","))
        elif "=" in o:
            k, v = o.split("=", 1)
            OPT[k] = int(v) if v.lstrip("-").isdigit() else v.replace("+", " ")
    lds = 163840
    a = Asm()
    a.raw(HEADER.rstrip("\n"))
    a.raw("; @launch kernel=prep_kernel grid=(%d,1,1) block=(256,1,1) lds=0" % (N_LN + N_DF + N_TAB))
    a.raw("; @launch kernel=ffn_kernel grid=(256,1,1) block=(256,1,1) lds=%d" % lds)
    a.raw("; @launch kernel=fin_kernel grid=(256,1,1) block=(%d,1,1) lds=0" % (64 * K3_WAVES))
    a.raw('.amdgcn_target "amdgcn-amd-amdhsa--gfx950"')
    k1(a); k2(a); k3(a)
    a.label("L_code_end")
    big = OPT["stamps"] or OPT.get("dbgst")
    kernel_desc(a, "prep_kernel", 256 if big else 128, 96, 256 if big else 128)
    kernel_desc(a, "ffn_kernel", 512, 102, 256)
    kernel_desc(a, "fin_kernel", 160, 96, 160)
    open(out, "w").write(a.text())
if __name__ == "__main__":
    main()
```

```python
import sys, math
import gen5
from gen5 import *
from gen5 import OPT

DF2 = True

def k2(a):
    R = 9; ABLS = OPT["abl"]
    HB = R * 8192
    SPARE = 147456
    name = "ffn_kernel"
    kernel_begin(a, name)
    a("s_cmp_ge_u32 s2, 256"); a("s_cbranch_scc1 L_ffn_done")
    a("s_load_dwordx8 s[16:23], s[0:1], 48")
    a("s_load_dwordx4 s[24:27], s[0:1], 80")
    a("v_lshrrev_b32 v20, 6, v0")
    a("v_and_b32 v%d, 63, v0" % V_LN)
    a("v_readfirstlane_b32 s%d, v20" % S_WAVE)
    mj_from_wg(a, S_M, S_J, S_T0, S_T1)
    st = Stream(a)
    def emit_item(it):
        if isinstance(it, tuple):
            kind = it[0]
            if kind == "lds": st.lds(it[1], it[2])
            elif kind == "vm": st.vmem(it[1], it[2])
            elif kind == "bar":
                st.wait(vm=it[1])
                st("s_barrier")
            elif kind == "wlg": st.wait(lg=it[1])
            else: raise ValueError(kind)
        elif isinstance(it, list):
            for x in it: emit_item(x)
        else:
            st(it)
    L = V_LN
    T = [200, 201, 202, 203, 204, 205, 206]
    S_T2, S_T3 = 87, 4 + 18
    a("s_lshr_b32 s%d, s%d, 1" % (S_TM, S_WAVE))
    a("s_and_b32 s%d, s%d, 1" % (S_FH, S_WAVE))
    a("s_mul_i32 s%d, s%d, 288" % (S_T0, S_J))
    a("s_lshl_b32 s%d, s%d, 5" % (S_FB, S_T1))
    a("s_add_u32 s%d, s%d, s%d" % (S_FB, S_FB, S_T0))
    a("s_lshl_b32 s%d, s%d, 1" % (S_COL[0], S_FB))
    a("s_mul_i32 s%d, s%d, 18" % (S_ROT, S_M))
    a("s_lshr_b32 s%d, s%d, 4" % (S_ROT, S_ROT))
    a("s_lshl_b32 s%d, s%d, 11" % (S_LDSW, S_WAVE))
    a("v_lshlrev_b32 v%d, 4, v%d" % (V_LANE16, L))
    a("v_lshrrev_b32 v%d, 3, v%d" % (T[0], L))
    a("s_lshl_b32 s%d, s%d, 4" % (S_T2, S_FH))
    a("v_add_u32 v%d, s%d, v%d" % (T[0], S_T2, T[0]))
    a("v_mul_u32_u24 v%d, 9216, v%d" % (T[0], T[0]))
    a("v_bfe_u32 v%d, v%d, 4, 1" % (T[1], L))
    a("s_lshl_b32 s%d, s%d, 1" % (S_T2, S_TM))
    a("v_or_b32 v%d, s%d, v%d" % (T[1], S_T2, T[1]))
    a("v_bfe_u32 v%d, v%d, 1, 2" % (T[2], L))
    a("v_xor_b32 v%d, v%d, v%d" % (T[2], T[2], T[1]))
    a("v_and_b32 v%d, 1, v%d" % (T[3], L))
    a("v_lshlrev_b32 v%d, 4, v%d" % (T[3], T[3]))
    a("v_lshl_add_u32 v%d, v%d, 5, v%d" % (T[3], T[2], T[3]))
    a("v_add_u32 v%d, v%d, v%d" % (V_DM0, T[0], T[3]))
    a("v_add_u32 v%d, %d, v%d" % (V_DM1, 8 * 9216, V_DM0))
    a("s_lshl_b32 s%d, s%d, 2" % (S_T2, S_M))
    a("s_add_u32 s%d, s%d, s%d" % (S_T2, S_T2, S_WAVE))
    a("s_mul_i32 s%d, s%d, 36864" % (S_XB, S_T2))
    a("s_waitcnt lgkmcnt(0)")
    stamp(a, 1, 0)
    dstamp(a, 1, 2, mn=True)
    a("s_cmp_ge_u32 s%d, 2" % S_WAVE)
    a("s_cselect_b32 s%d, s18, s16" % S_W)
    a("s_cselect_b32 s%d, s19, s17" % (S_W + 1))
    a("s_mov_b32 s%d, %d" % (S_W + 2, D * F * 2)); a("s_mov_b32 s%d, 0x00020000" % (S_W + 3))
    srd(a, S_X, 26, S * D * 2, WS_XNF)
    srd(a, S_D, 20, D * F * 2)

    def row_entry(s_):
        if s_ == 0:
            return ["s_mov_b32 s%d, s%d" % (S_ROW, S_ROT)]
        return [["s_add_u32 s%d, s%d, 1" % (S_ROW + s_, S_ROW + s_ - 1),
                 "s_cmp_eq_u32 s%d, 18" % (S_ROW + s_),
                 "s_cselect_b32 s%d, 0, s%d" % (S_ROW + s_, S_ROW + s_)]]
    def dma_items(g):
        stg, s_ = divmod(g, 18)
        if stg > 4: return []
        slot = g % R
        if stg == 4:
            return [["s_mul_i32 s%d, s%d, %d" % (S_OFF, S_ROW + s_, 32 * 9216),
                     "s_add_u32 m0, s%d, %d" % (S_LDS2, slot * 8192),
                     "s_add_u32 s%d, s%d, s%d" % (S_OFF, S_OFF, S_COL[4]),
                     ("vm", "buffer_load_dwordx4 v%d, s[%d:%d], s%d offen lds" % (V_DH0, S_W, S_W + 3, S_OFF), ("W", g))]]
        v0_, v1_ = (V_DM0, V_DM1)
        g0 = ["s_mul_i32 s%d, s%d, %d" % (S_OFF, S_ROW + s_, 32 * 9216),
              "s_add_u32 m0, s%d, %d" % (S_LDSW, slot * 8192),
              "s_add_u32 s%d, s%d, s%d" % (S_OFF, S_OFF, S_COL[stg]),
              ("vm", "buffer_load_dwordx4 v%d, s[%d:%d], s%d offen lds" % (v0_, S_W, S_W + 3, S_OFF), ("W", g))]
        g1 = ["s_add_u32 m0, s%d, %d" % (S_LDSW, slot * 8192 + 1024),
              "NOPSLOT",
              ("vm", "buffer_load_dwordx4 v%d, s[%d:%d], s%d offen lds" % (v1_, S_W, S_W + 3, S_OFF), ("W", g))]
        out = [g0, g1]
        if stg == 0:
            x0 = ["s_lshl_b32 s%d, s%d, 11" % (S_OFF2, S_ROW + s_),
                  "s_add_u32 m0, s%d, %d" % (S_LDSW, HB + slot * 8192),
                  "s_add_u32 s%d, s%d, s%d" % (S_OFF2, S_OFF2, S_XB),
                  ("vm", "buffer_load_dwordx4 v%d, s[%d:%d], s%d offen lds" % (V_LANE16, S_X, S_X + 3, S_OFF2), ("W", g))]
            x1 = ["s_add_u32 m0, s%d, %d" % (S_LDSW, HB + slot * 8192 + 1024),
                  "s_add_u32 s%d, s%d, 1024" % (S_OFF2, S_OFF2),
                  ("vm", "buffer_load_dwordx4 v%d, s[%d:%d], s%d offen lds" % (V_LANE16, S_X, S_X + 3, S_OFF2), ("W", g))]
            out = [g0, x0, g1, x1]
        return out
    def emit_group(grp, filler=None):
        for it in grp:
            if it == "NOPSLOT":
                if not (filler and filler()): st("s_nop 0")
            else: emit_item(it)
    NPRE = OPT.get("npre", 4)
    for s_ in range(NPRE):
        for it in row_entry(s_): emit_item(it)
        for grp in dma_items(s_): emit_group(grp)
    a("v_bfe_u32 v%d, v%d, 4, 1" % (T[0], L))
    a("v_bfe_u32 v%d, v%d, 5, 1" % (T[1], L))
    a("v_bfe_u32 v%d, v%d, 2, 2" % (T[3], L))
    a("v_and_b32 v%d, 3, v%d" % (T[4], L))
    a("v_lshlrev_b32 v%d, 12, v%d" % (T[5], T[0]))
    a("v_lshl_add_u32 v%d, v%d, 3, v%d" % (T[6], T[1], T[3]))
    a("v_lshl_add_u32 v%d, v%d, 7, v%d" % (T[5], T[6], T[5]))
    a("v_lshl_add_u32 v%d, v%d, 3, v%d" % (T[5], T[4], T[5]))
    a("v_lshrrev_b32 v%d, 1, v%d" % (T[6], T[3]))
    a("v_lshl_or_b32 v%d, v%d, 1, v%d" % (T[6], T[0], T[6]))
    a("s_lshl_b32 s%d, s%d, 1" % (S_T2, S_FH))
    a("v_xor_b32 v%d, s%d, v%d" % (T[4], S_T2, T[6]))
    a("v_lshl_add_u32 v%d, v%d, 5, v%d" % (V_TR[0], T[4], T[5]))
    a("v_xor_b32 v%d, 1, v%d" % (T[4], T[4]))
    a("v_lshl_add_u32 v%d, v%d, 5, v%d" % (V_TR[1], T[4], T[5]))
    a("v_add_u32 v%d, 49152, v%d" % (V_TR[2], V_TR[0]))
    a("v_add_u32 v%d, 49152, v%d" % (V_TR[3], V_TR[1]))
    a("s_lshl_b32 s%d, s%d, 12" % (S_T2, S_TM))
    a("s_add_u32 s%d, s%d, %d" % (S_T2, S_T2, HB))
    a("v_add_u32 v%d, s%d, v%d" % (V_HR, S_T2, V_LANE16))
    a("v_add_u32 v%d, 49152, v%d" % (V_HH, V_HR))
    for s_ in range(NPRE, 18):
        for it in row_entry(s_): emit_item(it)
    stamp(a, 1, 1)
    dstamp(a, 1, 3)

    df = []
    def D_(x): df.append(x)
    E = [207, 208, 209, 210, 211]
    D_("s_and_b32 s%d, s%d, 1" % (S_T3, S_J))
    D_("s_mul_i32 s%d, s%d, 288" % (S_T2, S_J))
    D_(["s_cmp_eq_u32 s%d, 0" % S_T3, "s_cselect_b32 s%d, 256, 0" % S_FHB])
    D_("s_add_u32 s%d, s%d, s%d" % (S_FHB, S_FHB, S_T2))
    for s_ in range(1, 4):
        D_("s_add_u32 s%d, s%d, %d" % (S_COL[s_], S_COL[0], 128 * s_))
    D_("s_lshl_b32 s%d, s%d, 5" % (S_COL[4], S_T3))
    D_("s_sub_u32 s%d, s%d, s%d" % (S_COL[4], S_FHB, S_COL[4]))
    D_("s_lshl_b32 s%d, s%d, 1" % (S_COL[4], S_COL[4]))
    D_("s_mov_b32 s%d, 0x%08x" % (S_C1, f2u(-2.0 * 0.7978845608028654 * 1.4426950408889634 * 0.044715)))
    D_("v_mov_b32 v%d, 0x%08x" % (V_C0, f2u(-2.0 * 0.7978845608028654 * 1.4426950408889634)))
    D_("v_lshrrev_b32 v%d, 2, v%d" % (E[0], L))
    D_("s_lshl_b32 s%d, s%d, 4" % (S_T2, S_FH))
    D_("v_add_u32 v%d, s%d, v%d" % (E[0], S_T2, E[0]))
    D_("v_mul_u32_u24 v%d, 9216, v%d" % (E[0], E[0]))
    D_("v_bfe_u32 v%d, v%d, 1, 1" % (E[1], L))
    D_("v_xor_b32 v%d, s%d, v%d" % (E[1], S_TM, E[1]))
    D_("s_lshl_b32 s%d, s%d, 1" % (S_T2, S_T3))
    D_("v_add_u32 v%d, s%d, v%d" % (E[1], S_T2, E[1]))
    D_("v_lshl_add_u32 v%d, v%d, 5, v%d" % (E[0], E[1], E[0]))
    D_("v_and_b32 v%d, 1, v%d" % (E[1], L))
    D_("v_lshl_add_u32 v%d, v%d, 4, v%d" % (V_DH0, E[1], E[0]))
    D_("v_bfe_u32 v%d, v%d, 4, 1" % (E[0], L))
    D_("v_bfe_u32 v%d, v%d, 5, 1" % (E[1], L))
    D_("v_bfe_u32 v%d, v%d, 2, 2" % (E[2], L))
    D_("v_lshl_add_u32 v%d, v%d, 3, v%d" % (E[1], E[1], E[2]))
    D_("v_lshlrev_b32 v%d, 6, v%d" % (E[1], E[1]))
    D_("v_lshl_add_u32 v%d, v%d, 11, v%d" % (E[1], E[0], E[1]))
    D_("v_xor_b32 v%d, s%d, v%d" % (E[0], S_FH, E[0]))
    D_("v_lshl_add_u32 v%d, v%d, 5, v%d" % (E[1], E[0], E[1]))
    D_("v_and_b32 v%d, 3, v%d" % (E[0], L))
    D_("v_lshl_add_u32 v%d, v%d, 3, v%d" % (V_TRH[0], E[0], E[1]))
    D_("v_add_u32 v%d, 49152, v%d" % (V_TRH[1], V_TRH[0]))
    D_("s_mul_i32 s%d, s%d, 36" % (S_T2, S_TM))
    D_("s_lshl_b32 s%d, s%d, 1" % (S_T3, S_FH))
    D_("s_add_u32 s%d, s%d, s%d" % (S_T3, S_T3, S_T2))
    D_("s_lshl_b32 s%d, s%d, 10" % (S_T3, S_T3))
    D_("s_add_u32 s%d, s%d, %d" % (S_T3, S_T3, HB))
    D_("v_add_u32 v%d, s%d, v%d" % (V_H, S_T3, V_LANE16))
    D_("v_lshrrev_b32 v%d, 3, v%d" % (E[0], L))
    D_("s_lshl_b32 s%d, s%d, 3" % (S_T2, S_WAVE))
    D_("v_add_u32 v%d, s%d, v%d" % (E[0], S_T2, E[0]))
    D_("v_mul_u32_u24 v%d, 1152, v%d" % (E[0], E[0]))
    D_("v_bfe_u32 v%d, v%d, 4, 1" % (E[1], L))
    D_("v_lshlrev_b32 v%d, 1, v%d" % (E[1], E[1]))
    D_("v_bfe_u32 v%d, v%d, 1, 2" % (E[2], L))
    D_("v_xor_b32 v%d, v%d, v%d" % (E[2], E[2], E[1]))
    D_("v_and_b32 v%d, 1, v%d" % (E[3], L))
    D_("v_lshlrev_b32 v%d, 4, v%d" % (E[3], E[3]))
    D_("v_lshl_add_u32 v%d, v%d, 5, v%d" % (E[3], E[2], E[3]))
    D_("v_add_u32 v%d, v%d, v%d" % (V_D2, E[0], E[3]))
    D_("v_bfe_u32 v%d, v%d, 4, 1" % (E[0], L))
    D_("v_bfe_u32 v%d, v%d, 5, 1" % (E[1], L))
    D_("v_bfe_u32 v%d, v%d, 2, 2" % (E[2], L))
    D_("v_and_b32 v%d, 3, v%d" % (E[3], L))
    D_("v_lshl_add_u32 v%d, v%d, 2, v%d" % (E[4], E[1], E[2]))
    D_("v_lshlrev_b32 v%d, 7, v%d" % (E[4], E[4]))
    D_("v_lshl_add_u32 v%d, v%d, 3, v%d" % (E[4], E[3], E[4]))
    D_("v_and_b32 v%d, 2, v%d" % (E[2], E[2]))
    D_("s_lshl_b32 s%d, s%d, 1" % (S_T2, S_FH))
    D_("v_or_b32 v%d, s%d, v%d" % (E[0], S_T2, E[0]))
    D_("v_xor_b32 v%d, v%d, v%d" % (E[0], E[0], E[2]))
    D_("v_lshl_add_u32 v%d, v%d, 5, v%d" % (V_TR2[0], E[0], E[4]))
    for b in range(1, 4):
        D_("v_add_u32 v%d, %d, v%d" % (V_TR2[b], 36864 * b, V_TR2[0]))
    srdl = lambda sd, nbytes, off: [["s_add_u32 s%d, s26, %d" % (sd, off), "s_addc_u32 s%d, s27, 0" % (sd + 1)], "s_mov_b32 s%d, %d" % (sd + 2, nbytes), "s_mov_b32 s%d, 0x00020000" % (sd + 3)]
    for x in srdl(S_P, PART_BYTES, WS_PART): D_(x)
    for x in srdl(S_DF, 2 * DF_BYTES, WS_DF): D_(x)
    for x in srdl(S_CF, CF_BYTES, WS_CF): D_(x)
    for x in srdl(S_DBG, 288 * 4, WS_FLAG): D_(x)
    D_("s_lshl_b32 s%d, s%d, 10" % (S_LDS2, S_WAVE))
    D_("s_lshl_b32 s%d, s%d, 4" % (S_T2, S_J))
    D_("s_add_u32 s%d, s%d, s%d" % (S_T2, S_T2, S_M))
    D_("s_lshl_b32 s%d, s%d, 2" % (S_T2, S_T2))
    D_("s_lshl_b32 s%d, s%d, 1" % (S_T3, S_TM))
    D_("s_add_u32 s%d, s%d, s%d" % (S_T2, S_T2, S_T3))
    D_("s_mul_i32 s%d, s%d, %d" % (S_PB, S_T2, 18 * 2048))
    D_("s_lshl_b32 s%d, s%d, 11" % (S_T3, S_FH))
    D_("s_add_u32 s%d, s%d, s%d" % (S_PB, S_PB, S_T3))
    D_("s_mul_i32 s%d, s%d, 1152" % (S_WD0, S_FB))
    D_("s_mul_i32 s%d, s%d, 1152" % (S_WD1, S_FHB))
    D_("s_mul_i32 s%d, s%d, 9" % (S_RB, S_M))
    D_("s_lshr_b32 s%d, s%d, 4" % (S_RB, S_RB))
    D_("s_lshl_b32 s%d, s%d, 1" % (S_T2, S_J))
    D_("s_add_u32 s%d, s%d, s%d" % (S_T2, S_T2, S_FH))
    D_("s_mul_i32 s%d, s%d, 73728" % (S_DFB, S_T2))
    D_("s_lshl_b32 s%d, s%d, 11" % (S_T3, S_ROT))
    D_("s_add_u32 s%d, s%d, s%d" % (S_DFB, S_DFB, S_T3))
    D_("s_lshl_b32 s%d, s%d, 4" % (S_T3, S_T2))
    D_("s_add_u32 s%d, s%d, s%d" % (S_T3, S_T3, S_M))
    D_("s_lshl_b32 s%d, s%d, 2" % (S_CNT, S_T3))
    D_(["s_cmp_lg_u32 s%d, 0" % S_TM, "s_cselect_b32 s%d, 0x7ff00000, s%d" % (S_CNT, S_CNT)])
    D_(["s_cmp_ge_u32 s%d, 9" % S_T2, "s_cselect_b32 s%d, 9, 0" % S_T3, "s_cselect_b32 s%d, 4096, 0" % S_CFB])
    D_("s_sub_u32 s%d, s%d, s%d" % (S_T2, S_T2, S_T3))
    D_("s_lshl_b32 s%d, s%d, 18" % (S_T2, S_T2))
    D_("s_add_u32 s%d, s%d, s%d" % (S_CFB, S_CFB, S_T2))
    D_("s_lshl_b32 s%d, s%d, 8" % (S_T2, S_M))
    D_("s_add_u32 s%d, s%d, s%d" % (S_CFB, S_CFB, S_T2))
    D_("s_lshl_b32 s%d, s%d, 7" % (S_T2, S_TM))
    D_("s_add_u32 s%d, s%d, s%d" % (S_CFB, S_CFB, S_T2))
    D_(["s_cmp_ge_u32 s%d, 9" % S_J, "s_cselect_b32 s%d, 0x7ff00000, s%d" % (S_CFB, S_CFB)])
    D_("s_lshl_b32 s%d, s%d, 12" % (S_T2, S_WAVE))
    D_("s_add_u32 s%d, s%d, %d" % (S_T2, S_T2, SPARE))
    D_("v_and_b32 v%d, 31, v%d" % (E[0], L))
    D_("v_lshlrev_b32 v%d, 7, v%d" % (E[0], E[0]))
    D_("v_lshrrev_b32 v%d, 5, v%d" % (E[1], L))
    D_("v_lshl_add_u32 v%d, v%d, 4, v%d" % (E[0], E[1], E[0]))
    D_("v_add_u32 v%d, s%d, v%d" % (V_CF, S_T2, E[0]))
    D_("v_add_u32 v%d, s%d, v%d" % (V_CR, S_T2, V_LANE16))
    D_("v_lshrrev_b32 v%d, 3, v%d" % (E[0], L))
    D_("v_lshlrev_b32 v%d, 13, v%d" % (E[0], E[0]))
    D_("v_and_b32 v%d, 7, v%d" % (E[1], L))
    D_("v_lshl_add_u32 v%d, v%d, 4, v%d" % (V_CG, E[1], E[0]))

    HI = 49152
    def trread(g, kk, half):
        slot = g % R
        gks = g * 2 + kk
        buf = gks % 3
        out = []
        ncs = 1 if half else 2
        for c in range(ncs):
            for q in range(2):
                off = slot * 8192 + (kk * 1024 + q * 256 if half else kk * 2048 + q * 512)
                hi = off >= HI
                if half: areg = V_TRH[1 if hi else 0]
                else: areg = V_TR[c + (2 if hi else 0)]
                if hi: off -= HI
                r = AF + (buf * 2 + c) * 4 + q * 2
                out.append(("lds", "ds_read_b64_tr_b16 v[%d:%d], v%d offset:%d" % (r, r + 1, areg, off), ("A", gks)))
        if g < 18:
            for t in range(2):
                off = slot * 8192 + t * 2048 + kk * 1024
                hi = off >= HI
                out.append(("lds", "ds_read_b128 %s, v%d offset:%d" % (xreg(gks, t), V_HH if hi else V_HR, off - HI if hi else off), ("A", gks)))
        return out
    B = 2
    NG = 5 * 18
    st.wait(vm=[("W", i) for i in range(B)])
    st("s_barrier")
    for kk in range(2):
        for it in trread(0, kk, False): emit_item(it)
    next_dma = [R - 1]
    dma_pending = []
    for g in range(NPRE, R - 1): dma_pending.extend(dma_items(g))
    def blk_items(dst, b, mul, tmp):
        return ["s_add_u32 s%d, s%d, %d" % (dst, S_RB, b),
                "s_cmp_ge_u32 s%d, 9" % dst,
                "s_cselect_b32 s%d, 9, 0" % tmp,
                "s_sub_u32 s%d, s%d, s%d" % (dst, dst, tmp),
                "s_mul_i32 s%d, s%d, %d" % (dst, dst, mul)]
    S_BC = 84
    NB = 15
    BREG = [AF + 4, AF + 12, AF + 20, BR, BR + 4, BR + 8, BR + 12] + [112 + 4 * i for i in range(8)]
    def breg(ks): return BREG[ks % NB]
    def bload(ks):
        r = breg(ks)
        pre = ["s_add_u32 s%d, s%d, %d" % (S_OFF2, S_DFB, (ks // 4) * 4096)] if True else []
        return pre + [("vm", "buffer_load_dwordx4 v[%d:%d], v%d, s[%d:%d], s%d offen offset:%d" % (r, r + 3, V_LANE16, S_DF, S_DF + 3, S_OFF2, (ks % 4) * 1024), ("B", ks))]
    def wd_groups(b):
        buf = b % 4
        out = []
        for i in range(9):
            base = S_WD0 if i < 8 else S_WD1
            off = (32 * i * 1152 if i < 8 else 0)
            pre = blk_items(S_BC, b, 128, S_T0) if i == 0 else []
            out.append(pre + ["s_add_u32 s%d, s%d, s%d" % (S_OFF, base, S_BC),
                        "s_add_u32 m0, s%d, %d" % (S_LDS2, buf * 36864 + i * 4096),
                        "s_add_u32 s%d, s%d, %d" % (S_OFF, S_OFF, off),
                        ("vm", "buffer_load_dwordx4 v%d, s[%d:%d], s%d offen lds" % (V_D2, S_D, S_D + 3, S_OFF), ("D", b))])
        return out
    wd01 = wd_groups(0) + wd_groups(1)
    wd_next = [0]
    def stage(stg, accset, fill_q, late=None):
        half = stg == 4
        ncs = 1 if half else 2
        gq = list(fill_q)
        nm_total = 36 * ncs * 2
        start = 6 if stg > 0 else 2
        per = len(gq) / float(nm_total - start - (8 if stg == 0 else 0))
        state = {"acc": 0.0, "em": 0}
        def pop_gelu():
            if gq and not isinstance(gq[0], list):
                emit_item(gq.pop(0)); state["em"] += 1
                return True
            return False
        mi = 0
        since_dma = 99
        lateq = []
        for ks in range(36):
            g = stg * 18 + ks // 2
            gks = stg * 36 + ks
            buf = gks % 3
            g2, kk2 = divmod(gks + 2, 2)
            bar = None
            if kk2 == 0 and g2 % B == 0 and g2 < NG:
                bar = [("W", i) for i in range(g2, min(g2 + B, NG))]
            reads = trread(g2, kk2, g2 // 18 == 4) if g2 < NG else []
            if late and ks in late:
                if ks == 28: assert state["em"] >= 138, state["em"]
                lateq.extend(late[ks])
            st.wait(lg=[("A", gks)])
            ng = ncs * 2
            k = 0
            for c in range(ncs):
                for t in range(2):
                    ti = c * 2 + t
                    d = ACC[accset] + 16 * ti
                    ar = AF + (buf * 2 + c) * 4
                    src = "0" if ks == 0 else "v[%d:%d]" % (d, d + 15)
                    st("v_mfma_f32_32x32x16_bf16 v[%d:%d], v[%d:%d], %s, %s" % (d, d + 15, ar, ar + 3, xreg(ks, t), src))
                    mi += 1
                    if k == 0 and bar is not None:
                        emit_item(("bar", bar))
                        while next_dma[0] < NG and next_dma[0] - R <= g2 - 2:
                            dma_pending.extend(dma_items(next_dma[0])); next_dma[0] += 1
                        if stg == 4 and OPT.get("earlyd", 1):
                            while wd_next[0] < 18 and 81 + (4096 * wd_next[0] + 4095) // 8192 <= g2 - 2:
                                dma_pending.append(wd01[wd_next[0]]); wd_next[0] += 1
                    lo = k * len(reads) // ng; hi_ = (k + 1) * len(reads) // ng
                    for it in reads[lo:hi_]: emit_item(it)
                    since_dma += 1
                    did = False
                    gap = 1 if (stg == 0 and ks < 14) else 2 if (half or stg == 0) else 4
                    if dma_pending and since_dma >= gap and not (k == 0 and bar is not None):
                        emit_group(dma_pending.pop(0), pop_gelu if mi > start else None)
                        since_dma = 0; did = True
                    elif lateq:
                        emit_item(lateq.pop(0)); did = True
                    if mi > start:
                        state["acc"] += per
                        n = 0
                        cap = (OPT["gcap"] + (2 if half else 0)) - (2 if did else 0)
                        while gq and state["em"] < state["acc"] and n < cap:
                            emit_item(gq.pop(0)); state["em"] += 1; n += 1
                    k += 1
        assert not lateq
        while gq: emit_item(gq.pop(0))

    def full_tiles(stg, order=(0, 1, 2, 3)):
        allt = [(c * 2 + t, (t * 18 + c) * 1024 + stg * 4096, V_H) for c in range(2) for t in range(2)]
        return [allt[i] for i in order]
    stage(0, 0, df)
    a("s_mul_i32 s%d, s%d, 36" % (S_T2, S_TM))
    a("s_add_u32 s%d, s%d, 16" % (S_T3, S_T2))
    a("s_add_u32 s%d, s%d, s%d" % (S_T3, S_T3, S_FH))
    a("s_lshl_b32 s%d, s%d, 10" % (S_T3, S_T3))
    a("s_add_u32 s%d, s%d, %d" % (S_T3, S_T3, HB))
    post0 = ["v_add_u32 v%d, s%d, v%d" % (V_HH, S_T3, V_LANE16),
             "s_lshl_b32 s%d, s%d, 10" % (S_T3, S_T2),
             "s_add_u32 s%d, s%d, %d" % (S_T3, S_T3, HB),
             "v_add_u32 v%d, s%d, v%d" % (V_HR, S_T3, V_LANE16)]
    stamp(a, 1, 2)
    dstamp(a, 1, 4)
    for x in post0: st(x)
    stamp(a, 6, 0)
    stage(1, 1, gelu_items(ACC[0], full_tiles(0)))
    stamp(a, 6, 1)
    stage(2, 0, gelu_items(ACC[1], full_tiles(1)))
    stamp(a, 6, 2)
    stage(3, 1, gelu_items(ACC[0], full_tiles(2)))
    stamp(a, 6, 3)
    wdpf = []
    wdpf.append("v_mul_u32_u24 v%d, 1152, v0" % V_T1)
    wdpf.append(["v_and_b32 v%d, 31, v%d" % (255, V_LN), "v_mul_u32_u24 v255, 1152, v255"])
    for bb in range(2):
        wdpf.append(blk_items(S_BC, bb, 128, S_T2) + ["s_add_u32 s%d, s%d, s%d" % (S_OFF, S_WD0, S_BC),
                    ("vm", "buffer_load_dword v%d, v%d, s[%d:%d], s%d offen" % (V_T2, V_T1, S_D, S_D + 3, S_OFF), "PF")])
        wdpf.append(["s_add_u32 s%d, s%d, s%d" % (S_OFF, S_WD1, S_BC),
                    ("vm", "buffer_load_dword v%d, v255, s[%d:%d], s%d offen" % (V_T2, S_D, S_D + 3, S_OFF), "PF")])
    late4 = {20: [bload(i) for i in range(7)], 28: [bload(i) for i in range(7, NB)]}
    stage(4, 0, gelu_items(ACC[1], full_tiles(3, (2, 3, 0, 1))), late4)
    assert not dma_pending
    stamp(a, 6, 4)
    stamp(a, 1, 3)
    dstamp(a, 1, 5)
    st.wait_all(vm=False, lg=True)
    st("s_barrier")
    tail = gelu_items(ACC[0], [(t, t * 18 * 1024, V_HH) for t in range(2)])
    A1ACC = ACC[1]
    a("s_cmp_ge_u32 s%d, 9" % S_J)
    a("s_cbranch_scc1 L_ffn_noa1")
    vm_save, lg_save = list(st.vm), list(st.lg)
    wdq = wd01[wd_next[0]:]
    tq = list(tail)
    for ks in range(36):
        st.wait(vm=[("B", ks)])
        for t in range(2):
            d = A1ACC + 16 * t
            br = breg(ks)
            src = "0" if ks == 0 else "v[%d:%d]" % (d, d + 15)
            st("v_mfma_f32_32x32x16_bf16 v[%d:%d], %s, v[%d:%d], %s" % (d, d + 15, xreg(ks, t), br, br + 3, src))
            if t == 1 and ks + NB < 36:
                emit_item(bload(ks + NB))
            elif wdq and (ks + NB >= 36 or t == 0 and ks % 2 == 1):
                emit_group(wdq.pop(0))
            if ks >= 2:
                for _ in range(3):
                    if tq: emit_item(tq.pop(0))
    assert not tq and not wdq, (len(tq), len(wdq))
    st.wait(vm=[("D", 0)], lg=list(st.lg))
    a("s_branch L_ffn_join")
    a.label("L_ffn_noa1")
    st.vm, st.lg = vm_save, lg_save
    for grp in wd01[wd_next[0]:]: emit_group(grp)
    for it in tail: emit_item(it)
    st.wait(vm=[("D", 0)], lg=list(st.lg))
    a.label("L_ffn_join")
    st("s_barrier")
    st.vm = [("D", 1)]; st.lg = []
    stamp(a, 1, 4)
    dstamp(a, 1, 6)
    A2 = 176; ACC2 = [16, 48]; PK = 200
    def hread(ci):
        return [("lds", "ds_read_b128 a[%d:%d], v%d offset:%d" % (4 * (t * 18 + ci), 4 * (t * 18 + ci) + 3, V_HR, (t * 18 + ci) * 1024), ("H", ci)) for t in range(2)]
    def trread2(b, ci):
        gk = b * 18 + ci
        r = A2 + (gk % 4) * 4
        return [("lds", "ds_read_b64_tr_b16 v[%d:%d], v%d offset:%d" % (r + 2 * q, r + 2 * q + 1, V_TR2[b % 4], ci * 2048 + q * 1024), ("A2", gk)) for q in range(2)]
    def epi_items(b):
        items = []
        acc = ACC2[b % 2]
        for t in range(2):
            pk = PK + 8 * t
            for d in range(8):
                items.append("v_cvt_pk_bf16_f32 v%d, v%d, v%d" % (pk + d, acc + 16 * t + 2 * d, acc + 16 * t + 2 * d + 1))
            for q in range(2):
                pre = blk_items(S_BC + 1, b, 4096, S_T2) if (t == 0 and q == 0) else []
                items.append(pre + ["s_add_u32 s%d, s%d, s%d" % (S_OFF2, S_PB, S_BC + 1),
                              "s_add_u32 s%d, s%d, %d" % (S_OFF2, S_OFF2, t * 18 * 2048),
                              ("vm", "buffer_store_dwordx4 v[%d:%d], v%d, s[%d:%d], s%d offen offset:%d %s" % (pk + 4 * q, pk + 4 * q + 3, V_LANE16, S_P, S_P + 3, S_OFF2, q * 1024, OPT["stflags"]), ("P", b))])
        return items
    def sa_epi():
        items = []
        for t in range(2):
            pk = PK + 8 * t
            for dd in range(8):
                items.append("v_cvt_pk_bf16_f32 v%d, v%d, v%d" % (pk + dd, A1ACC + 16 * t + 2 * dd, A1ACC + 16 * t + 2 * dd + 1))
            items.append(["s_nop 1",
                          "v_permlane32_swap_b32 v%d, v%d" % (pk + 0, pk + 2), "v_permlane32_swap_b32 v%d, v%d" % (pk + 1, pk + 3),
                          "v_permlane32_swap_b32 v%d, v%d" % (pk + 4, pk + 6), "v_permlane32_swap_b32 v%d, v%d" % (pk + 5, pk + 7)])
            items.append(("lds", "ds_write_b128 v%d, v[%d:%d] offset:%d" % (V_CF, pk, pk + 3, t * 64), "cw"))
            items.append(("lds", "ds_write_b128 v%d, v[%d:%d] offset:%d" % (V_CF, pk + 4, pk + 7, t * 64 + 32), "cw"))
        items.append(("wlg", ["cw"]))
        for k in range(4):
            items.append(("lds", "ds_read_b128 v[%d:%d], v%d offset:%d" % (112 + 4 * k, 115 + 4 * k, V_CR, k * 1024), ("cr", k)))
        for k in range(4):
            items.append([("wlg", [("cr", k)]), "s_add_u32 s%d, s%d, %d" % (S_OFF2, S_CFB, k * 8 * 8192),
                          ("vm", "buffer_store_dwordx4 v[%d:%d], v%d, s[%d:%d], s%d offen sc1" % (112 + 4 * k, 115 + 4 * k, V_CG, S_CF, S_CF + 3, S_OFF2), "CF")])
        return items
    for ci in range(4):
        for it in hread(ci): emit_item(it)
    for ci in range(3):
        for it in trread2(0, ci): emit_item(it)
    pend = []
    for b in range(9):
        if b < 8: stamp(a, 7, b)
        eq = epi_items(b - 1) if b > 0 else sa_epi()
        if b == 5 and OPT.get("cpf3", 1):
            st("s_getpc_b64 s[%d:%d]" % (S_DF, S_DF + 1))
            a.label("L_k2_pc")
            st("s_add_u32 s%d, s%d, fin_kernel-L_k2_pc" % (S_DF, S_DF))
            st("s_addc_u32 s%d, s%d, 0" % (S_DF + 1, S_DF + 1))
            st("v_lshlrev_b32 v%d, 6, v0" % V_T1)
            st("v_min_u32 v%d, L_code_end-fin_kernel-64, v%d" % (V_T1, V_T1))
            st.vmem("global_load_dword v%d, v%d, s[%d:%d]" % (V_T2, V_T1, S_DF, S_DF + 1), "PF")
        mi = 0
        since = 99
        for ci in range(18):
            gk = b * 18 + ci
            nb, nci = divmod(gk + 3, 18)
            reads = trread2(nb, nci) if nb < 9 else []
            hr_ = (hread(4 + 2 * ci) + hread(5 + 2 * ci)) if (b == 0 and 5 + 2 * ci < 18) else []
            st.wait(lg=[("A2", gk)] + ([("H", ci)] if b == 0 else []))
            for t in range(2):
                d = ACC2[b % 2] + 16 * t
                ar = A2 + (gk % 4) * 4
                hr = (t * 18 + ci) * 4
                src = "0" if ci == 0 else "v[%d:%d]" % (d, d + 15)
                st("v_mfma_f32_32x32x16_bf16 v[%d:%d], v[%d:%d], a[%d:%d], %s" % (d, d + 15, ar, ar + 3, hr, hr + 3, src))
                mi += 1
                isbar = (t == 0 and ci == 15 and b + 1 < 9)
                if b == 0 and ci == 8 and t == 0:
                    st.wait(lg=[("H", 17)])
                    st("s_barrier")
                    pend.extend(wd_groups(2) + wd_groups(3))
                if isbar:
                    emit_item(("bar", [("D", b + 1)] + (["CF"] if b == 1 else [])))
                    if b >= 1 and b + 3 <= 8: pend.extend(wd_groups(b + 3))
                    if b == 1:
                        st("v_lshlrev_b32 v%d, 20, v%d" % (V_T1, V_LN))
                        st("v_add_u32 v%d, s%d, v%d" % (V_T1, S_CNT, V_T1))
                        st("v_mov_b32 v%d, 1" % V_T2)
                        st.vmem("buffer_store_dword v%d, v%d, s[%d:%d], 0 offen sc1" % (V_T2, V_T1, S_DBG, S_DBG + 3), "SIG")
                if hr_:
                    emit_item(hr_[2 * t]); emit_item(hr_[2 * t + 1])
                if reads: emit_item(reads[t])
                since += 1
                vm_done = False
                if pend and since >= (2 if b == 1 or b == 0 else 3) and not isbar:
                    emit_group(pend.pop(0)); since = 0; vm_done = True
                if mi > 4 and eq and not vm_done:
                    it = eq.pop(0)
                    if isinstance(it, list) and any(isinstance(x, tuple) and x[0] == "vm" for x in it):
                        if since >= 2:
                            emit_item(it); since = 0
                        else: eq.insert(0, it)
                    else:
                        emit_item(it)
                        if eq and isinstance(eq[0], str): emit_item(eq.pop(0))
        while eq: emit_item(eq.pop(0))
    assert not pend
    st("s_nop 15"); st("s_nop 3")
    for it in epi_items(8): emit_item(it)
    stamp(a, 1, 5)
    dstamp(a, 1, 7)
    a("s_cmp_lt_u32 s%d, 9" % S_J); a("s_cbranch_scc1 L_ffn_done")
    a("s_cmp_ge_u32 s%d, 3" % S_WAVE); a("s_cbranch_scc1 L_ffn_done")
    a("s_sub_u32 s49, s%d, 9" % S_J)
    a("s_lshl_b32 s49, s49, 4")
    a("s_add_u32 s49, s49, s%d" % S_M)
    a("s_mul_i32 s49, s49, 3")
    a("s_add_u32 s49, s49, s%d" % S_WAVE)
    a("s_cmp_gt_u32 s49, 288"); a("s_cbranch_scc1 L_ffn_done")
    a("s_lshl_b32 s51, s%d, 13" % S_WAVE)
    a("s_add_u32 s51, s51, 36864")
    a("v_mov_b32 v2, v%d" % V_LN)
    a("s_cmp_eq_u32 s49, 288"); a("s_cbranch_scc1 L_ffn_fgo")
    a("s_lshr_b32 s52, s49, 5"); a("s_lshl_b32 s52, s52, 6")
    a("v_and_b32 v3, 15, v2"); a("v_lshlrev_b32 v3, 2, v3")
    a("v_bfe_u32 v4, v2, 4, 1"); a("v_mul_u32_u24 v4, 576, v4")
    a("v_add_u32 v3, v3, v4"); a("v_add_u32 v3, s52, v3")
    a("s_mov_b32 s53, 0")
    a.label("L_ffn_fpoll")
    a("buffer_load_dword v4, v3, s[%d:%d], 0 offen sc1" % (S_DBG, S_DBG + 3))
    a("s_waitcnt vmcnt(0)")
    a("v_cmp_eq_u32 vcc, 1, v4")
    a("s_nop 1")
    a("s_cmp_eq_u64 vcc, exec"); a("s_cbranch_scc1 L_ffn_fgo")
    a("s_sleep 8")
    a("s_add_u32 s53, s53, 1")
    a("s_cmp_lt_u32 s53, 100000"); a("s_cbranch_scc1 L_ffn_fpoll")
    a.label("L_ffn_fgo")
    fft_column(a, 1)
    stamp(a, 1, 6, vb=251)
    dstamp(a, 1, 13, mask=0)
    a.label("L_ffn_done")
    a("s_endpgm")
    return name

def main():
    out = sys.argv[1]
    OPT["pf"] = 0
    for o in sys.argv[2:]:
        if o == "stamps": OPT["stamps"] = 1
        elif o.startswith("abl="): OPT["abl"].update(o[4:].split(","))
        elif "=" in o:
            k, v = o.split("=", 1)
            OPT[k] = int(v) if v.lstrip("-").isdigit() else v.replace("+", " ")
    OPT["df2"] = 1
    a = Asm()
    a.raw(HEADER.rstrip("\n"))
    a.raw("; @launch kernel=prep_kernel grid=(%d,1,1) block=(256,1,1) lds=0" % (N_LN + N_DF + N_TAB))
    a.raw("; @launch kernel=ffn_kernel grid=(256,1,1) block=(256,1,1) lds=163840")
    a.raw("; @launch kernel=fin_kernel grid=(256,1,1) block=(%d,1,1) lds=0" % (64 * K3_WAVES))
    a.raw('.amdgcn_target "amdgcn-amd-amdhsa--gfx950"')
    gen5.k1(a); k2(a); gen5.k3(a)
    a.label("L_code_end")
    big = OPT["stamps"] or OPT.get("dbgst")
    kernel_desc(a, "prep_kernel", 256 if big else 128, 96, 256 if big else 128)
    kernel_desc(a, "ffn_kernel", 512, 102, 256)
    kernel_desc(a, "fin_kernel", 160, 96, 160)
    open(out, "w").write(a.text())
if __name__ == "__main__":
    main()
```

```python
import sys
from asmgen import *
def gen(tag, ndma, ndir):
    a = Asm()
    a.raw("; @launch kernel=w_%s_kernel grid=(256,1,1) block=(256,1,1) lds=0" % tag)
    a.raw("; @launch kernel=r_%s_kernel grid=(256,1,1) block=(256,1,1) lds=163840" % tag)
    a.raw('.amdgcn_target "amdgcn-amd-amdhsa--gfx950"')
    kernel_begin(a, "w_%s_kernel" % tag)
    a("s_cmp_ge_u32 s2, 256"); a("s_cbranch_scc1 L_wd")
    a("s_load_dwordx2 s[4:5], s[0:1], 88"); a("s_waitcnt lgkmcnt(0)")
    a("s_mov_b32 s8, s4"); a("s_mov_b32 s9, s5"); a("s_mov_b32 s10, 0x10000000"); a("s_mov_b32 s11, 0x00020000")
    a("v_lshlrev_b32 v1, 4, v0"); a("s_mul_i32 s12, s2, 20480")
    for i in range(5):
        a("buffer_store_dwordx4 v[4:7], v1, s[8:11], s12 offen sc1"); a("s_add_u32 s12, s12, 4096")
    a.label("L_wd"); a("s_endpgm")
    kernel_begin(a, "r_%s_kernel" % tag)
    a("s_cmp_ge_u32 s2, 256"); a("s_cbranch_scc1 L_rd")
    a("s_load_dwordx2 s[4:5], s[0:1], 88"); a("s_waitcnt lgkmcnt(0)")
    a("s_mov_b32 s8, s4"); a("s_mov_b32 s9, s5"); a("s_mov_b32 s10, 0x10000000"); a("s_mov_b32 s11, 0x00020000")
    a("v_lshrrev_b32 v1, 6, v0"); a("s_nop 0"); a("v_readfirstlane_b32 s12, v1")
    a("v_and_b32 v2, 63, v0"); a("v_lshlrev_b32 v2, 4, v2")
    a("s_lshr_b32 s13, s2, 4"); a("s_mul_i32 s13, s13, 147456"); a("s_mul_i32 s14, s12, 36864"); a("s_add_u32 s13, s13, s14")
    a("s_lshl_b32 s15, s12, 15")
    a("s_memtime s[20:21]"); a("s_waitcnt lgkmcnt(0)")
    n = max(ndma, ndir)
    for i in range(n):
        if i < ndma:
            a("s_add_u32 m0, s15, %d" % ((i % 32) * 1024)); a("s_nop 0")
            a("buffer_load_dwordx4 v2, s[8:11], s13 offen lds"); a("s_add_u32 s13, s13, 1024")
        if i < ndir:
            a("buffer_load_dwordx4 v[%d:%d], v2, s[8:11], s13 offen" % (8 + 4 * i, 11 + 4 * i)); a("s_add_u32 s13, s13, 1024")
    a("s_memtime s[22:23]")
    a("s_waitcnt vmcnt(0) lgkmcnt(0)")
    a("s_barrier")
    a("s_memtime s[24:25]"); a("s_waitcnt lgkmcnt(0)")
    a("s_sub_u32 s28, s22, s20"); a("s_sub_u32 s29, s24, s20")
    a("v_mov_b32 v4, s28"); a("v_mov_b32 v5, s29")
    a("s_lshl_b32 s30, s2, 3"); a("s_add_u32 s30, s30, 0x8000000"); a("v_mov_b32 v7, s30")
    a("v_cmp_eq_u32 vcc, 0, v0"); a("s_and_saveexec_b64 s[32:33], vcc"); a("s_cbranch_execz L_rd")
    a("buffer_store_dwordx2 v[4:5], v7, s[8:11], 0 offen")
    a.label("L_rd"); a("s_endpgm")
    kernel_desc(a, "w_%s_kernel" % tag, 16, 48, 16)
    kernel_desc(a, "r_%s_kernel" % tag, 256, 48, 256)
    return a.text()
if __name__ == "__main__":
    import build, json
    cfgs = []
    for nd, nr in [(36, 0), (0, 36), (18, 18), (24, 12)]:
        tag = "c%d_%d" % (nd, nr)
        fn = "cap_%s.s" % tag
        open(fn, "w").write(gen(tag, nd, nr))
        build.build(fn, "x", quiet=True)
        cfgs.append(fn)
    json.dump(cfgs, open("cap.json", "w"))
```
